```python
import torch

def _softmax(x, axis=-1):
    return torch.softmax(x, dim=axis)
def _gelu(x):
    return torch.nn.functional.gelu(x, approximate="tanh")
def _silu(x):
    return torch.nn.functional.silu(x)
def _sigmoid(x):
    return torch.sigmoid(x)
def _layernorm(x, axis=-1, eps=1e-5):
    m = x.mean(dim=axis, keepdim=True)
    v = x.var(dim=axis, keepdim=True, unbiased=False)
    return (x - m) / torch.sqrt(v + eps)
def _scatter_add(tgt, idx, src, axis=0):
    return tgt.clone().index_add_(axis, idx, src)
def _segment_sum(src, seg, n):
    out = torch.zeros((n,) + src.shape[1:], dtype=src.dtype)
    return out.index_add_(0, seg, src)
def _pad(x, pw):
    flat = tuple(v for pair in reversed(pw) for v in pair)
    return torch.nn.functional.pad(x, flat)

kernel_name = 'recurrent_scan__mha_block__glu_gated_reglu__prompt'

def setup_inputs():

    _w = (lambda a: (lambda t: t.to(torch.bfloat16) if t.is_floating_point() else t)(torch.as_tensor(a)))
    def _A_setup():
        B, S, D, H = 1, 2048, 512, 32
        return {
            "x": _w((lambda *s: torch.randn(*s, dtype=torch.bfloat16) * 0.05)(B, S, D)),
            "wqkv": _w((lambda *s: torch.randn(*s, dtype=torch.bfloat16) * 0.2)(D, 3 * D)),
            "wo": _w((lambda *s: torch.randn(*s, dtype=torch.bfloat16) * 0.2)(D, D)),
        }
    _A_in = _A_setup()

    def _B_setup():
        B, S, D, F = 1, 2048, 512, 1792
        return {
            "x": _w((lambda *s: torch.randn(*s, dtype=torch.bfloat16) * 0.05)(B, S, D)),
            "W_gate": _w((lambda *s: torch.randn(*s, dtype=torch.bfloat16) * 0.1)(D, F) * (2.0 / D) ** 0.5),
            "W_up": _w((lambda *s: torch.randn(*s, dtype=torch.bfloat16) * 0.1)(D, F) * (2.0 / D) ** 0.5),
            "W_down": _w((lambda *s: torch.randn(*s, dtype=torch.bfloat16) * 0.1)(F, D) * (1.0 / F) ** 0.5),
        }
    _B_in = _B_setup()

    return {
        "A_x": _A_in["x"],
        "A_wqkv": _A_in["wqkv"],
        "A_wo": _A_in["wo"],
        "B_x": _B_in["x"],
        "B_W_gate": _B_in["W_gate"],
        "B_W_up": _B_in["W_up"],
        "B_W_down": _B_in["W_down"],
    }

def reference(A_x, A_wqkv, A_wo, B_x, B_W_gate, B_W_up, B_W_down):
    def _A_ref(x, wqkv, wo):
        B, S, D = x.shape
        H = 32
        Dh = D // H
        qkv = (lambda x, *d: x.permute(*d))((x @ wqkv).reshape(B, S, 3, H, Dh), 2, 0, 3, 1, 4)
        q, k, v = qkv[0], qkv[1], qkv[2]
        scores = torch.einsum("bhqd,bhkd->bhqk", q, k) * (Dh ** -0.5)
        p = _softmax(scores, axis=-1)
        o = torch.einsum("bhqk,bhkd->bhqd", p, v)
        return (lambda x, *d: x.permute(*d))(o, 0, 2, 1, 3).reshape(B, S, D) @ wo

    def _B_ref(x, W_gate, W_up, W_down):
        gate = torch.einsum("bsd,df->bsf", x, W_gate)
        up = torch.einsum("bsd,df->bsf", x, W_up)
        gate = gate * (lambda x, dt: x.to(dt))(gate > 0, gate.dtype)
        h = gate * up
        return torch.einsum("bsf,fd->bsd", h, W_down)

    x = A_x
    xn = _layernorm(x, axis=-1)
    s = _A_ref(xn, A_wqkv, A_wo)
    g = _silu(_B_ref(xn, B_W_gate, B_W_up, B_W_down))
    return x + s * g
```

```python
import re
class Asm:
    def __init__(self):
        self.lines=[]
    def __call__(self, s):
        for l in s.split("\n"):
            l=l.strip()
            if l: self.lines.append("    "+l)
    def label(self,l): self.lines.append(l+":")
    def raw(self,l): self.lines.append(l)
    def comment(self,c): self.lines.append("    ; "+c)
    def text(self): return "\n".join(self.lines)+"\n"

def vr(b,n=1): return f"v{b}" if n==1 else f"v[{b}:{b+n-1}]"
def ar(b,n=1): return f"a{b}" if n==1 else f"a[{b}:{b+n-1}]"
def sr(b,n=1): return f"s{b}" if n==1 else f"s[{b}:{b+n-1}]"
def mfma32(d,a,b,c):
    cc = c if isinstance(c,str) else vr(c,16)
    return f"v_mfma_f32_32x32x16_bf16 {vr(d,16)}, {vr(a,4)}, {vr(b,4)}, {cc}"

def srd(A,d,ptr,size):
    A(f"s_mov_b32 s{d}, s{ptr}")
    A(f"s_and_b32 s{d+1}, s{ptr+1}, 0xffff")
    A(f"s_mov_b32 s{d+2}, {size:#x}")
    A(f"s_mov_b32 s{d+3}, 0x20000")

def kdesc(name,nv,ns,na=0):
    acc=(nv+3)//4*4
    tot=acc+na if na else nv
    return f""".p2align 6
.amdhsa_kernel {name}
  .amdhsa_next_free_vgpr {tot}
  .amdhsa_next_free_sgpr {ns}
  .amdhsa_accum_offset {acc}
  .amdhsa_group_segment_fixed_size 0
  .amdhsa_kernarg_size 80
  .amdhsa_user_sgpr_count 2
  .amdhsa_user_sgpr_kernarg_segment_ptr 1
  .amdhsa_system_sgpr_workgroup_id_x 1
.end_amdhsa_kernel
"""

TRANS=("v_exp_f32","v_log_f32","v_rcp_f32","v_rsq_f32","v_sqrt_f32","v_sin_f32","v_cos_f32")
def regs_of(op):
    op=op.strip()
    op=re.sub(r"^-|^\||\|$","",op)
    m=re.fullmatch(r"(?:abs\()?([vas])(\d+)\)?",op)
    if m: return {(m.group(1),int(m.group(2)))}
    m=re.fullmatch(r"([vas])\[(\d+):(\d+)\]",op)
    if m: return {(m.group(1),i) for i in range(int(m.group(2)),int(m.group(3))+1)}
    if op=="vcc": return {("s",106),("s",107)}
    if op=="exec_hi": return {("s",127)}
    if op=="exec": return {("s",126),("s",127)}
    if op=="m0": return {("s",124)}
    return set()
def parse(line):
    line=line.split(";")[0].strip()
    if not line or line.endswith(":") or line.startswith("."): return None
    p=line.split(None,1)
    mn=p[0]; rest=p[1] if len(p)>1 else ""
    ops=[o.strip() for o in re.split(r",(?![^\[]*\])",rest)]
    if ops:
        last=ops[-1].split()
        if last:
            ops[-1]=last[0]; mods=last[1:]
        else: mods=[]
    else: mods=[]
    return mn,ops,mods
def classify(mn,ops,mods):
    R=lambda i: regs_of(ops[i]) if i<len(ops) else set()
    allr=lambda a: set().union(*[R(i) for i in range(a,len(ops))]) if len(ops)>a else set()
    d=dict(kind="other",w=set(),r=set(),mn=mn)
    if mn.startswith("v_smfmac"):
        d.update(kind="mfma",w=R(0),r=allr(0),A=R(1)|R(2)|R(3),C=R(0),passes=8 if "32x32" in mn else 4)
    elif mn.startswith("v_mfma"):
        d.update(kind="mfma",w=R(0),r=allr(1),A=R(1)|R(2),C=R(3),passes=8 if "32x32x16" in mn else (4 if "16x16x32" in mn else 2))
    elif mn.startswith("v_cmp"):
        d.update(kind="valu",w=R(0),r=allr(1))
    elif mn.startswith("v_readfirstlane") or mn.startswith("v_readlane"):
        d.update(kind="valu",w=R(0),r=allr(1),rl=True)
    elif mn.startswith("v_permlane"):
        d.update(kind="valu",w=R(0)|R(1),r=R(0)|R(1),perm=True)
    elif mn.startswith("v_"):
        w=R(0); r=allr(1)
        if mn.startswith(("v_fmac","v_dot2c","v_pk_fmac")): r|=w
        if mn.startswith(("v_add_co","v_sub_co","v_addc_co","v_subb_co")): w|=R(1); r=allr(2)
        if mn.startswith("v_cndmask") and len(ops)==3: r|=regs_of("vcc")
        d.update(kind="valu",w=w,r=r,trans=mn.replace("_e32","").replace("_e64","") in TRANS,dot=mn.startswith("v_dot"),dpp=any(m.startswith(("row_","quad_perm","wave_")) for m in mods))
    elif mn.startswith(("buffer_load","global_load")):
        if "lds" in mods or "_lds_" in mn: d.update(kind="vmem",r=allr(0)|regs_of("m0"),lds=True)
        else: d.update(kind="vmem",w=R(0),r=allr(1))
    elif mn.startswith(("buffer_store","global_store","buffer_atomic","global_atomic")):
        d.update(kind="vmem",r=allr(0),store=True,wide=("x3" in mn or "x4" in mn),data=R(0) if mn.startswith("buffer") else R(1))
    elif mn.startswith("ds_read") or mn.startswith("ds_bpermute") or mn.startswith("ds_swizzle"):
        d.update(kind="ds",w=R(0),r=allr(1))
    elif mn.startswith("ds_"):
        d.update(kind="ds",r=allr(0))
    elif mn.startswith("s_nop"):
        d.update(kind="nop",n=int(ops[0],0)+1)
    elif mn.startswith("s_"):
        if mn.startswith(("s_cmp","s_waitcnt","s_barrier","s_branch","s_cbranch","s_endpgm","s_sleep","s_setprio")): d.update(kind="salu",r=allr(0))
        else: d.update(kind="salu",w=R(0),r=allr(1))
    return d
def check_seq(ins, lines):
    errs=[]
    n=len(ins)
    for i,c in enumerate(ins):
        dist=0
        j=i-1
        while j>=0 and dist<24:
            p=ins[j]
            need=0; why=""
            vw={x for x in p["w"] if x[0] in "va"}; sw={x for x in p["w"] if x[0]=="s"}
            if p["kind"]=="valu":
                if c["kind"]=="mfma" and vw&c["r"]: need,why=2,"valu->mfma"
                if c["kind"]=="valu":
                    if p.get("trans") and not c.get("trans") and vw&c["r"]: need,why=max(need,1),"trans->valu"
                    if c.get("rl") and vw&c["r"]: need,why=max(need,1),"valu->readlane"
                    if c.get("perm") and vw&c["r"]: need,why=max(need,2),"valu->permlane"
                    if c.get("dpp") and vw&c["r"]: need,why=max(need,2),"valu->dpp"
                    if sw&c["r"]: need,why=max(need,2),"valu sgpr->valu"
                if p.get("dot") and vw&(c["r"]|c["w"]) and not (c.get("dot") and c["mn"]==p["mn"]): need,why=max(need,3),"dot->other"
                if c["kind"]=="vmem" and sw&c["r"]: need,why=max(need,5),"valu sgpr->vmem"
                if c["kind"]=="mfma" and sw&regs_of("exec"): need,why=max(need,4),"valu exec->mfma"
            if p["kind"]=="mfma":
                ps=p["passes"]; t={2:0,4:1,8:2,16:3}[ps]
                if c["kind"]=="mfma":
                    if c["C"]==p["w"] and c["passes"]==ps: need=[2,0,0,0][t]
                    elif c["C"]&p["w"]: need,why=[4,6,10,18][t],"mfma->mfma C overlap"
                    if c["A"]&p["w"]: need,why=max(need,[5,8,12,20][t]),"mfma->mfma AB"
                    if c["w"]&p["w"] and c["C"]!=p["w"]: need,why=max(need,[5,8,12,20][t]),"mfma WAW mfma(conservative)"
                elif c["kind"] in("valu","vmem","ds"):
                    if (c["r"]|c["w"])&p["w"]: need,why=[5,8,12,20][t],"mfma D->valu/mem"
                    if c["kind"]=="valu" and c["w"]&p["C"]: need,why=max(need,[1,3,7,15][t]),"mfma C WAR"
            if p["kind"]=="vmem" and p.get("wide") and c["w"]&p["data"]: need,why=max(need,2),"store data WAR"
            if p["kind"]=="salu" and ("s",124) in sw and c.get("lds"): need,why=max(need,1),"m0->lds dma"
            if need>dist: errs.append(f"HAZARD {why}: need {need} have {dist}: [{lines[j].strip()}] -> [{lines[i].strip()}]")
            dist+= p.get("n",1)
            j-=1
    return errs
def hazard_check(text):
    L=text.split("\n")
    ins=[];lines=[];labels={}
    for l in L:
        s=l.split(";")[0].strip()
        if s.endswith(":") and not s.startswith("."): labels[s[:-1]]=len(ins); continue
        p=parse(l)
        if p is None: continue
        ins.append(classify(*p)); lines.append(l)
    errs=check_seq(ins,lines)
    for i,l in enumerate(lines):
        p=parse(l)
        if p[0].startswith(("s_cbranch","s_branch")) and p[1][0] in labels:
            t=labels[p[1][0]]
            a=max(0,i-30)
            seq=ins[a:i+1]+ins[t:t+30]; sl=lines[a:i+1]+lines[t:t+30]
            for e in check_seq(seq,sl):
                if e not in errs: errs.append(e+"  (via branch "+p[1][0]+")")
    return errs
```

```python
import sys, struct
from asmlib import *

NAME="recurrent_scan__mha_block__glu_gated_reglu__prompt"
WS_Q=0; WS_KV=2<<20; WS_H=6<<20; WS_O=13<<20; WS_G=15<<20; WS_SIZE=32<<20
def f2u(f): return struct.unpack("<I",struct.pack("<f",f))[0]
LOG2E=1.4426950408889634

X_OFF=0; QKV_OFF=8192; GATE_OFF=15360; UP_OFF=22656; STAGE=29824; NSLOT=5
K1_LDS=STAGE*NSLOT
def k1(A):
    A.label("k1_kernel")
    A("s_cmp_ge_u32 s2, 256")
    A("s_cbranch_scc1 k1_end")
    A("s_load_dwordx4 s[4:7], s[0:1], 0")
    A("s_load_dwordx4 s[8:11], s[0:1], 32")
    A("s_load_dwordx2 s[12:13], s[0:1], 72")
    A("v_lshrrev_b32 v1, 6, v0")
    A("v_and_b32 v0, 63, v0")
    A("v_readfirstlane_b32 s36, v1")
    A("s_and_b32 s3, s2, 7")
    A("s_lshr_b32 s14, s2, 3")
    A("s_and_b32 s39, s3, 1\ns_lshl_b32 s39, s39, 3\ns_and_b32 s15, s14, 7\ns_add_u32 s39, s39, s15")
    A("s_lshr_b32 s40, s3, 1\ns_lshl_b32 s40, s40, 2\ns_lshr_b32 s15, s14, 3\ns_add_u32 s40, s40, s15")
    A("s_and_b32 s37, s36, 3\ns_lshr_b32 s38, s36, 2")
    A("v_lshrrev_b32 v2, 2, v0")
    A("s_lshl_b32 s15, s39, 7\ns_lshl_b32 s14, s36, 4\ns_add_u32 s15, s15, s14")
    A("v_add_u32 v2, s15, v2\nv_lshlrev_b32 v2, 10, v2")
    A("v_lshrrev_b32 v3, 4, v0\nv_xor_b32 v3, v3, v0\nv_and_b32 v3, 3, v3\nv_lshl_add_u32 v2, v3, 4, v2")
    A("v_bfe_u32 v3, v0, 2, 2")
    A("s_lshl_b32 s14, s36, 2")
    A("v_add_u32 v3, s14, v3\nv_mul_u32_u24 v3, 3072, v3")
    A("v_lshrrev_b32 v4, 4, v0\nv_lshl_add_u32 v3, v4, 10, v3")
    A("v_and_b32 v4, 3, v0\nv_lshl_add_u32 v3, v4, 4, v3")
    A("s_lshl_b32 s15, s40, 6\nv_add_u32 v3, s15, v3")
    A("v_mul_u32_u24 v5, 4682, v0\nv_lshrrev_b32 v5, 16, v5")
    A("v_mul_u32_u24 v6, 14, v5\nv_sub_u32 v6, v0, v6")
    A("v_add_u32 v5, s14, v5\nv_mul_u32_u24 v4, 3584, v5\nv_lshl_add_u32 v4, v6, 4, v4")
    A("s_mul_i32 s15, s40, 224\nv_add_u32 v4, s15, v4")
    A("v_and_b32 v7, 31, v0\nv_lshrrev_b32 v8, 5, v0")
    A("v_bfe_u32 v9, v0, 2, 2\nv_xor_b32 v9, v9, v8\nv_lshlrev_b32 v9, 4, v9")
    A("s_lshl_b32 s15, s37, 11")
    A("v_lshl_add_u32 v5, v7, 6, v9\nv_add_u32 v5, s15, v5\nv_xor_b32 v6, 32, v5")
    A("v_mul_u32_u24 v12, 1792, v8\nv_and_b32 v13, 3, v0\nv_lshl_add_u32 v12, v13, 3, v12")
    A("v_bfe_u32 v13, v0, 2, 2\nv_bfe_u32 v14, v0, 4, 1")
    A("v_lshl_add_u32 v15, v13, 6, v12\nv_lshl_add_u32 v15, v14, 5, v15")
    A(f"v_add_u32 v15, {QKV_OFF}, v15")
    A(f"v_mul_u32_u24 v16, 224, v13\nv_add_u32 v16, v16, v12\nv_mul_u32_u24 v17, {UP_OFF-GATE_OFF}, v14\nv_add_u32 v16, v16, v17")
    A(f"v_add_u32 v16, {GATE_OFF}, v16")
    A("s_cmp_eq_u32 s38, 0")
    A("s_cbranch_scc0 k1_ch1addr")
    A("v_mov_b32 v7, v15\nv_add_u32 v8, 256, v15\nv_add_u32 v9, 512, v15\nv_mov_b32 v10, v16\nv_add_u32 v11, 32, v16")
    A("s_branch k1_addrdone")
    A.label("k1_ch1addr")
    for j in range(5): A(f"v_add_u32 v{7+j}, {32*(2+j)}, v16")
    A.label("k1_addrdone")
    A("s_waitcnt lgkmcnt(0)")
    srd(A,16,4,2048*1024); srd(A,20,6,512*3072); srd(A,24,8,512*3584); srd(A,28,10,512*3584); srd(A,32,12,WS_SIZE)
    A("s_mov_b32 s50, -1\ns_mov_b32 s51, 0xffff\ns_mov_b32 s52, -1\ns_mov_b32 s53, 0xffffff")
    A("s_mov_b32 s41, 0\ns_mov_b32 s42, 0\ns_mov_b32 s43, 0")
    A("s_lshl_b32 s45, s36, 10")
    A(f"s_mul_i32 s46, s36, 896\ns_add_u32 s46, s46, {QKV_OFF}")
    A("s_mov_b32 s44, 0")
    def dma():
        return [
        "s_mov_b32 m0, s45", "s_add_u32 s49, s46, %d"%(GATE_OFF-QKV_OFF),
        "buffer_load_dwordx4 v2, s[16:19], s41 offen lds",
        "s_mov_b32 m0, s46", "s_mov_b64 exec, s[50:51]",
        "buffer_load_dwordx4 v3, s[20:23], s42 offen lds",
        "s_mov_b32 m0, s49", "s_mov_b64 exec, s[52:53]",
        "buffer_load_dwordx4 v4, s[24:27], s43 offen lds",
        "s_add_u32 m0, s49, %d"%(UP_OFF-GATE_OFF), "s_add_u32 s41, s41, 64",
        "buffer_load_dwordx4 v4, s[28:31], s43 offen lds",
        "s_mov_b64 exec, -1",
        "s_add_u32 s42, s42, %d"%(32*3072), "s_add_u32 s43, s43, %d"%(32*3584),
        "s_add_u32 s44, s44, 1", "s_cmp_eq_u32 s44, %d"%NSLOT,
        "s_cselect_b32 s49, %d, %d"%((-(NSLOT-1)*STAGE)&0xffffffff,STAGE) if False else "s_cselect_b32 s49, s54, s55",
        "s_cselect_b32 s44, 0, s44",
        "s_add_u32 s45, s45, s49", "s_add_u32 s46, s46, s49",
        ]
    A(f"s_mov_b32 s54, {(-(NSLOT-1)*STAGE)&0xffffffff:#x}\ns_mov_b32 s55, {STAGE}")
    for s in range(4):
        for l in dma(): A(l)
    ACC=80
    for i in range(80): A(f"v_mov_b32 v{ACC+i}, 0")
    A("v_mov_b32 v12, 0x3f803f80")
    for i in range(13,20): A(f"v_mov_b32 v{i}, 0")
    XA,WA,XB,WB=20,24,44,48
    def reads(X,W,ks):
        r=[f"ds_read_b128 {vr(X,4)}, v{5+ks}"]
        for j in range(5):
            for i in range(2):
                r.append(f"ds_read_b64_tr_b16 {vr(W+4*j+2*i,2)}, v{7+j} offset:{(ks*4+i)*896}")
        return r
    def stats(X,W):
        r=[]
        for d in range(4):
            r.append(f"v_dot2c_f32_bf16 v13, v{X+d}, v12")
            r.append(f"v_dot2c_f32_bf16 v14, v{X+d}, v{X+d}")
            for j in range(5): r.append(f"v_dot2c_f32_bf16 v{15+j}, v{W+4*j+d}, v12")
        return r
    A("s_waitcnt vmcnt(12)\ns_barrier")
    for l in reads(XA,WA,0): A(l)
    A("s_mov_b32 s47, 0\ns_mov_b32 s48, 0")
    A.label("k1_loop")
    A("s_waitcnt vmcnt(8)\ns_barrier")
    A("s_cmp_lt_u32 s47, 12")
    A(f"s_cselect_b32 s18, s18, 0\ns_cselect_b32 s22, s22, 0\ns_cselect_b32 s26, s26, 0\ns_cselect_b32 s30, s30, 0")
    for l in dma(): A(l)
    def kstep(X,W,rd):
        A("s_waitcnt lgkmcnt(0)")
        for j in range(5):
            A(mfma32(ACC+16*j,W+4*j,X,ACC+16*j))
            for l in rd[3*j:3*j+3]: A(l)
        for l in stats(X,W): A(l)
    kstep(XA,WA,reads(XB,WB,1))
    A(f"s_add_u32 s48, s48, 1\ns_cmp_eq_u32 s48, {NSLOT}\ns_cselect_b32 s49, s54, s55\ns_cselect_b32 s48, 0, s48")
    for i in range(5,12): A(f"v_add_u32 v{i}, s49, v{i}")
    kstep(XB,WB,reads(XA,WA,0))
    A("s_add_u32 s47, s47, 1\ns_cmp_lt_u32 s47, 16\ns_cbranch_scc1 k1_loop")
    A("s_waitcnt vmcnt(0) lgkmcnt(0)\ns_barrier")
    A("v_mov_b32 v20, v13\nv_mov_b32 v21, v14\ns_nop 1")
    A("v_permlane32_swap_b32 v13, v20\nv_permlane32_swap_b32 v14, v21")
    A("v_add_f32 v13, v13, v20\nv_add_f32 v14, v14, v21")
    A(f"v_mul_f32 v13, {f2u(1/512):#x}, v13\nv_mul_f32 v14, {f2u(1/512):#x}, v14")
    A("v_fma_f32 v14, -v13, v13, v14\nv_max_f32 v14, 0, v14")
    A("v_cvt_pk_bf16_f32 v14, v14, v14\nv_and_b32 v14, 0xffff0000, v14")
    A(f"v_add_f32 v14, {f2u(1e-5):#x}, v14")
    A("v_cvt_pk_bf16_f32 v14, v14, v14\nv_and_b32 v14, 0xffff0000, v14")
    A("v_sqrt_f32 v14, v14\ns_nop 0")
    A("v_cvt_pk_bf16_f32 v14, v14, v14\nv_and_b32 v14, 0xffff0000, v14")
    A("v_rcp_f32 v14, v14")
    A("v_cvt_pk_bf16_f32 v20, -v13, -v13\nv_mov_b32 v21, v20\nv_mov_b32 v22, 0\nv_mov_b32 v23, 0")
    for j in range(5):
        c=15+j; W=24+4*j
        A(f"v_and_b32 v44, 0xffff0000, v{c}\nv_sub_f32 v45, v{c}, v44\nv_and_b32 v46, 0xffff0000, v45\nv_sub_f32 v45, v45, v46")
        A(f"v_lshrrev_b32 v44, 16, v44\nv_or_b32 v{W}, v44, v46\nv_cvt_pk_bf16_f32 v{W+1}, v45, 0\nv_mov_b32 v{W+2}, 0\nv_mov_b32 v{W+3}, 0")
    A("s_nop 1")
    for j in range(5): A(mfma32(ACC+16*j,24+4*j,20,ACC+16*j))
    A("s_lshl_b32 s56, s39, 2\ns_add_u32 s56, s56, s37")
    A("v_lshlrev_b32 v2, 4, v0")
    A("v_mul_f32 v15, v14, v14")
    A(f"v_mul_f32 v16, {f2u(0.25*LOG2E):#x}, v14")
    A(f"s_mul_i32 s57, s56, 112\ns_mul_i32 s58, s40, 7\ns_add_u32 s57, s57, s58\ns_lshl_b32 s57, s57, 10\ns_add_u32 s57, s57, {WS_H}")
    def fblock(acc,soff,off,T):
        for r in range(8):
            A(f"v_max_f32 v{acc+r}, 0, v{acc+r}")
            A(f"v_mul_f32 v{acc+8+r}, v15, v{acc+8+r}")
        for r in range(8): A(f"v_mul_f32 v{acc+r}, v{acc+r}, v{acc+8+r}")
        for d in range(4): A(f"v_cvt_pk_bf16_f32 v{T+d}, v{acc+2*d}, v{acc+2*d+1}")
        A(f"buffer_store_dwordx4 {vr(T,4)}, v2, s[32:35], {soff} offen offset:{off}")
    A("s_nop 7")
    A("s_cmp_eq_u32 s38, 0\ns_cbranch_scc0 k1_ep1")
    A(f"s_lshl_b32 s58, s40, 7\ns_add_u32 s58, s58, s56\ns_lshl_b32 s59, s58, 11\ns_lshl_b32 s58, s58, 10")
    A(f"s_add_u32 s59, s59, {WS_KV}\ns_add_u32 s60, s58, {64*1024}\ns_add_u32 s61, s59, {64*2048}")
    for r in range(16): A(f"v_mul_f32 v{ACC+r}, v16, v{ACC+r}")
    for d in range(8): A(f"v_cvt_pk_bf16_f32 v{20+d}, v{ACC+2*d}, v{ACC+2*d+1}")
    A("buffer_store_dwordx4 v[20:23], v2, s[32:35], s58 offen")
    A("buffer_store_dwordx4 v[24:27], v2, s[32:35], s60 offen")
    for r in range(16): A(f"v_mul_f32 v{ACC+16+r}, v14, v{ACC+16+r}")
    for d in range(8): A(f"v_cvt_pk_bf16_f32 v{28+d}, v{ACC+16+2*d}, v{ACC+16+2*d+1}")
    A("buffer_store_dwordx4 v[28:31], v2, s[32:35], s59 offen")
    A("buffer_store_dwordx4 v[32:35], v2, s[32:35], s61 offen")
    for r in range(16): A(f"v_mul_f32 v{ACC+32+r}, v14, v{ACC+32+r}")
    for d in range(8): A(f"v_cvt_pk_bf16_f32 v{36+d}, v{ACC+32+2*d}, v{ACC+32+2*d+1}")
    A("v_and_b32 v3, 31, v0\nv_lshrrev_b32 v4, 5, v0\nv_lshlrev_b32 v3, 6, v3\nv_lshl_add_u32 v3, v4, 3, v3")
    A("s_lshl_b32 s62, s37, 11\nv_add_u32 v3, s62, v3")
    for q in range(4): A(f"ds_write_b64 v3, {vr(36+2*q,2)} offset:{16*q}")
    A("v_bfe_u32 v5, v0, 2, 2\nv_lshl_add_u32 v5, v4, 2, v5\nv_lshlrev_b32 v5, 6, v5")
    A("v_bfe_u32 v6, v0, 4, 1\nv_lshl_add_u32 v5, v6, 5, v5\nv_and_b32 v7, 3, v0\nv_lshl_add_u32 v5, v7, 3, v5\nv_add_u32 v5, s62, v5")
    A("s_waitcnt lgkmcnt(0)")
    for i in range(2):
        for ii in range(2): A(f"ds_read_b64_tr_b16 {vr(44+4*i+2*ii,2)}, v5 offset:{(16*i+8*ii)*64}")
    A("v_and_b32 v7, 15, v0\nv_lshlrev_b32 v7, 4, v7\nv_lshl_add_u32 v7, v4, 8, v7\nv_lshl_add_u32 v7, v6, 17, v7")
    A("s_waitcnt lgkmcnt(0)")
    A("buffer_store_dwordx4 v[44:47], v7, s[32:35], s59 offen offset:1024")
    A("buffer_store_dwordx4 v[48:51], v7, s[32:35], s59 offen offset:1536")
    fblock(ACC+48,"s57",0,52); fblock(ACC+64,"s57",1024,56)
    A("s_endpgm")
    A.label("k1_ep1")
    A("s_add_u32 s57, s57, 2048\ns_add_u32 s58, s57, 4096")
    for j in range(4): fblock(ACC+16*j,"s57",1024*j,20+4*j)
    fblock(ACC+64,"s58",0,36)
    A.label("k1_end")
    A("s_endpgm")

K2_LDS=131072+8192
MOFF=90.0
def k2(A):
    A.label("k2_kernel")
    A("s_cmp_ge_u32 s2, 256\ns_cbranch_scc1 k2_end")
    A("s_load_dwordx2 s[12:13], s[0:1], 72")
    A("v_lshrrev_b32 v1, 6, v0\nv_and_b32 v0, 63, v0\nv_readfirstlane_b32 s36, v1")
    A("s_and_b32 s3, s2, 7\ns_lshl_b32 s3, s3, 2\ns_bfe_u32 s14, s2, 0x20003\ns_add_u32 s37, s3, s14")
    A("s_lshr_b32 s14, s2, 5\ns_lshl_b32 s14, s14, 3\ns_add_u32 s38, s14, s36")
    A("v_lshlrev_b32 v2, 4, v0")
    Q,K,VA,VB,P,C,SA,SB,O=4,8,12,16,20,32,48,64,80
    A("v_and_b32 v3, 15, v0\nv_lshlrev_b32 v3, 4, v3\nv_lshrrev_b32 v1, 5, v0\nv_lshl_add_u32 v3, v1, 8, v3\nv_add_u32 v3, 1024, v3")
    A("s_mov_b32 s50, 0xffff\ns_mov_b32 s51, 0xffff")
    A("s_waitcnt lgkmcnt(0)")
    srd(A,32,12,WS_SIZE)
    A(f"s_lshl_b32 s14, s37, 6\ns_add_u32 s14, s14, s38\ns_lshl_b32 s14, s14, 10")
    A(f"buffer_load_dwordx4 {vr(Q,4)}, v2, s[32:35], s14 offen")
    A(f"s_lshl_b32 s15, s37, 17\ns_add_u32 s15, s15, {WS_KV}\ns_lshl_b32 s14, s36, 10\ns_add_u32 s15, s15, s14")
    A("s_mov_b32 m0, s14")
    for i in range(16):
        A("s_nop 0")
        A("buffer_load_dwordx4 v2, s[32:35], s15 offen lds")
        if i<15: A("s_add_u32 s15, s15, 8192\ns_add_u32 m0, m0, 8192")
    for i in range(4): A(f"v_mov_b32 v{VA+i}, 0x3f803f80\nv_mov_b32 v{VB+i}, 0x3f803f80")
    A("s_mov_b32 s40, 0")
    A("s_waitcnt vmcnt(13)\ns_barrier")
    A(f"ds_read_b128 {vr(K,4)}, v2")
    A("s_waitcnt lgkmcnt(0)")
    A(mfma32(SA,K,Q,"0"))
    A("s_nop 15")
    def max16(dst,S,first):
        if first:
            A(f"v_max3_f32 v{dst}, v{S}, v{S+1}, v{S+2}")
            A(f"v_max_f32 v{dst}, v{dst}, v{S+3}")
            st=4
        else: st=0
        for r in range(st,16,2): A(f"v_max3_f32 v{dst}, v{dst}, v{S+r}, v{S+r+1}")
    max16(28,SA,True)
    A(f"v_add_f32 v28, {f2u(MOFF):#x}, v28")
    A.label("k2_setm")
    A("v_mov_b32 v29, v28\ns_nop 1\nv_permlane32_swap_b32 v28, v29\nv_max_f32 v28, v28, v29")
    for r in range(16): A(f"v_sub_f32 v{C+r}, 0, v28")
    for r in range(16): A(f"v_mov_b32 v{O+r}, 0")
    for r in range(4): A(f"v_mov_b32 v{P+4+r}, 0")
    A("v_mov_b32 v30, v2\nv_mov_b32 v31, v3")
    A(f"ds_read_b128 {vr(K,4)}, v30")
    A(f"s_mov_b64 exec, s[50:51]\nds_read_b128 {vr(VA,4)}, v31\ns_mov_b64 exec, -1")
    A("s_waitcnt lgkmcnt(1)")
    A(mfma32(SA,K,Q,C))
    A(f"ds_read_b128 {vr(K,4)}, v30 offset:2048")
    A("s_mov_b32 s41, 0")
    A("s_nop 7")
    A.label("k2_loop")
    A("s_cmp_eq_u32 s41, 2\ns_cbranch_scc0 k2_nobar\ns_cmp_eq_u32 s40, 0\ns_cbranch_scc0 k2_nobar")
    A("s_waitcnt vmcnt(0)\ns_barrier")
    A.label("k2_nobar")
    for u in range(4):
        Sc,Sn=(SA,SB) if u%2==0 else (SB,SA)
        e=lambda r:A(f"v_exp_f32 v{Sc+r}, v{Sc+r}")
        c=lambda d:A(f"v_cvt_pk_bf16_f32 v{P+d}, v{Sc+2*d}, v{Sc+2*d+1}")
        A("s_waitcnt lgkmcnt(0)")
        A(mfma32(Sn,K,Q,C))
        A(f"ds_read_b128 {vr(K,4)}, v30 offset:{(u+2)*2048}")
        for r in range(6): e(r)
        A(mfma32(O,VB,P+4,O))
        A(f"s_mov_b64 exec, s[50:51]\nds_read_b128 {vr(VB,4)}, v31 offset:{u*2048+512}\ns_mov_b64 exec, -1")
        e(6);e(7)
        for d in range(4): c(d)
        e(8);e(9)
        A(mfma32(O,VA,P,O))
        A(f"s_mov_b64 exec, s[50:51]\nds_read_b128 {vr(VA,4)}, v31 offset:{(u+1)*2048}\ns_mov_b64 exec, -1")
        for r in range(10,16): e(r)
        for d in range(4,8): c(d)
    A("v_add_u32 v30, 8192, v30\nv_add_u32 v31, 8192, v31")
    A("s_add_u32 s41, s41, 1\ns_cmp_lt_u32 s41, 16\ns_cbranch_scc1 k2_loop")
    A("s_waitcnt lgkmcnt(0)")
    A(mfma32(O,VB,P+4,O))
    A("s_nop 15")
    A(f"v_max3_f32 v28, |v{O}|, |v{O+1}|, |v{O+2}|\nv_max3_f32 v28, v28, |v{O+3}|, |v{O+4}|\nv_max3_f32 v28, v28, |v{O+5}|, |v{O+6}|")
    A(f"v_max3_f32 v28, v28, |v{O+7}|, v{O+8}")
    A(f"v_add_f32 v29, v{O}, v{O+1}\nv_add_f32 v29, v29, v{O+2}\nv_add_f32 v29, v29, v{O+3}\nv_add_f32 v29, v29, v{O+4}\nv_add_f32 v29, v29, v{O+5}\nv_add_f32 v29, v29, v{O+6}\nv_add_f32 v29, v29, v{O+7}\nv_add_f32 v29, v29, v{O+8}")
    A("v_mul_f32 v29, 0, v29\nv_add_f32 v28, v28, v29")
    A(f"v_mov_b32 v29, {f2u(2.0**120):#x}")
    A("v_cmp_nlt_f32 vcc, v28, v29")
    A("s_cmp_eq_u32 s40, 0\ns_cbranch_scc0 k2_fin")
    A("s_nop 4\ns_cbranch_vccnz k2_fallback")
    A.label("k2_fin")
    A(f"v_rcp_f32 v28, v{O+8}\ns_nop 0")
    for r in range(8): A(f"v_mul_f32 v{O+r}, v28, v{O+r}")
    for d in range(4): A(f"v_cvt_pk_bf16_f32 v{P+d}, v{O+2*d}, v{O+2*d+1}")
    A(f"s_lshl_b32 s14, s38, 5\ns_add_u32 s14, s14, s37\ns_lshl_b32 s14, s14, 10\ns_add_u32 s14, s14, {WS_O}")
    A(f"buffer_store_dwordx4 {vr(P,4)}, v2, s[32:35], s14 offen")
    A.label("k2_end")
    A("s_endpgm")
    A.label("k2_fallback")
    A("s_mov_b32 s40, 1\ns_mov_b32 s41, 0\nv_mov_b32 v30, v2\nv_mov_b32 v28, 0xff800000")
    A.label("k2_fb_loop")
    A(f"ds_read_b128 {vr(K,4)}, v30\nv_add_u32 v30, 2048, v30\ns_waitcnt lgkmcnt(0)")
    A(mfma32(SA,K,Q,"0"))
    A("s_nop 15")
    max16(28,SA,False)
    A("s_add_u32 s41, s41, 1\ns_cmp_lt_u32 s41, 64\ns_cbranch_scc1 k2_fb_loop")
    A("s_branch k2_setm")

K3_LDS=131072
def k3(A):
    A.label("k3_kernel")
    A("s_cmp_ge_u32 s2, 256\ns_cbranch_scc1 k3_end")
    A("s_load_dwordx2 s[4:5], s[0:1], 0")
    A("s_load_dwordx2 s[6:7], s[0:1], 16")
    A("s_load_dwordx4 s[8:11], s[0:1], 48")
    A("s_load_dwordx2 s[12:13], s[0:1], 72")
    A("v_lshrrev_b32 v1, 6, v0\nv_and_b32 v0, 63, v0\nv_readfirstlane_b32 s36, v1")
    A("s_and_b32 s3, s2, 7\ns_lshl_b32 s3, s3, 2\ns_bfe_u32 s14, s2, 0x20003\ns_add_u32 s37, s3, s14")
    A("s_lshr_b32 s38, s2, 5")
    A("v_lshlrev_b32 v2, 4, v0")
    A("v_lshrrev_b32 v4, 3, v0\nv_lshlrev_b32 v3, 10, v4\nv_bfe_u32 v4, v0, 4, 1\nv_lshlrev_b32 v4, 2, v4\nv_xor_b32 v4, v4, v0\nv_and_b32 v4, 7, v4\nv_lshl_add_u32 v3, v4, 4, v3")
    A("s_lshl_b32 s14, s38, 7\nv_add_u32 v3, s14, v3")
    A("v_lshrrev_b32 v6, 5, v0\nv_bfe_u32 v7, v0, 2, 2\nv_lshl_add_u32 v4, v6, 2, v7\nv_lshlrev_b32 v4, 7, v4")
    A("v_bfe_u32 v7, v0, 3, 1\nv_lshl_add_u32 v4, v7, 6, v4\nv_bfe_u32 v7, v0, 4, 1\nv_lshl_add_u32 v4, v7, 5, v4\nv_and_b32 v7, 3, v0\nv_lshl_add_u32 v4, v7, 3, v4")
    A("s_lshl_b32 s39, s36, 14\nv_add_u32 v4, s39, v4\nv_xor_b32 v5, 64, v4")
    A("s_waitcnt lgkmcnt(0)")
    srd(A,16,4,2048*1024); srd(A,20,6,512*1024); srd(A,24,8,1792*1024); srd(A,28,10,2048*1024); srd(A,32,12,WS_SIZE)
    A(f"s_mul_i32 s40, s37, 224\ns_mul_i32 s14, s36, 14\ns_add_u32 s40, s40, s14\ns_lshl_b32 s40, s40, 10\ns_add_u32 s40, s40, {WS_H}\ns_add_u32 s41, s40, {112*1024}")
    A(f"s_lshl_b32 s42, s37, 6\ns_lshl_b32 s15, s36, 2\ns_add_u32 s42, s42, s15\ns_lshl_b32 s42, s42, 10\ns_add_u32 s42, s42, {WS_O}\ns_add_u32 s43, s42, {32*1024}")
    A("s_lshl_b32 s44, s14, 14\ns_lshl_b32 s45, s15, 14")
    ACF,ACS,BR,AF=128,192,16,8
    for i in range(64): A(f"v_mov_b32 v{ACF+i}, 0\nv_mov_b32 v{ACS+i}, 0")
    NS=18; D=6
    def issue(n):
        slot=n%8; br=BR+8*(n%7)
        if n<14: sb0,sb1,sw,srdw="s40","s41","s44","s[24:27]"
        else: sb0,sb1,sw,srdw="s42","s43","s45","s[20:23]"
        A(f"s_add_u32 m0, s39, {slot*2048}")
        A(f"buffer_load_dwordx4 {vr(br,4)}, v2, s[32:35], {sb0} offen")
        A(f"buffer_load_dwordx4 v3, {srdw}, {sw} offen lds")
        A(f"s_add_u32 m0, s39, {slot*2048+1024}\ns_add_u32 s46, {sw}, 8192")
        A(f"buffer_load_dwordx4 {vr(br+4,4)}, v2, s[32:35], {sb1} offen")
        A(f"buffer_load_dwordx4 v3, {srdw}, s46 offen lds")
        A(f"s_add_u32 {sb0}, {sb0}, 1024\ns_add_u32 {sb1}, {sb1}, 1024\ns_add_u32 {sw}, {sw}, 16384")
    for n in range(D): issue(n)
    for n in range(NS):
        if n+D<NS: issue(n+D)
        out=min(NS-1,n+D)-n
        A(f"s_waitcnt vmcnt({4*out})")
        slot=n%8; br=BR+8*(n%7); acc=ACF if n<14 else ACS
        for cb in range(2):
            for i in range(2): A(f"ds_read_b64_tr_b16 {vr(AF+4*cb+2*i,2)}, v{4+cb} offset:{slot*2048+i*1024}")
        A("s_waitcnt lgkmcnt(0)")
        for t in range(2):
            for cb in range(2): A(mfma32(acc+16*(2*t+cb),AF+4*cb,br+4*t,acc+16*(2*t+cb)))
    A("s_nop 15")
    A("v_add_u32 v6, s39, v2")
    A("s_lshl_b32 s14, s36, 11\nv_add_u32 v7, s14, v2")
    A("v_add_u32 v8, 65536, v7")
    def reduce(acc,dst):
        A("s_barrier")
        for q in range(16): A(f"ds_write_b128 v6, {vr(acc+4*q,4)} offset:{q*1024}")
        A("s_waitcnt lgkmcnt(0)\ns_barrier")
        for half in range(2):
            for p in range(4):
                for q in range(2): A(f"ds_read_b128 {vr(16+32*half+8*p+4*q,4)}, v{7+half} offset:{p*16384+q*1024}")
            A("s_waitcnt lgkmcnt(0)")
        for r in range(8):
            A(f"v_add_f32 v{dst+r}, v{16+r}, v{24+r}")
            for p in range(2,8): A(f"v_add_f32 v{dst+r}, v{dst+r}, v{16+8*p+r}")
    reduce(ACF,96); reduce(ACS,104)
    A("s_lshr_b32 s14, s36, 2\ns_lshl_b32 s14, s14, 5\ns_lshl_b32 s15, s37, 6\ns_add_u32 s14, s14, s15\ns_lshl_b32 s14, s14, 10")
    A("s_and_b32 s15, s36, 3\ns_lshl_b32 s15, s15, 5\ns_add_u32 s14, s14, s15\ns_lshl_b32 s15, s38, 7\ns_add_u32 s14, s14, s15")
    A("v_and_b32 v9, 31, v0\nv_lshlrev_b32 v9, 10, v9\nv_lshrrev_b32 v10, 5, v0\nv_lshl_add_u32 v9, v10, 3, v9")
    A("buffer_load_dwordx2 v[16:17], v9, s[16:19], s14 offen\nbuffer_load_dwordx2 v[18:19], v9, s[16:19], s14 offen offset:16")
    for r in range(8):
        A(f"v_mul_f32 v{112+r}, {f2u(-LOG2E):#x}, v{96+r}")
    for r in range(8): A(f"v_exp_f32 v{112+r}, v{112+r}")
    for r in range(8): A(f"v_add_f32 v{112+r}, 1.0, v{112+r}")
    for r in range(8): A(f"v_rcp_f32 v{112+r}, v{112+r}")
    for r in range(8): A(f"v_mul_f32 v{96+r}, v{96+r}, v{104+r}")
    A("s_waitcnt vmcnt(0)")
    for d in range(4):
        A(f"v_lshlrev_b32 v{20+2*d}, 16, v{16+d}\nv_and_b32 v{21+2*d}, 0xffff0000, v{16+d}")
    for r in range(8): A(f"v_fma_f32 v{20+r}, v{96+r}, v{112+r}, v{20+r}")
    for d in range(4): A(f"v_cvt_pk_bf16_f32 v{16+d}, v{20+2*d}, v{21+2*d}")
    A("buffer_store_dwordx2 v[16:17], v9, s[28:31], s14 offen\nbuffer_store_dwordx2 v[18:19], v9, s[28:31], s14 offen offset:16")
    A.label("k3_end")
    A("s_endpgm")

def main(out):
    hdr=open("cdna_kernels/"+NAME+".s.ref").read().split("\n")
    head=[l for l in hdr if l.startswith(";") and "@launch" not in l and "Override" not in l and "grid=ceil" not in l]
    T="\n".join(head)+"\n"
    T+=f"; @launch kernel=k1_kernel grid=(256,1,1) block=(512,1,1) lds={K1_LDS}\n"
    T+=f"; @launch kernel=k2_kernel grid=(256,1,1) block=(512,1,1) lds={K2_LDS}\n"
    T+=f"; @launch kernel=k3_kernel grid=(256,1,1) block=(512,1,1) lds={K3_LDS}\n"
    T+='.amdgcn_target "amdgcn-amd-amdhsa--gfx950"\n.text\n'
    body=""
    for nm,fn in (("k1_kernel",k1),("k2_kernel",k2),("k3_kernel",k3)):
        A=Asm(); fn(A)
        for e in hazard_check(A.text()): print(nm,e)
        body+=f".globl {nm}\n.p2align 8\n.type {nm},@function\n"+A.text()
    T+=body+'.section .rodata,"a"\n'+kdesc("k1_kernel",160,64)+kdesc("k2_kernel",96,64)+kdesc("k3_kernel",256,64)
    open(out,"w").write(T)
if __name__=="__main__":
    main(sys.argv[1] if len(sys.argv)>1 else "cdna_kernels/"+NAME+".s")
```

```python
import sys, struct, os
from asmlib import *

NAME="recurrent_scan__mha_block__glu_gated_reglu__prompt"
WS_Q=0; WS_KV=2<<20; WS_H=6<<20; WS_O=13<<20; WS_G=16<<20; WS_SIZE=32<<20
def f2u(f): return struct.unpack("<I",struct.pack("<f",f))[0]
LOG2E=1.4426950408889634
STAMP=int(os.environ.get("STAMP","0"))
TOUCH=int(os.environ.get("TOUCH","1"))
PRIO_IT=int(os.environ.get("PRIO_IT","13"))
WT=os.environ.get("WT","")
WS_ST=24<<20
def stamp(A,i,real=False):
    if STAMP: A(f"{'s_memrealtime' if real else 's_memtime'} s[{80+2*i}:{81+2*i}]")
def stamp_out(A,kid,n=8):
    if not STAMP: return
    A("s_waitcnt vmcnt(0)")
    stamp(A,n-2); stamp(A,n-1,True)
    A("s_waitcnt lgkmcnt(0)")
    A(f"s_lshl_b32 s96, s2, 3\ns_add_u32 s96, s96, s40\ns_lshl_b32 s96, s96, 6\ns_add_u32 s96, s96, {WS_ST+kid*(1<<18)}")
    A("s_mov_b64 exec, 1\nv_mov_b32 v1, 0")
    for i in range(n):
        A(f"v_mov_b32 v0, s{80+2*i}\nbuffer_store_dword v0, v1, s[32:35], s96 offen offset:{4*i}")

class VM:
    def __init__(s): s.ops=[]
    def add(s,tag): s.ops.append(tag)
    def n_after(s,tag):
        idx=max(i for i,t in enumerate(s.ops) if t==tag)
        return len(s.ops)-1-idx
def weave(A,mf,fill):
    n=len(mf); k=len(fill); j=0
    for i,m in enumerate(mf):
        A(m)
        e=(k*(i+1))//n
        while j<e: A(fill[j]); j+=1

XB=0; NX=6; QB=NX*8192; GB=QB+NX*6144; NG=5; UB=GB+NG*7168+128; K1_LDS=UB+NG*7168
XF=128; ACC=64
def k1(A):
    vm=VM()
    A.label("k1_kernel")
    A("s_cmp_ge_u32 s2, 256\ns_cbranch_scc1 k1_end")
    stamp(A,0,True); stamp(A,1)
    A("s_load_dwordx4 s[4:7], s[0:1], 0")
    A("s_load_dwordx4 s[8:11], s[0:1], 32")
    A("s_load_dwordx2 s[12:13], s[0:1], 72")
    A("v_lshrrev_b32 v1, 6, v0\nv_and_b32 v0, 63, v0\nv_readfirstlane_b32 s40, v1")
    A("s_and_b32 s3, s2, 7\ns_lshr_b32 s14, s2, 3")
    A("s_and_b32 s43, s3, 1\ns_lshl_b32 s43, s43, 3\ns_and_b32 s15, s14, 7\ns_add_u32 s43, s43, s15")
    A("s_lshr_b32 s44, s3, 1\ns_lshl_b32 s44, s44, 2\ns_lshr_b32 s15, s14, 3\ns_add_u32 s44, s44, s15")
    A("s_and_b32 s41, s40, 3\ns_lshr_b32 s42, s40, 2")
    A("s_lshl_b32 s45, s14, 3\ns_add_u32 s45, s45, s40")
    A("v_lshrrev_b32 v3, 2, v0")
    A("s_lshl_b32 s15, s43, 7\ns_lshl_b32 s14, s40, 4\ns_add_u32 s15, s15, s14")
    A("v_add_u32 v3, s15, v3\nv_lshlrev_b32 v3, 10, v3")
    A("v_lshrrev_b32 v1, 4, v0\nv_xor_b32 v1, v1, v0\nv_and_b32 v1, 3, v1\nv_lshl_add_u32 v3, v1, 4, v3")
    A("v_mul_u32_u24 v20, 5462, v0\nv_lshrrev_b32 v20, 16, v20\nv_mul_u32_u24 v21, 12, v20\nv_sub_u32 v21, v0, v21")
    A("v_mul_u32_u24 v20, 3072, v20\nv_lshrrev_b32 v22, 2, v21\nv_lshl_add_u32 v20, v22, 10, v20\nv_and_b32 v21, 3, v21")
    A("s_mul_i32 s14, s40, 12288\ns_lshl_b32 s15, s44, 6\ns_add_u32 s14, s14, s15")
    A("v_lshl_add_u32 v4, v21, 4, v20\nv_add_u32 v4, s14, v4")
    if TOUCH:
        A("s_mul_i32 s14, s45, 6144\ns_lshr_b32 s15, s3, 1\ns_lshl_b32 s15, s15, 8\ns_add_u32 s14, s14, s15")
        A("v_lshl_add_u32 v20, v21, 6, v20\nv_add_u32 v20, s14, v20")
        A("s_and_b32 s14, s3, 1\ns_lshl_b32 s14, s14, 20\ns_lshl_b32 s15, s45, 12\ns_add_u32 s14, s14, s15")
        A("v_lshlrev_b32 v21, 6, v0\nv_add_u32 v21, s14, v21")
    A("s_lshl_b32 s46, s40, 10\ns_mul_i32 s47, s40, 768\ns_mul_i32 s48, s40, 896")
    A("s_mov_b32 s50, -1\ns_mov_b32 s51, 0xffff\ns_mov_b32 s52, -1\ns_mov_b32 s53, 0xffffff")
    A("s_waitcnt lgkmcnt(0)")
    srd(A,16,4,2048*1024); srd(A,20,6,512*3072)
    def dma(n):
        if n<16:
            vm.add(n); vm.add(n)
            return [f"s_add_u32 m0, s46, {XB+(n%NX)*8192}\ns_movk_i32 s49, {64*n}\nbuffer_load_dwordx4 v3, s[16:19], s49 offen lds",
                    f"s_add_u32 m0, s47, {QB+(n%NX)*6144}\ns_mov_b32 s49, {n*98304}\ns_mov_b64 exec, s[50:51]\nbuffer_load_dwordx4 v4, s[20:23], s49 offen lds\ns_mov_b64 exec, -1"]
        m=n-16; L=[]
        if m==0 and TOUCH:
            vm.add("t2"); vm.add("t2")
            L.append("s_mov_b64 exec, 0xfffffff\nbuffer_load_dword v1, v11, s[24:27], 0 offen\nbuffer_load_dword v1, v11, s[28:31], 0 offen\ns_mov_b64 exec, -1")
        vm.add(n); vm.add(n)
        L+= [f"s_add_u32 m0, s48, {GB+(m%NG)*7168}\ns_mov_b32 s49, {m*114688}\ns_mov_b64 exec, s[52:53]\nbuffer_load_dwordx4 v2, s[24:27], s49 offen lds\ns_mov_b64 exec, -1",
             f"s_add_u32 m0, s48, {UB+(m%NG)*7168}\ns_mov_b64 exec, s[52:53]\nbuffer_load_dwordx4 v2, s[28:31], s49 offen lds\ns_mov_b64 exec, -1"]
        return L
    for l in dma(0): A(l)
    if TOUCH:
        vm.add("t1"); vm.add("t1")
        A("buffer_load_dword v1, v21, s[16:19], 0 offen\ns_mov_b64 exec, 0xffffff\nbuffer_load_dword v1, v20, s[20:23], 0 offen\ns_mov_b64 exec, -1")
    for n in range(1,5):
        for l in dma(n): A(l)
    srd(A,24,8,512*3584); srd(A,28,10,512*3584); srd(A,32,12,WS_SIZE)
    A("v_mul_u32_u24 v20, 4682, v0\nv_lshrrev_b32 v20, 16, v20\nv_mul_u32_u24 v21, 14, v20\nv_sub_u32 v21, v0, v21\nv_mul_u32_u24 v20, 3584, v20")
    A("s_mul_i32 s14, s40, 14336\ns_mul_i32 s15, s44, 224\ns_add_u32 s14, s14, s15")
    A("v_lshl_add_u32 v2, v21, 4, v20\nv_add_u32 v2, s14, v2")
    A("s_mul_i32 s14, s45, 7168\ns_lshr_b32 s15, s3, 1\ns_mul_i32 s15, s15, 896\ns_add_u32 s14, s14, s15")
    A("v_lshl_add_u32 v11, v21, 6, v20\nv_add_u32 v11, s14, v11")
    A("v_and_b32 v20, 31, v0\nv_lshrrev_b32 v21, 5, v0\nv_bfe_u32 v22, v0, 2, 2")
    A("v_xor_b32 v23, v22, v21\nv_lshlrev_b32 v23, 4, v23\nv_lshl_add_u32 v5, v20, 6, v23")
    A(f"s_lshl_b32 s15, s41, 11\ns_lshl_b32 s14, s42, 5\nv_add_u32 v5, s15, v5\nv_xor_b32 v5, s14, v5\nv_xor_b32 v6, 32, v5")
    A("v_and_b32 v23, 3, v0\nv_lshlrev_b32 v23, 3, v23\nv_mul_u32_u24 v24, 192, v22\nv_add_u32 v23, v23, v24")
    A("v_bfe_u32 v24, v0, 4, 1\nv_lshl_add_u32 v25, v24, 5, v23\nv_mul_u32_u24 v26, 1536, v21\nv_add_u32 v25, v25, v26")
    A(f"s_mul_i32 s14, s42, {3072+64}\ns_add_u32 s14, s14, {QB}\nv_add_u32 v7, s14, v25")
    A(f"s_mul_i32 s14, s42, {3072-64}\ns_sub_u32 s14, {QB+3072}, s14\nv_add_u32 v8, s14, v25")
    A(f"s_mul_i32 s14, s42, 3072\ns_add_u32 s14, s14, {QB+128}\nv_add_u32 v9, s14, v25")
    A(f"v_lshrrev_b32 v24, 4, v0\nv_lshl_add_u32 v10, v24, 5, v23\ns_add_u32 s14, s47, {QB}\nv_add_u32 v10, s14, v10")
    for i in range(12,20): A(f"v_mov_b32 v{i}, 0")
    for i in range(32): A(f"v_mov_b32 v{ACC+i}, 0")
    stamp(A,2)
    FB=[24,44]
    def unpack_add(src,acc,T,sq=None):
        L=[f"v_lshlrev_b32 v{T}, 16, v{src}",f"v_and_b32 v{T+1}, 0xffff0000, v{src}",
           f"v_add_f32 v{acc}, v{acc}, v{T}",f"v_add_f32 v{acc+1}, v{acc+1}, v{T+1}"]
        if sq is not None: L+=[f"v_fmac_f32 v{sq}, v{T}, v{T}",f"v_fmac_f32 v{sq+1}, v{T+1}, v{T+1}"]
        return L
    for s in range(17):
        fill=[]
        if s<16:
            A(f"s_waitcnt vmcnt({vm.n_after(s)}) lgkmcnt(0)\ns_barrier")
            if s==0: stamp(A,3)
            B=FB[s%2]; xo=(s%NX)*8192; wo=(s%NX)*6144
            A(f"ds_read_b128 {vr(XF+8*s,4)}, v5 offset:{xo}")
            for i in range(2): A(f"ds_read_b64_tr_b16 {vr(B+2*i,2)}, v7 offset:{wo+i*768}")
            for i in range(2): A(f"ds_read_b64_tr_b16 {vr(B+8+2*i,2)}, v9 offset:{wo+i*768}")
            A(f"ds_read_b128 {vr(XF+8*s+4,4)}, v6 offset:{xo}")
            for i in range(2): A(f"ds_read_b64_tr_b16 {vr(B+4+2*i,2)}, v8 offset:{wo+i*768}")
            for i in range(2): A(f"ds_read_b64_tr_b16 {vr(B+12+2*i,2)}, v10 offset:{wo+i*128}")
            fill+=dma(s+5)
        else: A("s_waitcnt lgkmcnt(0)")
        if s>0:
            p=s-1; B=FB[p%2]
            v=[]
            for d in range(4): v+=unpack_add(XF+8*p+d,12,20+2*(d%2),14)
            for d in range(4): v+=unpack_add(B+12+d,16+2*(d//2),20+2*(d%2))
            mf=[mfma32(ACC,B,XF+8*p,ACC),mfma32(ACC+16,B+8,XF+8*p,ACC+16),mfma32(ACC,B+4,XF+8*p+4,ACC)]
            allf=[]; step=len(v)//(len(fill)+1) if fill else len(v)
            for i,x in enumerate(v):
                allf.append(x)
                if fill and (i+1)%step==0: allf.append(fill.pop(0))
            allf+=fill
            weave(A,mf,allf)
        else:
            for l in fill: A(l)
    stamp(A,4)
    CS1=0; ST=4096; VX=8192; VT=32768
    A("v_add_f32 v12, v12, v13\nv_add_f32 v14, v14, v15\nv_mov_b32 v13, v12\nv_mov_b32 v15, v14")
    A("v_lshlrev_b32 v24, 5, v0\ns_lshl_b32 s14, s40, 2\nv_add_u32 v24, s14, v24")
    A("v_permlane32_swap_b32 v12, v13\nv_permlane32_swap_b32 v14, v15")
    A("v_add_f32 v12, v12, v13\nv_add_f32 v13, v14, v15")
    def cs_pack(acc,off):
        A(f"v_add_f32 v20, v{acc}, v{acc+1}\nv_and_b32 v21, 0xffff0000, v20\nv_sub_f32 v20, v20, v21\nv_cvt_pk_bf16_f32 v20, v21, v20")
        A(f"ds_write_b32 v24, v20 offset:{off}")
    cs_pack(16,CS1); cs_pack(18,CS1+2048)
    A("v_and_b32 v25, 31, v0\nv_lshlrev_b32 v25, 3, v25\ns_lshl_b32 s14, s40, 8\nv_add_u32 v26, s14, v25")
    A(f"ds_write_b64 v26, v[12:13] offset:{ST}")
    A("v_xor_b32 v26, 0x400, v26")
    A("v_lshlrev_b32 v27, 4, v0")
    A("s_lshl_b32 s14, s40, 11\nv_add_u32 v28, s14, v27\nv_xor_b32 v29, 0x2000, v28")
    A("v_lshrrev_b32 v30, 5, v0\nv_lshlrev_b32 v30, 4, v30\nv_lshl_add_u32 v30, v25, 2, v30")
    A("s_lshl_b32 s14, s42, 10\nv_add_u32 v31, s14, v30")
    A("s_cmp_eq_u32 s42, 0\ns_cbranch_scc0 k1_vx1")
    A(f"ds_write_b128 v28, {vr(ACC+24,4)} offset:{VX}\nds_write_b128 v28, {vr(ACC+28,4)} offset:{VX+1024}")
    A("s_branch k1_vxd")
    A.label("k1_vx1")
    A(f"ds_write_b128 v28, {vr(ACC+16,4)} offset:{VX}\nds_write_b128 v28, {vr(ACC+20,4)} offset:{VX+1024}")
    A.label("k1_vxd")
    A("s_waitcnt lgkmcnt(0)\ns_barrier")
    A(f"ds_read_b64 v[14:15], v26 offset:{ST}")
    A(f"ds_read_b128 v[32:35], v31 offset:{CS1}\nds_read_b128 v[36:39], v30 offset:{CS1+2048}")
    A(f"ds_read_b128 v[40:43], v29 offset:{VX}\nds_read_b128 v[44:47], v29 offset:{VX+1024}")
    A("s_lshl_b32 s54, s43, 2\ns_add_u32 s54, s54, s41")
    A("s_lshl_b32 s55, s44, 7\ns_add_u32 s55, s55, s54")
    A(f"s_lshl_b32 s56, s55, 11\ns_add_u32 s56, s56, {WS_KV}")
    A("s_lshl_b32 s57, s55, 10")
    A(f"s_cmp_eq_u32 s42, 0\ns_cselect_b32 s57, s57, s56\ns_cselect_b32 s58, {64*1024}, {64*2048}" if False else
      f"s_mov_b32 s58, {64*1024}\ns_lshl_b32 s58, s58, s42\ns_cmp_eq_u32 s42, 0\ns_cselect_b32 s57, s57, s56\ns_mov_b32 s59, {f2u(0.25*LOG2E):#x}\ns_cselect_b32 s59, s59, 1.0")
    A("s_add_u32 s58, s58, s57")
    A("s_lshl_b32 s14, s42, 17\ns_add_u32 s56, s56, s14")
    A("s_waitcnt lgkmcnt(4)")
    A("v_add_f32 v12, v12, v14\nv_add_f32 v13, v13, v15")
    A(f"v_mul_f32 v12, {f2u(1/512):#x}, v12\nv_mul_f32 v13, {f2u(1/512):#x}, v13")
    A("v_cvt_pk_bf16_f32 v48, -v12, -v12")
    A("v_fma_f32 v13, -v12, v12, v13\nv_max_f32 v13, 0, v13")
    A("v_mov_b32 v49, v48\nv_mov_b32 v50, v48\nv_mov_b32 v51, v48\nv_mov_b32 v11, v48")
    A("v_cvt_pk_bf16_f32 v13, v13, v13\nv_and_b32 v13, 0xffff0000, v13")
    A("s_waitcnt lgkmcnt(2)")
    A(mfma32(ACC,32,48,ACC))
    A(f"v_add_f32 v13, {f2u(1e-5):#x}, v13")
    A("v_cvt_pk_bf16_f32 v13, v13, v13\nv_and_b32 v13, 0xffff0000, v13")
    A("v_sqrt_f32 v13, v13")
    A(mfma32(ACC+16,36,48,ACC+16))
    A("v_cvt_pk_bf16_f32 v13, v13, v13\nv_and_b32 v13, 0xffff0000, v13")
    A("v_rcp_f32 v10, v13")
    A(f"v_lshrrev_b32 v20, 5, v0\nv_lshlrev_b32 v20, 3, v20\nv_lshl_add_u32 v20, v25, 2, v20\ns_add_u32 s14, s46, {VT}\nv_add_u32 v20, s14, v20")
    A("v_mul_f32 v12, s59, v10")
    A("v_lshrrev_b32 v21, 5, v0\nv_lshlrev_b32 v21, 9, v21\nv_bfe_u32 v22, v0, 4, 1\nv_lshl_add_u32 v21, v22, 7, v21\nv_and_b32 v22, 15, v0\nv_lshl_add_u32 v21, v22, 3, v21\nv_add_u32 v21, s14, v21")
    for r in range(16): A(f"v_mul_f32 v{ACC+r}, v12, v{ACC+r}")
    for d in range(8): A(f"v_cvt_pk_bf16_f32 v{52+d}, v{ACC+2*d}, v{ACC+2*d+1}")
    vm.add("st"); vm.add("st")
    A(f"buffer_store_dwordx4 v[52:55], v27, s[32:35], s57 offen{WT}\nbuffer_store_dwordx4 v[56:59], v27, s[32:35], s58 offen{WT}")
    A("s_waitcnt lgkmcnt(0)")
    A("s_cmp_eq_u32 s42, 0\ns_cbranch_scc0 k1_va1")
    for r in range(8): A(f"v_add_f32 v{40+r}, v{40+r}, v{ACC+16+r}")
    A("s_branch k1_vad")
    A.label("k1_va1")
    for r in range(8): A(f"v_add_f32 v{40+r}, v{40+r}, v{ACC+24+r}")
    A.label("k1_vad")
    for r in range(8): A(f"v_mul_f32 v{40+r}, v10, v{40+r}")
    for d in range(4): A(f"v_cvt_pk_bf16_f32 v{32+d}, v{40+2*d}, v{41+2*d}")
    A("ds_write_b64 v20, v[32:33]\nds_write_b64 v20, v[34:35] offset:16")
    A("v_bfe_u32 v22, v0, 2, 2\nv_mul_u32_u24 v22, 224, v22\nv_and_b32 v23, 3, v0\nv_lshl_add_u32 v22, v23, 3, v22")
    A(f"v_bfe_u32 v23, v0, 4, 1\nv_mul_u32_u24 v23, {UB-GB}, v23\nv_add_u32 v22, v22, v23")
    A("s_waitcnt lgkmcnt(0)")
    A("ds_read_b64_tr_b16 v[36:37], v21\nds_read_b64_tr_b16 v[38:39], v21 offset:256")
    A("v_lshrrev_b32 v23, 5, v0\nv_mul_u32_u24 v3, 1792, v23\nv_add_u32 v3, v3, v22")
    A(f"s_mul_i32 s14, s42, {3584+96}\ns_add_u32 s14, s14, {GB}\nv_add_u32 v5, s14, v3")
    A(f"s_mul_i32 s14, s42, {3584-96}\ns_sub_u32 s14, {GB+3584}, s14\nv_add_u32 v6, s14, v3")
    A(f"s_mul_i32 s14, s42, 3584\ns_add_u32 s14, s14, {GB+192}\nv_add_u32 v7, s14, v3")
    A(f"v_lshl_add_u32 v8, v23, 5, v22\ns_add_u32 s14, s48, {GB}\nv_add_u32 v8, s14, v8")
    for i in range(12,20): A(f"v_mov_b32 v{i}, 0")
    A("s_waitcnt lgkmcnt(0)")
    vm.add("st")
    A(f"buffer_store_dwordx4 v[36:39], v27, s[32:35], s56 offen offset:1024{WT}")
    A("v_mov_b32 v9, v27")
    stamp(A,5)
    E=24; O_=40; CSR=52
    def rdE(s):
        so=(s%NG)*7168; L=[]
        for j in range(3):
            for i in range(2): L.append(f"ds_read_b64_tr_b16 {vr(E+4*j+2*i,2)}, v5 offset:{so+i*896+32*j}")
        for i in range(2): L.append(f"ds_read_b64_tr_b16 {vr(E+12+2*i,2)}, v7 offset:{so+i*896}")
        return L
    def rdO(s):
        so=(s%NG)*7168; L=[]
        for j in range(3):
            for i in range(2): L.append(f"ds_read_b64_tr_b16 {vr(O_+4*j+2*i,2)}, v6 offset:{so+i*896+32*j}")
        for j in range(4): L.append(f"ds_read_b64_tr_b16 {vr(CSR+2*j,2)}, v8 offset:{so+64*j}")
        return L
    A(f"s_waitcnt vmcnt({vm.n_after(16)})\ns_barrier")
    for l in rdE(0): A(l)
    for s in range(16):
        c=lambda j: (ACC+16*j) if s>0 else "0"
        A("s_waitcnt lgkmcnt(0)")
        mf=[mfma32(ACC+16*j,E+4*j,XF+8*s,c(j)) for j in range(4)]
        weave(A,mf,rdO(s))
        if s<15: A(f"s_waitcnt vmcnt({vm.n_after(16+s+1)}) lgkmcnt(0)\ns_barrier")
        else: A("s_waitcnt lgkmcnt(0)")
        mf=[mfma32(ACC+16*j,O_+4*j,XF+8*s+4,ACC+16*j) for j in range(3)]
        v=[]
        for d in range(8): v+=unpack_add(CSR+d,12+2*(d//2),20+2*(d%2))
        fill=(rdE(s+1) if s<15 else [])
        dm=dma(16+s+5) if s+5<16 else []
        allf=fill+v[:16]+dm[:1]+v[16:]+dm[1:]
        weave(A,mf,allf)
    CS2=GB+7168; FX=CS2+8192
    A(f"v_lshlrev_b32 v24, 5, v0\ns_lshl_b32 s14, s40, 2\ns_add_u32 s14, s14, {CS2}\nv_add_u32 v24, s14, v24")
    for j in range(4): cs_pack(12+2*j,2048*j)
    A(f"s_lshl_b32 s14, s40, 11\nv_add_u32 v28, s14, v9\nv_xor_b32 v29, 0x2000, v28\nv_add_u32 v28, {FX}, v28\nv_add_u32 v29, {FX}, v29")
    A(f"v_and_b32 v25, 31, v0\nv_lshrrev_b32 v30, 5, v0\nv_lshlrev_b32 v30, 4, v30\nv_lshl_add_u32 v30, v25, 5, v30\nv_add_u32 v30, {CS2}, v30")
    A("s_mul_i32 s14, s42, 3072\nv_add_u32 v31, s14, v30")
    A("s_cmp_eq_u32 s42, 0\ns_cbranch_scc0 k1_fx1")
    A(f"ds_write_b128 v28, {vr(ACC+52,4)}\nds_write_b128 v28, {vr(ACC+60,4)} offset:1024")
    A("s_branch k1_fxd")
    A.label("k1_fx1")
    A(f"ds_write_b128 v28, {vr(ACC+48,4)}\nds_write_b128 v28, {vr(ACC+56,4)} offset:1024")
    A.label("k1_fxd")
    A("s_waitcnt lgkmcnt(0)\ns_barrier")
    for j in range(3): A(f"ds_read_b128 {vr(32+4*j,4)}, v31 offset:{1024*j}")
    A(f"ds_read_b128 v[44:47], v30 offset:6144")
    A("ds_read_b128 v[52:55], v29\nds_read_b128 v[56:59], v29 offset:1024")
    A("v_mov_b32 v48, v11\nv_mov_b32 v49, v11\nv_mov_b32 v50, v11\nv_mov_b32 v51, v11")
    A("v_mul_f32 v10, v10, v10")
    A(f"s_mul_i32 s57, s54, 112\ns_mul_i32 s58, s44, 7\ns_add_u32 s57, s57, s58\ns_lshl_b32 s57, s57, 10\ns_add_u32 s57, s57, {WS_H}")
    A("s_lshl_b32 s58, s42, 3\ns_add_u32 s58, s58, s57\ns_add_u32 s58, s58, 6144\ns_add_u32 s57, s57, s14")
    for j in range(4):
        A(f"s_waitcnt lgkmcnt({5-j})")
        A(mfma32(ACC+16*j,32+4*j,48,ACC+16*j))
    A("s_nop 7")
    for j in range(3):
        acc=ACC+16*j; T=12+4*(j%2)
        for r in range(8):
            A(f"v_max_f32 v{acc+r}, 0, v{acc+r}\nv_mul_f32 v{acc+8+r}, v10, v{acc+8+r}")
        for r in range(8): A(f"v_mul_f32 v{acc+r}, v{acc+r}, v{acc+8+r}")
        for d in range(4): A(f"v_cvt_pk_bf16_f32 v{T+d}, v{acc+2*d}, v{acc+2*d+1}")
        A(f"buffer_store_dwordx4 {vr(T,4)}, v9, s[32:35], s57 offen offset:{1024*j}{WT}")
    A("s_waitcnt lgkmcnt(0)")
    A("s_cmp_eq_u32 s42, 0\ns_cbranch_scc0 k1_fa1")
    for r in range(4): A(f"v_add_f32 v{52+r}, v{52+r}, v{ACC+48+r}\nv_add_f32 v{56+r}, v{56+r}, v{ACC+56+r}")
    A("s_branch k1_fad")
    A.label("k1_fa1")
    for r in range(4): A(f"v_add_f32 v{52+r}, v{52+r}, v{ACC+52+r}\nv_add_f32 v{56+r}, v{56+r}, v{ACC+60+r}")
    A.label("k1_fad")
    for r in range(4): A(f"v_max_f32 v{52+r}, 0, v{52+r}\nv_mul_f32 v{56+r}, v10, v{56+r}")
    for r in range(4): A(f"v_mul_f32 v{52+r}, v{52+r}, v{56+r}")
    A("v_cvt_pk_bf16_f32 v20, v52, v53\nv_cvt_pk_bf16_f32 v21, v54, v55")
    A(f"buffer_store_dwordx2 v[20:21], v9, s[32:35], s58 offen{WT}")
    stamp_out(A,0)
    A.label("k1_end")
    A("s_endpgm")

WSL=131072+4096
K2_LDS=WSL+8*2048
MOFF=90.0
def reduce_read(A,dst,addr,T):
    for kq in range(4):
        for q in range(2): A(f"ds_read_b128 {vr(T+8*kq+4*q,4)}, v{addr} offset:{kq*8192+q*1024}")
    A("s_waitcnt lgkmcnt(4)")
    for r in range(8): A(f"v_add_f32 v{dst+r}, v{T+r}, v{T+8+r}")
    A("s_waitcnt lgkmcnt(0)")
    for r in range(8): A(f"v_add_f32 v{T+16+r}, v{T+16+r}, v{T+24+r}")
    for r in range(8): A(f"v_add_f32 v{dst+r}, v{dst+r}, v{T+16+r}")
def k2(A):
    A.label("k2_kernel")
    A("s_cmp_ge_u32 s2, 256\ns_cbranch_scc1 k2_end")
    stamp(A,0,True); stamp(A,1)
    A("s_load_dwordx2 s[12:13], s[0:1], 72")
    A("s_load_dwordx2 s[8:9], s[0:1], 48")
    A("v_lshrrev_b32 v1, 6, v0\nv_and_b32 v0, 63, v0\nv_readfirstlane_b32 s40, v1")
    A("s_and_b32 s3, s2, 7\ns_lshl_b32 s3, s3, 2\ns_bfe_u32 s14, s2, 0x20003\ns_add_u32 s43, s3, s14")
    A("s_lshr_b32 s44, s2, 5")
    A("s_lshl_b32 s14, s44, 3\ns_add_u32 s45, s14, s40")
    A("v_lshlrev_b32 v2, 4, v0")
    Q,K,VA,VB,P,C,SA,SB,O=4,8,12,16,20,32,48,64,80
    GA,GBf,GACC=96,104,120
    A(f"s_lshl_b32 s14, s43, 6\ns_add_u32 s14, s14, s45\ns_lshl_b32 s14, s14, 10")
    A(f"s_lshl_b32 s15, s43, 17\ns_add_u32 s15, s15, {WS_KV}\ns_lshl_b32 s46, s40, 10\ns_add_u32 s15, s15, s46")
    A("s_mov_b32 m0, s46")
    A("s_waitcnt lgkmcnt(0)")
    srd(A,32,12,WS_SIZE)
    A(f"buffer_load_dwordx4 {vr(Q,4)}, v2, s[32:35], s14 offen")
    for i in range(3):
        A("buffer_load_dwordx4 v2, s[32:35], s15 offen lds")
        A("s_add_u32 m0, m0, 8192\ns_add_u32 s15, s15, 8192")
    srd(A,36,12,0); srd(A,24,8,0)
    A("v_and_b32 v3, 15, v0\nv_lshlrev_b32 v3, 4, v3\nv_lshrrev_b32 v1, 5, v0\nv_lshl_add_u32 v3, v1, 8, v3\nv_add_u32 v3, 1024, v3")
    A("s_mov_b32 s50, 0xffff\ns_mov_b32 s51, 0xffff")
    for i in range(4): A(f"v_mov_b32 v{VA+i}, 0x3f803f80\nv_mov_b32 v{VB+i}, 0x3f803f80")
    A("s_lshr_b32 s42, s40, 2\ns_and_b32 s41, s40, 3")
    A("v_lshrrev_b32 v152, 2, v0\nv_lshlrev_b32 v152, 10, v152\nv_and_b32 v153, 3, v0\nv_lshl_add_u32 v152, v153, 4, v152")
    A("s_lshl_b32 s14, s44, 7\ns_lshl_b32 s47, s42, 6\ns_add_u32 s14, s14, s47\nv_add_u32 v152, s14, v152")
    A("v_lshlrev_b32 v153, 3, v153\nv_lshl_add_u32 v153, v1, 8, v153\nv_bfe_u32 v154, v0, 2, 2\nv_lshl_add_u32 v153, v154, 6, v153\nv_bfe_u32 v154, v0, 4, 1\nv_lshl_add_u32 v153, v154, 5, v153")
    A(f"s_lshl_b32 s47, s40, 11\ns_add_u32 s47, s47, {WSL}\nv_add_u32 v153, s47, v153")
    for i in range(GA,GACC+32): A(f"v_mov_b32 v{i}, 0")
    A(f"v_add_u32 v154, s47, v2\nds_write_b128 v154, {vr(GA,4)}\nds_write_b128 v154, {vr(GA,4)} offset:1024")
    A(f"s_mul_i32 s54, s43, 224\ns_mul_i32 s14, s41, 28\ns_add_u32 s54, s54, s14\ns_lshl_b32 s54, s54, 10\ns_add_u32 s54, s54, {WS_H-2048}\ns_add_u32 s55, s54, {112*1024}")
    A(f"s_lshl_b32 s56, s14, 14\ns_sub_u32 s56, s56, 32768")
    A(f"s_mov_b32 s48, 0\ns_mov_b32 s58, {1792*1024}")
    stamp(A,2)
    A("s_waitcnt vmcnt(0)\ns_barrier")
    stamp(A,3)
    A("s_cmp_ge_u32 s40, 4\ns_cbranch_scc1 k2_hi")
    A("s_setprio 1")
    for i in range(26):
        A("buffer_load_dwordx4 v2, s[32:35], s15 offen lds")
        if i<25: A("s_add_u32 m0, m0, 4096\ns_add_u32 s15, s15, 4096")
    A("s_mov_b32 s49, -1")
    A("s_waitcnt vmcnt(0)\ns_barrier")
    A("s_branch k2_go")
    A.label("k2_hi")
    A("s_setprio 2\ns_mov_b32 s49, 2")
    A.label("k2_go")
    A(f"ds_read_b128 {vr(K,4)}, v2")
    A("s_waitcnt lgkmcnt(0)")
    A(mfma32(SA,K,Q,"0"))
    A("s_nop 15")
    def max16(dst,S,first):
        if first:
            A(f"v_max3_f32 v{dst}, v{S}, v{S+1}, v{S+2}\nv_max_f32 v{dst}, v{dst}, v{S+3}")
            st=4
        else: st=0
        for r in range(st,16,2): A(f"v_max3_f32 v{dst}, v{dst}, v{S+r}, v{S+r+1}")
    max16(28,SA,True)
    A(f"v_add_f32 v28, {f2u(MOFF):#x}, v28")
    A.label("k2_setm")
    A("v_mov_b32 v29, v28\nv_mov_b32 v30, v2\nv_mov_b32 v31, v3\nv_permlane32_swap_b32 v28, v29\nv_max_f32 v28, v28, v29")
    A(f"ds_read_b128 {vr(K,4)}, v30")
    A(f"s_mov_b64 exec, s[50:51]\nds_read_b128 {vr(VA,4)}, v31\ns_mov_b64 exec, -1")
    for r in range(16): A(f"v_sub_f32 v{C+r}, 0, v28")
    A("s_waitcnt lgkmcnt(1)\ns_nop 0")
    A(mfma32(SA,K,Q,C))
    A(f"ds_read_b128 {vr(K,4)}, v30 offset:2048")
    for r in range(16): A(f"v_mov_b32 v{O+r}, 0")
    for r in range(4): A(f"v_mov_b32 v{P+4+r}, 0")
    A("s_mov_b32 s57, 0")
    A.label("k2_loop")
    A("s_cmp_eq_u32 s57, s49\ns_cbranch_scc1 k2_bar")
    A.label("k2_barret")
    A("s_sub_u32 s14, s57, 1\ns_or_b32 s14, s14, s48\ns_cmp_lt_u32 s14, 14")
    A(f"s_cselect_b32 s38, s34, 0\ns_cselect_b32 s26, s58, 0" )
    for u in range(4):
        Sc,Sn=(SA,SB) if u%2==0 else (SB,SA)
        e=lambda r:A(f"v_exp_f32 v{Sc+r}, v{Sc+r}")
        c=lambda d:A(f"v_cvt_pk_bf16_f32 v{P+d}, v{Sc+2*d}, v{Sc+2*d+1}")
        st=u>>1; t=u&1
        A("s_waitcnt lgkmcnt(0)")
        A(mfma32(Sn,K,Q,C))
        A(f"ds_read_b128 {vr(K,4)}, v30 offset:{(u+2)*2048}")
        for r in range(5): e(r)
        A(mfma32(O,VB,P+4,O))
        A(f"s_mov_b64 exec, s[50:51]\nds_read_b128 {vr(VB,4)}, v31 offset:{u*2048+512}\ns_mov_b64 exec, -1")
        e(5);e(6);e(7)
        for d in range(4): c(d)
        if t==1: A("s_waitcnt vmcnt(3)")
        A(mfma32(GACC+16*t,GA+4*st,GBf+4*u,GACC+16*t))
        A(f"buffer_load_dwordx4 {vr(GBf+4*u,4)}, v2, s[36:39], s{54+t} offen offset:{1024*st}")
        if t==0:
            A(f"s_add_u32 m0, s47, {1024*st}\ns_add_u32 s14, s56, {16384*st}")
            A("buffer_load_dwordx4 v152, s[24:27], s14 offen lds")
        else:
            for i in range(2): A(f"ds_read_b64_tr_b16 {vr(GA+4*(1-st)+2*i,2)}, v153 offset:{1024*(1-st)+512*i}")
        for r in range(8,13): e(r)
        A(mfma32(O,VA,P,O))
        A(f"s_mov_b64 exec, s[50:51]\nds_read_b128 {vr(VA,4)}, v31 offset:{(u+1)*2048}\ns_mov_b64 exec, -1")
        for r in range(13,16): e(r)
        for d in range(4,8): c(d)
    A("v_add_u32 v30, 8192, v30\nv_add_u32 v31, 8192, v31")
    A("s_add_u32 s54, s54, 2048\ns_add_u32 s55, s55, 2048\ns_add_u32 s56, s56, 32768")
    A("s_add_u32 s57, s57, 1\ns_cmp_lt_u32 s57, 16\ns_cbranch_scc1 k2_loop")
    A("s_waitcnt lgkmcnt(0)")
    A(mfma32(O,VB,P+4,O))
    stamp(A,4)
    A("s_nop 15")
    A(f"v_max3_f32 v28, |v{O}|, |v{O+1}|, |v{O+2}|\nv_max3_f32 v28, v28, |v{O+3}|, |v{O+4}|\nv_max3_f32 v28, v28, |v{O+5}|, |v{O+6}|")
    A(f"v_max3_f32 v28, v28, |v{O+7}|, v{O+8}")
    A(f"v_add_f32 v29, v{O}, v{O+1}")
    for r in range(2,9): A(f"v_add_f32 v29, v29, v{O+r}")
    A("v_fma_f32 v28, 0, v29, v28")
    A(f"v_cmp_ngt_f32 vcc, {f2u(2.0**120):#x}, v28")
    A(f"v_rcp_f32 v28, v{O+8}")
    A("s_cmp_eq_u32 s48, 0\ns_cbranch_scc0 k2_fin")
    A("s_nop 2\ns_cbranch_vccnz k2_fallback")
    A.label("k2_fin")
    for r in range(8): A(f"v_mul_f32 v{O+r}, v28, v{O+r}")
    for d in range(4): A(f"v_cvt_pk_bf16_f32 v{P+d}, v{O+2*d}, v{O+2*d+1}")
    A(f"s_lshl_b32 s14, s45, 5\ns_add_u32 s14, s14, s43\ns_lshl_b32 s14, s14, 10\ns_add_u32 s14, s14, {WS_O}")
    A(f"buffer_store_dwordx4 {vr(P,4)}, v2, s[32:35], s14 offen{WT}")
    A("s_lshl_b32 s14, s41, 13\ns_lshl_b32 s15, s42, 12\ns_add_u32 s14, s14, s15\nv_add_u32 v28, s14, v2")
    A("s_lshl_b32 s14, s42, 15\ns_lshl_b32 s15, s41, 11\ns_add_u32 s14, s14, s15\nv_add_u32 v29, s14, v2")
    A("s_barrier")
    stamp(A,5)
    for t in range(2):
        for q in range(4): A(f"ds_write_b128 v28, {vr(GACC+16*t+4*q,4)} offset:{t*32768+q*1024}")
    A("s_waitcnt lgkmcnt(0)\ns_barrier")
    reduce_read(A,96,29,32)
    for r in range(8): A(f"v_mul_f32 v{104+r}, {f2u(-LOG2E):#x}, v{96+r}")
    for r in range(8): A(f"v_exp_f32 v{104+r}, v{104+r}")
    for r in range(8): A(f"v_add_f32 v{104+r}, 1.0, v{104+r}")
    for r in range(8): A(f"v_rcp_f32 v{104+r}, v{104+r}")
    for r in range(8): A(f"v_mul_f32 v{96+r}, v{96+r}, v{104+r}")
    A(f"s_lshl_b32 s14, s2, 3\ns_add_u32 s14, s14, s40\ns_lshl_b32 s14, s14, 11\ns_add_u32 s14, s14, {WS_G}")
    A(f"buffer_store_dwordx4 v[96:99], v2, s[32:35], s14 offen{WT}\nbuffer_store_dwordx4 v[100:103], v2, s[32:35], s14 offen offset:1024{WT}")
    stamp_out(A,1)
    A.label("k2_end")
    A("s_endpgm")
    A.label("k2_bar")
    A("s_cmp_eq_u32 s49, 2\ns_cbranch_scc0 k2_drop")
    A(f"s_barrier\ns_mov_b32 s49, {PRIO_IT}\ns_branch k2_barret")
    A.label("k2_drop")
    A("s_setprio 0\ns_mov_b32 s49, -1\ns_branch k2_barret")
    A.label("k2_fallback")
    A("s_mov_b32 s48, 0x100\ns_mov_b32 s49, -1\ns_mov_b32 s57, 0\nv_mov_b32 v30, v2\nv_mov_b32 v28, 0xff800000")
    A.label("k2_fb_loop")
    A(f"ds_read_b128 {vr(K,4)}, v30\nv_add_u32 v30, 2048, v30\ns_waitcnt lgkmcnt(0)")
    A(mfma32(SA,K,Q,"0"))
    A("s_nop 15")
    max16(28,SA,False)
    A("s_add_u32 s57, s57, 1\ns_cmp_lt_u32 s57, 64\ns_cbranch_scc1 k2_fb_loop")
    A("s_branch k2_setm")

K3_LDS=131072
def k3(A):
    A.label("k3_kernel")
    A("s_cmp_ge_u32 s2, 256\ns_cbranch_scc1 k3_end")
    stamp(A,0,True); stamp(A,1)
    A("s_load_dwordx2 s[4:5], s[0:1], 0")
    A("s_load_dwordx2 s[6:7], s[0:1], 16")
    A("s_load_dwordx2 s[10:11], s[0:1], 56")
    A("s_load_dwordx2 s[12:13], s[0:1], 72")
    A("v_lshrrev_b32 v1, 6, v0\nv_and_b32 v0, 63, v0\nv_readfirstlane_b32 s40, v1")
    A("s_and_b32 s3, s2, 7\ns_lshl_b32 s3, s3, 2\ns_bfe_u32 s14, s2, 0x20003\ns_add_u32 s43, s3, s14")
    A("s_lshr_b32 s44, s2, 5\ns_lshr_b32 s42, s40, 2\ns_and_b32 s41, s40, 3")
    A("v_lshlrev_b32 v2, 4, v0")
    A("v_lshrrev_b32 v4, 3, v0\nv_lshlrev_b32 v3, 10, v4\nv_bfe_u32 v4, v0, 4, 1\nv_lshlrev_b32 v4, 2, v4\nv_xor_b32 v4, v4, v0\nv_and_b32 v4, 7, v4\nv_lshl_add_u32 v3, v4, 4, v3")
    A("s_lshl_b32 s14, s44, 7\nv_add_u32 v3, s14, v3")
    A("s_lshl_b32 s46, s40, 16\ns_lshl_b32 s47, s40, 13\ns_add_u32 m0, s47, 65536")
    A(f"s_lshl_b32 s48, s43, 1\ns_add_u32 s48, s48, s42\ns_lshl_b32 s48, s48, 2\ns_add_u32 s48, s48, s41\ns_lshl_b32 s48, s48, 13\ns_add_u32 s48, s48, {WS_O}\ns_add_u32 s49, s48, 4096")
    A(f"s_lshl_b32 s50, s2, 3\ns_add_u32 s50, s50, s40\ns_lshl_b32 s50, s50, 11\ns_add_u32 s50, s50, {WS_G}")
    A("s_lshl_b32 s51, s43, 1\ns_add_u32 s51, s51, s42\ns_lshl_b32 s51, s51, 15\ns_add_u32 s51, s51, s14\ns_lshl_b32 s15, s41, 5\ns_add_u32 s51, s51, s15")
    A("v_and_b32 v9, 31, v0\nv_lshlrev_b32 v9, 10, v9\nv_lshrrev_b32 v10, 5, v0\nv_lshl_add_u32 v9, v10, 3, v9")
    A("s_waitcnt lgkmcnt(0)")
    srd(A,20,6,512*1024); srd(A,32,12,WS_SIZE)
    OF=16; ACS=64; AF=96
    for i in range(8):
        A("buffer_load_dwordx4 v3, s[20:23], s46 offen lds")
        A(f"buffer_load_dwordx4 {vr(OF+4*i,4)}, v2, s[32:35], {'s48' if i<4 else 's49'} offen offset:{1024*(i%4)}")
        if i<7: A("s_add_u32 m0, m0, 1024\ns_add_u32 s46, s46, 8192")
    srd(A,16,4,2048*1024); srd(A,28,10,2048*1024)
    A("buffer_load_dwordx4 v[48:51], v2, s[32:35], s50 offen\nbuffer_load_dwordx4 v[52:55], v2, s[32:35], s50 offen offset:1024")
    A("buffer_load_dwordx2 v[56:57], v9, s[16:19], s51 offen\nbuffer_load_dwordx2 v[58:59], v9, s[16:19], s51 offen offset:16")
    A("v_bfe_u32 v7, v0, 2, 2\nv_lshl_add_u32 v4, v10, 2, v7\nv_lshlrev_b32 v4, 7, v4")
    A("v_bfe_u32 v7, v0, 3, 1\nv_lshl_add_u32 v4, v7, 6, v4\nv_bfe_u32 v7, v0, 4, 1\nv_lshl_add_u32 v4, v7, 5, v4\nv_and_b32 v7, 3, v0\nv_lshl_add_u32 v4, v7, 3, v4")
    A("s_lshl_b32 s14, s41, 14\ns_add_u32 s14, s14, 65536\nv_add_u32 v4, s14, v4\nv_xor_b32 v5, 64, v4")
    A("v_add_u32 v6, s47, v2")
    A("s_lshl_b32 s14, s42, 15\ns_lshl_b32 s15, s41, 11\ns_add_u32 s14, s14, s15\nv_add_u32 v7, s14, v2")
    stamp(A,2)
    A("s_waitcnt vmcnt(4)\ns_barrier")
    stamp(A,3)
    def rd(n):
        for cb in range(2):
            for i in range(2): A(f"ds_read_b64_tr_b16 {vr(AF+8*(n%3)+4*cb+2*i,2)}, v{4+cb} offset:{n*2048+i*1024}")
    rd(0); rd(1)
    for n in range(8):
        if n+2<8: rd(n+2)
        A(f"s_waitcnt lgkmcnt({4*min(2,7-n)})")
        for cb in range(2): A(mfma32(ACS+16*cb,AF+8*(n%3)+4*cb,OF+4*n,(ACS+16*cb) if n else "0"))
    A("s_waitcnt vmcnt(0)")
    for d in range(4): A(f"v_lshlrev_b32 v{16+2*d}, 16, v{56+d}\nv_and_b32 v{17+2*d}, 0xffff0000, v{56+d}")
    A("s_nop 4")
    stamp(A,4)
    for q in range(8): A(f"ds_write_b128 v6, {vr(ACS+4*q,4)} offset:{q*1024}")
    A("s_waitcnt lgkmcnt(0)\ns_barrier")
    reduce_read(A,24,7,64)
    for r in range(8): A(f"v_fma_f32 v{16+r}, v{24+r}, v{48+r}, v{16+r}")
    for d in range(4): A(f"v_cvt_pk_bf16_f32 v{32+d}, v{16+2*d}, v{17+2*d}")
    A("buffer_store_dwordx2 v[32:33], v9, s[28:31], s51 offen\nbuffer_store_dwordx2 v[34:35], v9, s[28:31], s51 offen offset:16")
    stamp(A,5); stamp_out(A,2)
    A.label("k3_end")
    A("s_endpgm")

def main(out):
    hdr=open("cdna_kernels/"+NAME+".s.ref").read().split("\n")
    head=[l for l in hdr if l.startswith(";") and "@launch" not in l and "Override" not in l and "grid=ceil" not in l]
    T="\n".join(head)+"\n"
    T+=f"; @launch kernel=k1_kernel grid=(256,1,1) block=(512,1,1) lds={K1_LDS}\n"
    T+=f"; @launch kernel=k2_kernel grid=(256,1,1) block=(512,1,1) lds={K2_LDS}\n"
    T+=f"; @launch kernel=k3_kernel grid=(256,1,1) block=(512,1,1) lds={K3_LDS}\n"
    T+='.amdgcn_target "amdgcn-amd-amdhsa--gfx950"\n.text\n'
    body=""
    for nm,fn in (("k1_kernel",k1),("k2_kernel",k2),("k3_kernel",k3)):
        A=Asm(); fn(A)
        for e in hazard_check(A.text()): print(nm,e)
        body+=f".globl {nm}\n.p2align 8\n.type {nm},@function\n"+A.text()
    T+=body+'.section .rodata,"a"\n'+kdesc("k1_kernel",256,100)+kdesc("k2_kernel",160,100)+kdesc("k3_kernel",128,100)
    open(out,"w").write(T)
if __name__=="__main__":
    main(sys.argv[1] if len(sys.argv)>1 else "cdna_kernels/"+NAME+".s")
```

```python
import sys, struct, os
from asmlib import *
import gen2
from gen2 import NAME,WS_Q,WS_KV,WS_H,WS_O,WS_G,WS_SIZE,f2u,LOG2E,stamp,stamp_out,weave,k2,k3,K2_LDS,K3_LDS,WT
TOUCH=int(os.environ.get("TOUCH","1"))
FINE=int(os.environ.get("FINE","0"))
RAMP=int(os.environ.get("RAMP","1"))
WS_CS=20<<20; WS_XS=WS_CS+(512<<10); WS_FL=21<<20; WS_T=WS_FL+65536
SPIN=200000
class VM:
    def __init__(s): s.ops=[]
    def add(s,tag,n=1): s.ops+= [tag]*n
    def mark(s,tag): s.ops.append(("m",tag))
    def n_after(s,tag):
        idx=max(i for i,t in enumerate(s.ops) if t==tag or t==("m",tag))
        return sum(1 for t in s.ops[idx+1:] if not (isinstance(t,tuple) and t[0]=="m"))
WB=0; WSLOT=20480; XB=5*WSLOT; XSLOT=16384; SCR=XB+3*XSLOT; K1_LDS=SCR+8192
EX,EW,OX,OW,ACC=32,36,56,60,80
CSL,XSL,RA,RB,WHI=160,200,216,236,240
ORD=int(os.environ.get("ORD","1"))
def weave2(A,g,mf,fill):
    rd=[f for f in fill if f.startswith("ds_read")]; ot=[f for f in fill if not f.startswith("ds_read")]
    if ORD==0: return weave(A,mf,fill)
    if g==1 or ORD==2:
        for r in rd: A(r)
        weave(A,mf,ot)
    else:
        h=(len(rd)+1)//2
        A(mf[0])
        for r in rd[:h]: A(r)
        A(mf[1])
        for r in rd[h:]: A(r)
        weave(A,mf[2:],ot)
def k1(A):
    A.label("k1_kernel")
    A("s_cmp_ge_u32 s2, 256\ns_cbranch_scc1 k1_end")
    stamp(A,0,True); stamp(A,1)
    A("s_load_dwordx4 s[4:7], s[0:1], 0")
    A("s_load_dwordx4 s[8:11], s[0:1], 32")
    A("s_load_dwordx4 s[12:15], s[0:1], 64")
    A("v_lshrrev_b32 v1, 6, v0\nv_and_b32 v0, 63, v0\nv_readfirstlane_b32 s40, v1")
    A("s_and_b32 s3, s2, 7\ns_lshr_b32 s59, s2, 3")
    A("s_and_b32 s43, s3, 1\ns_lshl_b32 s43, s43, 3\ns_and_b32 s68, s59, 7\ns_add_u32 s43, s43, s68")
    A("s_lshr_b32 s69, s3, 1\ns_lshr_b32 s70, s59, 3\ns_lshl_b32 s44, s69, 2\ns_add_u32 s44, s44, s70")
    A("s_add_u32 s45, s43, s44\ns_and_b32 s45, s45, 15\ns_lshr_b32 s55, s45, 1\ns_and_b32 s71, s45, 1")
    A("s_and_b32 s41, s40, 3\ns_lshr_b32 s42, s40, 2")
    A("s_mul_i32 s72, s69, 6\ns_add_u32 s72, s72, s70\ns_mul_i32 s73, s69, 7\ns_lshl_b32 s68, s70, 1\ns_add_u32 s73, s73, s68")
    A("s_cmp_eq_u32 s70, 3\ns_cselect_b32 s57, 1, 0")
    A("s_xor_b32 s68, s42, s71\ns_lshl_b32 s68, s68, 5\ns_lshl_b32 s74, s41, 3\ns_add_u32 s68, s68, s74")
    A("v_lshrrev_b32 v20, 3, v0\nv_add_u32 v21, s68, v20")
    A("v_bfe_u32 v22, v0, 4, 1\nv_lshlrev_b32 v22, 2, v22\nv_xor_b32 v22, v22, v0\nv_and_b32 v22, 7, v22\nv_lshlrev_b32 v22, 4, v22")
    A("v_mul_u32_u24 v2, 3072, v21\nv_add_u32 v2, v2, v22\ns_lshl_b32 s68, s72, 7\nv_add_u32 v2, s68, v2")
    A("v_mul_u32_u24 v5, 3584, v21\nv_add_u32 v5, v5, v22\ns_lshl_b32 s68, s73, 7\nv_add_u32 v5, s68, v5\nv_xor_b32 v6, 32, v5")
    A("s_xor_b32 s68, s42, 1\ns_lshl_b32 s68, s68, 6\ns_lshl_b32 s74, s41, 4\ns_add_u32 s68, s68, s74")
    A(f"s_lshl_b32 s47, s68, 7\ns_add_u32 s47, s47, {XB}\ns_lshl_b32 s74, s43, 7\ns_add_u32 s68, s68, s74")
    A("v_add_u32 v7, s68, v20\nv_lshlrev_b32 v7, 10, v7\nv_lshrrev_b32 v23, 4, v0\nv_xor_b32 v23, v23, v0\nv_and_b32 v23, 7, v23\nv_lshl_add_u32 v7, v23, 4, v7")
    A("v_xor_b32 v8, 64, v7\nv_add_u32 v8, 8192, v8")
    A("s_lshl_b32 s46, s41, 10")
    A("s_cmp_eq_u32 s57, 1\ns_cbranch_scc1 k1_tB")
    A(f"v_add_u32 v3, 128, v5\nv_add_u32 v4, 128, v6\ns_mov_b32 s56, {64*3584}")
    A("s_waitcnt lgkmcnt(0)")
    srd(A,36,8,512*3584); srd(A,60,10,512*3584)
    A("s_branch k1_tD")
    A.label("k1_tB")
    A(f"v_add_u32 v3, 128, v2\nv_add_u32 v4, 256, v2\ns_mov_b32 s56, {64*3072}")
    A("s_waitcnt lgkmcnt(0)")
    srd(A,36,6,512*3072); srd(A,60,6,512*3072)
    A.label("k1_tD")
    srd(A,16,4,2048*1024); srd(A,20,6,512*3072); srd(A,24,8,512*3584); srd(A,28,10,512*3584)
    SRDS=["s[20:23]","s[36:39]","s[60:63]","s[24:27]","s[28:31]"]; SOFF=["s48","s49","s49","s50","s50"]
    def dmaW(vm,n):
        L=[]
        pre=f"s_add_u32 s54, s55, {n//2}\ns_and_b32 s54, s54, 7\ns_mul_i32 s48, s54, {64*3072}\ns_mul_i32 s49, s54, s56\ns_mul_i32 s50, s54, {64*3584}\n"
        for c in range(5):
            vm.add(("W",n))
            L.append((f"s_add_u32 m0, s46, {WB+(n%5)*WSLOT+c*4096}\n")+(pre if c==0 else "s_nop 0\n")+f"buffer_load_dwordx4 v{2+c}, {SRDS[c]}, {SOFF[c]} offen lds")
        return L
    def dmaX(vm,j):
        vm.add(("X",j),2)
        return [f"s_add_u32 m0, s47, {(j%3)*XSLOT}\ns_add_u32 s53, s55, {j}\ns_and_b32 s53, s53, 7\ns_lshl_b32 s53, s53, 7\nbuffer_load_dwordx4 v7, s[16:19], s53 offen lds",
                f"s_add_u32 m0, s47, {(j%3)*XSLOT+1024}\ns_nop 0\nbuffer_load_dwordx4 v8, s[16:19], s53 offen lds"]
    A(f"s_mul_i32 s75, s42, {WSLOT}\ns_add_u32 s75, s75, s46")
    vm0=VM()
    for l in dmaX(vm0,0): A(l)
    for l in dmaW(vm0,0): A(l.replace("m0, s46","m0, s75"))
    ntouch=0
    if TOUCH:
        A("s_lshl_b32 s68, s59, 3\ns_add_u32 s68, s68, s40")
        A("s_and_b32 s74, s3, 1\ns_lshl_b32 s74, s74, 20\ns_lshl_b32 s76, s68, 12\ns_add_u32 s74, s74, s76")
        A("v_lshlrev_b32 v24, 7, v0\ns_mov_b32 exec_hi, 0\nbuffer_load_dword v1, v24, s[16:19], s74 offen")
        A("v_and_b32 v25, 7, v0\nv_lshlrev_b32 v25, 7, v25\nv_mad_u32_u24 v26, v20, v27, v25" if False else
          "v_and_b32 v25, 7, v0\nv_lshlrev_b32 v25, 7, v25\nv_mul_u32_u24 v26, 3072, v20\nv_add_u32 v26, v26, v25\nv_mul_u32_u24 v27, 3584, v20\nv_add_u32 v27, v27, v25")
        A("s_mul_i32 s74, s68, 6144\ns_mul_i32 s76, s69, 768\ns_add_u32 s74, s74, s76\ns_mov_b64 exec, 0x3f3f\nbuffer_load_dword v1, v26, s[20:23], s74 offen")
        A("s_mul_i32 s74, s68, 7168\ns_mul_i32 s76, s69, 896\ns_add_u32 s74, s74, s76\ns_mov_b64 exec, 0x7f7f\nbuffer_load_dword v1, v27, s[24:27], s74 offen\nbuffer_load_dword v1, v27, s[28:31], s74 offen\ns_mov_b64 exec, -1")
        ntouch=4
    srd(A,32,14,WS_SIZE); srd(A,64,12,256)
    A(f"s_add_u32 s76, s14, {WS_T}\ns_addc_u32 s77, s15, 0\ns_load_dword s58, s[76:77], 0")
    A("v_and_b32 v20, 31, v0\nv_lshrrev_b32 v21, 5, v0\nv_bfe_u32 v22, v0, 1, 3")
    A("v_xor_b32 v22, v22, v21\nv_lshlrev_b32 v22, 4, v22\nv_lshl_add_u32 v9, v20, 7, v22")
    A(f"s_lshl_b32 s68, s71, 6\nv_xor_b32 v9, s68, v9\ns_lshl_b32 s68, s41, 12\ns_add_u32 s68, s68, {XB}")
    A("v_xor_b32 v10, 32, v9\nv_xor_b32 v11, 64, v9\nv_xor_b32 v12, 0x60, v9")
    for i in range(9,13): A(f"v_add_u32 v{i}, s68, v{i}")
    A("v_bfe_u32 v22, v0, 2, 2\nv_lshl_add_u32 v22, v21, 3, v22\nv_lshlrev_b32 v22, 7, v22\nv_and_b32 v23, 3, v0\nv_lshl_add_u32 v22, v23, 3, v22")
    A("v_bfe_u32 v23, v0, 3, 1\nv_xor_b32 v23, s42, v23\nv_lshl_add_u32 v22, v23, 6, v22")
    A("v_bfe_u32 v23, v0, 4, 1\nv_lshl_add_u32 v13, v23, 5, v22")
    A("v_lshl_add_u32 v16, v23, 12, v13\nv_add_u32 v16, 0x3000, v16\nv_xor_b32 v17, 32, v16")
    A("s_cmp_eq_u32 s57, 1\ns_cselect_b64 vcc, -1, 0")
    A("v_add_u32 v24, 0x1000, v13\nv_add_u32 v25, 0x2000, v13\nv_subrev_u32 v26, 0x2000, v16\nv_subrev_u32 v27, 0x2000, v17")
    A("v_cndmask_b32 v14, v26, v24, vcc\nv_cndmask_b32 v15, v27, v25, vcc")
    for i in range(5): A(f"v_add_u32 v{WHI+i}, {3*WSLOT}, v{13+i}")
    A("v_lshlrev_b32 v18, 4, v0\nv_mov_b32 v19, 0x3f803f80")
    for i in range(22,30): A(f"v_mov_b32 v{i}, 0")
    for i in range(5): A(f"v_mov_b32 v{RA+4*i+1}, 0\nv_mov_b32 v{RA+4*i+2}, 0\nv_mov_b32 v{RA+4*i+3}, 0")
    A(f"v_mov_b32 v{RB+1}, 0\nv_mov_b32 v{RB+2}, 0\nv_mov_b32 v{RB+3}, 0")
    A(f"s_lshl_b32 s78, s44, 1\ns_add_u32 s78, s78, s42\ns_mul_i32 s78, s78, 10240\ns_add_u32 s78, s78, {WS_CS}")
    A(f"s_lshl_b32 s79, s43, 2\ns_add_u32 s79, s79, s41\ns_mov_b32 s68, s79\ns_lshl_b32 s79, s79, 12\ns_add_u32 s79, s79, {WS_XS}")
    A("s_cmp_eq_u32 s42, 1\ns_cbranch_scc1 k1_g1")
    def reads(X,W,s,ks):
        kk=2*(s%2)+ks; xo=((s//2)%3)*XSLOT
        r=[f"ds_read_b128 {vr(X,4)}, v{9+kk} offset:{xo}"]
        sl=s%5; base=13 if sl<3 else WHI; so=(sl if sl<3 else sl-3)*WSLOT
        for j in range(5):
            for i in range(2): r.append(f"ds_read_b64_tr_b16 {vr(W+4*j+2*i,2)}, v{base+j} offset:{so+(16*ks+4*i)*128}")
        return r
    def group(g):
        vm=VM(); vm.add(("X",0),2); vm.add(("W",g),5); vm.add("t",ntouch)
        pend=[]
        later=[("X",1),("W",2+g),("W",4) if g==0 else ("X",2)]
        gen=lambda it: (dmaX(vm,it[1]) if it[0]=="X" else dmaW(vm,it[1]))
        if not RAMP:
            for it in later:
                for l in gen(it): A(l)
            later=[]
        stamp(A,2)
        need=vm.n_after(("W",0)) if g==0 else vm.n_after(("X",0))
        A(f"s_waitcnt vmcnt({need}) lgkmcnt(0)\ns_barrier")
        stamp(A,3)
        A("s_add_u32 s58, s58, 1")
        if ORD==1 and g==0: A("s_setprio 1")
        for l in reads(EX,EW,0,0): A(l)
        csl=[]
        for s in range(16):
            fill=reads(OX,OW,s,1)
            if later and s<2:
                fill+=gen(later.pop(0))
            if s==10: fill.append(f"buffer_load_dword v21, v20, s[32:35], 0 offen sc1"); vm.add("fl")
            if s==9:
                fill+=[f"s_lshl_b32 s59, s43, 6\ns_add_u32 s59, s59, {WS_FL}\ns_lshl_b32 s74, s44, 6\ns_add_u32 s74, s74, {WS_FL+1024}",
                       "v_and_b32 v20, 15, v0\nv_lshlrev_b32 v20, 2, v20\nv_and_b32 v21, 16, v0\nv_cmp_ne_u32 vcc, 0, v21",
                       "v_add_u32 v21, s74, v20\nv_add_u32 v20, s59, v20\nv_cndmask_b32 v20, v20, v21, vcc"]
            if s==12:
                for j in range(5):
                    for i in range(2):
                        csl.append((f"s_add_u32 s59, s78, {2048*j}\n" if i==0 else "")+f"buffer_load_dwordx4 {vr(CSL+8*j+4*i,4)}, v18, s[32:35], s59 offen offset:{1024*i} sc1")
            if s in (12,13):
                for _ in range(4 if s==12 else 2): fill.append(csl.pop(0)); vm.add("cs")
            if s==14:
                fill.append(f"s_waitcnt vmcnt({vm.n_after('xs')})")
                for i in range(2,16,2): fill.append(f"v_add_f32 v{XSL}, v{XSL}, v{XSL+i}\nv_add_f32 v{XSL+1}, v{XSL+1}, v{XSL+i+1}")
                fill+=[f"v_mov_b32 v22, v{XSL}\nv_mov_b32 v23, v{XSL+1}\ns_nop 1\nv_permlane32_swap_b32 v22, v{XSL}\nv_permlane32_swap_b32 v23, v{XSL+1}",
                       f"v_add_f32 v22, v22, v{XSL}\nv_add_f32 v23, v23, v{XSL+1}\nv_mul_f32 v22, {f2u(1/512):#x}, v22\nv_mul_f32 v23, {f2u(1/512):#x}, v23",
                       f"v_cvt_pk_bf16_f32 v{RB}, -v22, -v22\nv_fma_f32 v23, -v22, v22, v23\nv_max_f32 v23, 0, v23",
                       f"v_cvt_pk_bf16_f32 v23, v23, v23\nv_and_b32 v23, 0xffff0000, v23\nv_add_f32 v23, {f2u(1e-5):#x}, v23",
                       "v_cvt_pk_bf16_f32 v23, v23, v23\nv_and_b32 v23, 0xffff0000, v23\nv_sqrt_f32 v23, v23\ns_nop 0",
                       f"v_cvt_pk_bf16_f32 v23, v23, v23\nv_and_b32 v23, 0xffff0000, v23\nv_rcp_f32 v24, v23\nv_mov_b32 v{RB+1}, v{RB}"]
            if s==15:
                fill.append(f"s_waitcnt vmcnt({vm.n_after('cs')})")
                for j in range(5):
                    c=CSL+8*j
                    fill.append(f"v_add_f32 v{c}, v{c}, v{c+1}\nv_add_f32 v{c+2}, v{c+2}, v{c+3}\nv_add_f32 v{c+4}, v{c+4}, v{c+5}\nv_add_f32 v{c+6}, v{c+6}, v{c+7}")
                    fill.append(f"v_add_f32 v{c}, v{c}, v{c+2}\nv_add_f32 v{c+4}, v{c+4}, v{c+6}\nv_add_f32 v{c}, v{c}, v{c+4}")
            A("s_waitcnt lgkmcnt(0)")
            if FINE and s>0: A(f"v_writelane_b32 v250, s96, {s-1}")
            weave2(A,g,[mfma32(ACC+16*j,EW+4*j,EX,(ACC+16*j) if s else "0") for j in range(5)],fill)
            def dots(X,W,lab):
                if g==1:
                    for d in range(4): A(f"v_dot2c_f32_bf16 v22, v{X+d}, v19\nv_dot2c_f32_bf16 v23, v{X+d}, v{X+d}")
                A(f"s_cmp_eq_u32 s41, {2*g}\ns_cbranch_scc0 {lab}")
                for d in range(4):
                    for j in range(5): A(f"v_dot2c_f32_bf16 v{24+j}, v{W+4*j+d}, v19")
            if s==0:
                dots(EX,EW,f"k1_d0_{g}"); A.label(f"k1_d0_{g}")
            if s<15:
                needs=[]
                if (s+1)%2==g: needs.append(vm.n_after(("W",s+1)))
                if s%2==1: needs.append(vm.n_after(("X",(s+1)//2)))
                if s==3: needs.append(vm.n_after("pub"))
                w=f"vmcnt({min(needs)}) " if needs else ""
                A(f"s_waitcnt {w}lgkmcnt(0)\ns_barrier")
                if FINE: A("s_memtime s[96:97]")
            else: A("s_waitcnt lgkmcnt(0)")
            fill=reads(EX,EW,s+1,0) if s<15 else []
            if later and s<2: fill+=gen(later.pop(0))
            if (s+1)%2==g:
                if s+5<16: fill+=dmaW(vm,s+5)
            else:
                jx=(s+5)//2 if s%2==1 else s//2+2
                if jx<8: fill+=dmaX(vm,jx)
            if s==11:
                fill.append(f"s_waitcnt vmcnt({vm.n_after('fl')})\nv_cmp_ne_u32 vcc, s58, v21\ns_nop 4\ns_cbranch_vccnz k1_spin{g}\nk1_spinret{g}:")
                for i in range(4): fill.append(f"buffer_load_dwordx4 {vr(XSL+4*i,4)}, v18, s[32:35], s79 offen offset:{1024*i} sc1"); vm.add("xs")
            if s==12:
                for _ in range(4): fill.append(csl.pop(0)); vm.add("cs")
            if s==15 and g==1:
                fill.append("s_cmp_eq_u32 s40, 7\ns_cbranch_scc0 k1_nocnt\nv_mov_b32 v30, 1\nv_mov_b32 v31, 0\ns_mov_b64 exec, 1\nbuffer_atomic_add v30, v31, s[64:67], 0 offen sc0\ns_mov_b64 exec, -1\nk1_nocnt:")
            if s==15:
                for j in range(5):
                    c=CSL+8*j
                    fill.append(f"v_and_b32 v{c+1}, 0xffff0000, v{c}\nv_sub_f32 v{c}, v{c}, v{c+1}\nv_and_b32 v{c+2}, 0xffff0000, v{c}\nv_sub_f32 v{c}, v{c}, v{c+2}")
                    fill.append(f"v_cvt_pk_bf16_f32 v{RA+4*j}, v{c+1}, v{c+2}\nv_cvt_pk_bf16_f32 v{RA+4*j+1}, v{c}, 0")
            weave2(A,g,[mfma32(ACC+16*j,OW+4*j,OX,ACC+16*j) for j in range(5)],fill)
            if s==0:
                dots(OX,OW,f"k1_d1_{g}")
                A("s_nop 2")
                for j in range(5): A(f"v_mov_b32 v{CSL+j}, v{24+j}")
                A("s_and_b32 s59, s45, 4\ns_lshl_b32 s59, s59, 8\ns_and_b32 s74, s45, 8\ns_lshl_b32 s74, s74, 6\ns_add_u32 s59, s59, s74\ns_and_b32 s74, s45, 3\ns_lshl_b32 s74, s74, 2\ns_add_u32 s59, s59, s74\ns_add_u32 s59, s59, s78")
                for j in range(5): A(f"v_permlane32_swap_b32 v{24+j}, v{CSL+j}")
                for j in range(5): A(f"v_add_f32 v{24+j}, v{24+j}, v{CSL+j}")
                A("s_mov_b32 exec_hi, 0")
                for j in range(5): A(f"buffer_store_dword v{24+j}, v18, s[32:35], s59 offen sc1\ns_add_u32 s59, s59, 2048")
                A("s_mov_b64 exec, -1")
                A.label(f"k1_d1_{g}")
                if g==1:
                    A(f"s_nop 2\nv_mov_b32 v{CSL+6}, v22\nv_mov_b32 v{CSL+7}, v23\ns_nop 1")
                    A(f"v_permlane32_swap_b32 v22, v{CSL+6}\nv_permlane32_swap_b32 v23, v{CSL+7}\nv_add_f32 v22, v22, v{CSL+6}\nv_add_f32 v23, v23, v{CSL+7}")
                    A("s_and_b32 s59, s45, 6\ns_lshl_b32 s59, s59, 9\ns_and_b32 s74, s45, 8\ns_lshl_b32 s74, s74, 6\ns_add_u32 s59, s59, s74\ns_lshl_b32 s74, s71, 3\ns_add_u32 s59, s59, s74\ns_add_u32 s59, s59, s79\ns_mov_b32 exec_hi, 0\nbuffer_store_dwordx2 v[22:23], v18, s[32:35], s59 offen sc1\ns_mov_b64 exec, -1")
                vm.mark("pub")
            if s==3 and g==1:
                A("s_cmp_eq_u32 s40, 7\ns_cbranch_scc0 k1_nofl")
                A(f"s_lshl_b32 s59, s43, 6\ns_lshl_b32 s74, s44, 2\ns_add_u32 s59, s59, s74\ns_add_u32 s59, s59, {WS_FL}")
                A(f"s_lshl_b32 s74, s44, 6\ns_lshl_b32 s76, s43, 2\ns_add_u32 s74, s74, s76\ns_add_u32 s74, s74, {WS_FL+1024}")
                A("v_mov_b32 v31, s58\nv_mov_b32 v29, 0\ns_mov_b64 exec, 1")
                A("buffer_store_dword v31, v29, s[32:35], s59 offen sc1\nbuffer_store_dword v31, v29, s[32:35], s74 offen sc1")
                A("s_mov_b64 exec, -1")
                A.label("k1_nofl")
        if g==0: A("s_branch k1_epi")
    group(0)
    A.label("k1_g1")
    group(1)
    A.label("k1_epi")
    stamp(A,4)
    A("s_nop 0")
    for j in range(5): A(mfma32(ACC+16*j,RA+4*j,RB,ACC+16*j))
    A("v_mul_f32 v26, v24, v24\nv_mov_b32 v27, v26")
    A("v_and_b32 v20, 31, v0\nv_lshrrev_b32 v21, 5, v0\nv_lshlrev_b32 v20, 6, v20\nv_lshl_add_u32 v20, v21, 3, v20\ns_lshl_b32 s59, s40, 11\nv_add_u32 v20, s59, v20")
    A("v_lshlrev_b32 v22, 10, v21\nv_bfe_u32 v23, v0, 4, 1\nv_lshl_add_u32 v22, v23, 8, v22\nv_bfe_u32 v23, v0, 2, 2\nv_lshl_add_u32 v22, v23, 6, v22\nv_and_b32 v23, 3, v0\nv_lshl_add_u32 v22, v23, 3, v22\nv_add_u32 v22, s59, v22")
    A("s_barrier")
    def qkv_slot(acc,dL,tag):
        A(f"s_add_u32 s59, s72, {dL}\ns_lshr_b32 s74, s59, 3\ns_and_b32 s59, s59, 7\ns_lshl_b32 s59, s59, 1\ns_add_u32 s59, s59, s42\ns_lshl_b32 s59, s59, 7\ns_add_u32 s59, s59, s68")
        A(f"s_cmp_eq_u32 s74, 0\ns_cselect_b32 s75, 10, 11\ns_cselect_b32 s76, 0, {WS_KV}\ns_mov_b32 s77, {f2u(0.25*LOG2E):#x}\ns_cselect_b32 s77, s77, 1.0")
        A("s_lshl_b32 s59, s59, s75\ns_add_u32 s59, s59, s76\ns_lshl_b32 s75, 64, s75\ns_add_u32 s75, s75, s59")
        A("v_mul_f32 v28, s77, v24\nv_mov_b32 v29, v28")
        for r in range(0,16,2): A(f"v_pk_mul_f32 {vr(acc+r,2)}, {vr(acc+r,2)}, v[28:29]")
        for d in range(8): A(f"v_cvt_pk_bf16_f32 v{acc+d}, v{acc+2*d}, v{acc+2*d+1}")
        A(f"s_cmp_eq_u32 s74, 2\ns_cbranch_scc0 k1_st{tag}")
        for q in range(4): A(f"ds_write_b64 v20, {vr(acc+2*q,2)} offset:{16*q}")
        A("s_add_u32 s59, s59, 1024\ns_add_u32 s75, s75, 1024\ns_waitcnt lgkmcnt(0)")
        for hh in range(2):
            for ii in range(2): A(f"ds_read_b64_tr_b16 {vr(acc+4*hh+2*ii,2)}, v22 offset:{32*hh+512*ii}")
        A("s_waitcnt lgkmcnt(0)")
        A.label(f"k1_st{tag}")
        A(f"buffer_store_dwordx4 {vr(acc,4)}, v18, s[32:35], s59 offen{WT}\nbuffer_store_dwordx4 {vr(acc+4,4)}, v18, s[32:35], s75 offen{WT}")
    def f_slot(acc,soff,off):
        for r in range(8): A(f"v_max_f32 v{acc+r}, 0, v{acc+r}")
        for r in range(0,8,2): A(f"v_pk_mul_f32 {vr(acc+8+r,2)}, {vr(acc+8+r,2)}, v[26:27]")
        for r in range(0,8,2): A(f"v_pk_mul_f32 {vr(acc+r,2)}, {vr(acc+r,2)}, {vr(acc+8+r,2)}")
        for d in range(4): A(f"v_cvt_pk_bf16_f32 v{acc+d}, v{acc+2*d}, v{acc+2*d+1}")
        A(f"buffer_store_dwordx4 {vr(acc,4)}, v18, s[32:35], {soff} offen offset:{off}{WT}")
    qkv_slot(ACC,0,"a")
    A(f"s_mul_i32 s69, s68, 112\ns_lshl_b32 s70, s73, 2\ns_add_u32 s69, s69, s70\ns_lshl_b32 s70, s42, 1\ns_add_u32 s69, s69, s70\ns_lshl_b32 s69, s69, 10\ns_add_u32 s69, s69, {WS_H}\ns_add_u32 s70, s69, 4096")
    A("s_cmp_eq_u32 s57, 1\ns_cbranch_scc0 k1_eA")
    qkv_slot(ACC+16,1,"b"); qkv_slot(ACC+32,2,"c")
    A("s_branch k1_eD")
    A.label("k1_eA")
    f_slot(ACC+16,"s70",0); f_slot(ACC+32,"s70",1024)
    A.label("k1_eD")
    f_slot(ACC+48,"s69",0); f_slot(ACC+64,"s69",1024)
    A("s_cmp_eq_u32 s40, 7\ns_cbranch_scc0 k1_not\ns_waitcnt vmcnt(0)\nv_readfirstlane_b32 s76, v30\nv_mov_b32 v30, s58\nv_mov_b32 v31, 0\ns_nop 3")
    A(f"s_cmp_eq_u32 s76, 255\ns_cbranch_scc0 k1_not\ns_mov_b32 s59, {WS_T}\ns_mov_b64 exec, 1\nbuffer_store_dword v30, v31, s[32:35], s59 offen sc1\ns_mov_b64 exec, -1")
    A.label("k1_not")
    if FINE:
        A(f"v_subrev_u32 v250, s82, v250\ns_lshl_b32 s96, s2, 3\ns_add_u32 s96, s96, s40\ns_lshl_b32 s96, s96, 6\ns_add_u32 s96, s96, {(24<<20)+3*(1<<18)}\nv_lshlrev_b32 v251, 2, v0\ns_mov_b64 exec, 0xffff\nbuffer_store_dword v250, v251, s[32:35], s96 offen\ns_mov_b64 exec, -1")
    stamp(A,5); stamp_out(A,0)
    A.label("k1_end")
    A("s_endpgm")
    for g in range(2):
        A.label(f"k1_spin{g}")
        A(f"s_mov_b32 s59, {SPIN}")
        A.label(f"k1_spinl{g}")
        A("s_sleep 2\nbuffer_load_dword v21, v20, s[32:35], 0 offen sc1\ns_waitcnt vmcnt(0)\nv_cmp_ne_u32 vcc, s58, v21\ns_sub_u32 s59, s59, 1\ns_nop 3")
        A(f"s_cbranch_vccz k1_spinret{g}\ns_cmp_lg_u32 s59, 0\ns_cbranch_scc1 k1_spinl{g}\ns_branch k1_spinret{g}")

def main(out):
    hdr=open("cdna_kernels/"+NAME+".s.ref").read().split("\n")
    head=[l for l in hdr if l.startswith(";") and "@launch" not in l and "Override" not in l and "grid=ceil" not in l]
    T="\n".join(head)+"\n"
    T+=f"; @launch kernel=k1_kernel grid=(256,1,1) block=(512,1,1) lds={K1_LDS}\n"
    T+=f"; @launch kernel=k2_kernel grid=(256,1,1) block=(512,1,1) lds={K2_LDS}\n"
    T+=f"; @launch kernel=k3_kernel grid=(256,1,1) block=(512,1,1) lds={K3_LDS}\n"
    T+='.amdgcn_target "amdgcn-amd-amdhsa--gfx950"\n.text\n'
    body=""
    for nm,fn in (("k1_kernel",k1),("k2_kernel",k2),("k3_kernel",k3)):
        A=Asm(); fn(A)
        for e in hazard_check(A.text()): print(nm,e)
        body+=f".globl {nm}\n.p2align 8\n.type {nm},@function\n"+A.text()
    T+=body+'.section .rodata,"a"\n'+kdesc("k1_kernel",256,100)+kdesc("k2_kernel",160,100)+kdesc("k3_kernel",128,100)
    open(out,"w").write(T)
if __name__=="__main__":
    main(sys.argv[1] if len(sys.argv)>1 else "cdna_kernels/"+NAME+".s")
```

```python
import sys, struct, os, copy
from asmlib import *
NAME="recurrent_scan__mha_block__glu_gated_reglu__prompt"
KN=NAME+"_kernel"
WS_Q=0; WS_KV=2<<20; WS_H=6<<20; WS_O=13<<20; WS_XN=22<<20; WS_FL=21<<20; WS_T=WS_FL+65536; WS_SIZE=32<<20; WS_ST=24<<20
FL1=WS_FL; FL2=WS_FL+4096; FL3=WS_FL+8192; FL4=WS_FL+12288
def f2u(f): return struct.unpack("<I",struct.pack("<f",f))[0]
LOG2E=1.4426950408889634
E=lambda k,d: int(os.environ.get(k,str(d)))
STAMP=E("STAMP",0); TOUCH=E("TOUCH",1); G0=E("G0",0); PRIO=E("PRIO",0); NPRE=E("NPRE",3); DGAP=E("DGAP",4)
SPIN=400000
MOFF=90.0
class VM:
    def __init__(s): s.ops=[]
    def add(s,tag,n=1): s.ops+= [tag]*n
    def n_after(s,tag):
        idx=max(i for i,t in enumerate(s.ops) if t==tag)
        return len(s.ops)-1-idx
def weave(A,mf,fill):
    n=len(mf); k=len(fill); j=0
    for i,m in enumerate(mf):
        A(m)
        e=(k*(i+1))//n
        while j<e: A(fill[j]); j+=1
class St:
    def __init__(s): s.pend=None
    def mark(s,A,i):
        if STAMP:
            A(f"s_memtime s[96:97]\ns_waitcnt lgkmcnt(0)\nv_writelane_b32 v250, s96, {i}")
st=St()
WB=65536; GB=[65536,0]; KVB=131072; KVS=8192; VSC=114688; LDS=163840
Q,K,VA,VB,P,C,SA,SB,O=4,8,12,16,20,32,48,64,80
FR=[96,112]; GACC=128; DACC=208
vG,vU,vD=192,193,194; aX,aW,aH,aD=196,198,202,204; aK=206; vWO=207; XR=224
spins=[]
def poll_check(A,name,vaddr,vdst,soff,wait):
    A(f"s_waitcnt vmcnt({wait})\nv_cmp_ne_u32 vcc, s58, v{vdst}\ns_nop 4\ns_cbranch_vccnz {name}_spin\n{name}_ret:")
    spins.append((name,vaddr,vdst,soff))
def flag_store(A,name,wave,soff_code,va,vb,extra_skip=""):
    A(f"s_cmp_eq_u32 s40, {wave}\ns_cbranch_scc0 {name}")
    if extra_skip: A(extra_skip.replace("@",name))
    A(soff_code)
    A(f"v_mov_b32 v{va}, s58\nv_mov_b32 v{vb}, 0\ns_mov_b64 exec, 1\nbuffer_store_dword v{va}, v{vb}, s[32:35], s59 offen sc1\ns_mov_b64 exec, -1")
    A.label(name)

def kern(A):
    vm=VM()
    A.label(KN)
    A("s_cmp_ge_u32 s2, 256\ns_cbranch_scc1 k_end")
    if STAMP: A("s_memrealtime s[92:93]\ns_memtime s[94:95]")
    A("s_load_dwordx4 s[4:7], s[0:1], 0\ns_load_dwordx2 s[14:15], s[0:1], 72\ns_load_dwordx4 s[8:11], s[0:1], 32")
    A("s_load_dwordx4 s[72:75], s[0:1], 48\ns_load_dwordx2 s[12:13], s[0:1], 16")
    A("v_lshrrev_b32 v1, 6, v0\nv_and_b32 v0, 63, v0\nv_readfirstlane_b32 s40, v1")
    A("s_and_b32 s3, s2, 7\ns_lshr_b32 s59, s2, 3\ns_and_b32 s100, s59, 7")
    A("s_and_b32 s98, s3, 3\ns_lshl_b32 s98, s98, 3\ns_add_u32 s98, s98, s100")
    A("s_lshr_b32 s99, s3, 2\ns_lshl_b32 s99, s99, 2\ns_lshr_b32 s68, s59, 3\ns_add_u32 s99, s99, s68")
    A("v_lshrrev_b32 v20, 3, v0\nv_and_b32 v21, 7, v0")
    A("s_lshl_b32 s68, s98, 6\ns_lshl_b32 s69, s40, 3\ns_add_u32 s68, s68, s69")
    A("v_add_u32 v11, s68, v20\nv_lshlrev_b32 v11, 10, v11\nv_lshl_add_u32 v11, v21, 4, v11")
    A("v_bfe_u32 v31, v0, 4, 1\nv_lshlrev_b32 v31, 2, v31\nv_xor_b32 v31, v31, v21\nv_lshlrev_b32 v31, 4, v31")
    A("s_and_b32 s70, s69, 31\nv_add_u32 v29, s70, v20\nv_mul_u32_u24 v30, 3072, v29\nv_add_u32 v30, v30, v31\ns_lshl_b32 s68, s99, 7\nv_add_u32 v30, s68, v30")
    A("s_lshl_b32 s101, s70, 7")
    A("s_waitcnt lgkmcnt(0)")
    srd(A,16,4,2048*1024)
    X=32
    for i in range(8):
        A(f"s_add_u32 s71, s100, {i}\ns_and_b32 s71, s71, 7\ns_lshl_b32 s71, s71, 7\nbuffer_load_dwordx4 {vr(X+4*i,4)}, v11, s[16:19], s71 offen"); vm.add(("x",i))
    srd(A,20,6,512*3072); srd(A,32,14,WS_SIZE)
    A(f"s_add_u32 s70, s14, {WS_T}\ns_addc_u32 s71, s15, 0\ns_load_dword s58, s[70:71], 0")
    def dmaW(vm,d):
        L=[]
        for hi in range(2):
            for c in range(3):
                vm.add(("W",d))
                pre=f"s_add_u32 s59, s100, {d}\ns_and_b32 s59, s59, 7\ns_mul_i32 s59, s59, {64*3072}\n" if (c==0 and hi==0) else (f"s_add_u32 s59, s59, {1024 if c else 32*3072-2048}\n")
                L.append(f"s_add_u32 m0, s101, {WB+(d%4)*24576+c*8192+hi*4096}\n"+pre+"buffer_load_dwordx4 v30, s[20:23], s59 offen lds")
        return L
    vmh=copy.deepcopy(vm)
    A("s_cmp_lt_u32 s40, 4\ns_cbranch_scc1 p1_nodma")
    for d in range(4):
        for l in dmaW(vmh,d): A(l)
    A.label("p1_nodma")
    A("v_xor_b32 v4, v29, v21\nv_lshlrev_b32 v4, 4, v4\nv_lshl_add_u32 v4, v21, 9, v4")
    A("s_lshr_b32 s68, s40, 2\ns_lshl_b32 s68, s68, 15\nv_add_u32 v4, s68, v4")
    A("s_and_b32 s41, s40, 1\ns_bfe_u32 s42, s40, 0x10001")
    A("v_and_b32 v22, 31, v0\nv_lshrrev_b32 v1, 5, v0\nv_xor_b32 v5, v22, v1\nv_lshlrev_b32 v5, 4, v5\nv_lshl_add_u32 v5, v1, 9, v5")
    A("s_lshl_b32 s68, s41, 15\nv_add_u32 v5, s68, v5")
    for kq in range(1,4): A(f"v_xor_b32 v{5+kq}, {1056*kq}, v5")
    A("v_bfe_u32 v28, v0, 2, 2\nv_lshlrev_b32 v28, 7, v28\nv_and_b32 v24, 3, v0\nv_lshl_add_u32 v28, v24, 3, v28")
    A("v_bfe_u32 v24, v0, 3, 1\nv_xor_b32 v24, s42, v24\nv_lshl_add_u32 v28, v24, 6, v28\nv_bfe_u32 v27, v0, 4, 1\nv_lshl_add_u32 v28, v27, 5, v28")
    A(f"v_lshl_add_u32 v9, v1, 10, v28\nv_add_u32 v9, {WB}, v9\nv_add_u32 v10, {2*24576}, v9")
    A("v_lshlrev_b32 v2, 4, v0\nv_mov_b32 v19, 0x3f803f80\nv_mov_b32 v12, 0\nv_mov_b32 v13, 0\nv_mov_b32 v14, 0\nv_mov_b32 v15, 0")
    srd(A,24,8,512*3584); srd(A,28,10,512*3584); srd(A,36,14,WS_SIZE); srd(A,76,72,1792*1024); srd(A,60,12,512*1024); srd(A,64,74,2048*1024)
    A("s_bfe_u32 s59, s2, 0x20003\ns_lshl_b32 s43, s3, 2\ns_add_u32 s43, s43, s59")
    A("s_lshr_b32 s44, s2, 5")
    A("s_lshl_b32 s45, s44, 3\ns_add_u32 s45, s45, s40")
    A("s_lshr_b32 s46, s3, 1\ns_lshl_b32 s46, s46, 2\ns_add_u32 s46, s46, s59")
    A("s_and_b32 s47, s3, 1\ns_mul_i32 s47, s47, 7\ns_add_u32 s47, s47, s44")
    A(f"s_lshl_b32 s49, s43, 17\ns_add_u32 s49, s49, s101\ns_add_u32 s49, s49, {WS_KV}")
    A(f"s_lshl_b32 s50, s46, 2\ns_add_u32 s50, s50, s42\ns_lshl_b32 s50, s50, 15\ns_lshl_b32 s68, s41, 11\ns_add_u32 s50, s50, s68\ns_add_u32 s50, s50, {WS_XN}")
    A(f"v_mul_u32_u24 v{vG}, 3584, v29\nv_add_u32 v{vG}, v{vG}, v31\ns_lshl_b32 s68, s47, 8\nv_add_u32 v{vG}, s68, v{vG}\nv_xor_b32 v{vU}, 32, v{vG}")
    A(f"s_lshr_b32 s68, s101, 5\nv_add_u32 v29, s68, v20\nv_lshl_add_u32 v{vD}, v29, 10, v31\ns_lshl_b32 s68, s44, 7\nv_add_u32 v{vD}, s68, v{vD}")
    A(f"s_mul_i32 s51, s43, {224*1024}\ns_lshl_b32 s68, s101, 2\ns_add_u32 s51, s51, s68\ns_add_u32 s51, s51, {WS_H}")
    A("s_lshr_b32 s48, s40, 2")
    A(f"v_and_b32 v3, 15, v0\nv_lshlrev_b32 v3, 4, v3\nv_lshl_add_u32 v3, v1, 8, v3\nv_add_u32 v3, {KVB+1024}, v3\nv_add_u32 v{aK}, {KVB}, v2")
    A("s_mov_b32 s52, 0xffff\ns_mov_b32 s53, 0xffff")
    A(f"s_lshl_b32 s68, s41, 13\nv_add_u32 v{aX+1}, s68, v2\nv_add_u32 v{aX}, 0x10000, v{aX+1}")
    A(f"v_lshl_add_u32 v{aW+2}, v27, 13, v28\nv_lshl_add_u32 v{aW+2}, v1, 10, v{aW+2}\ns_lshl_b32 s68, s48, 14\ns_add_u32 s68, s68, 16384\nv_add_u32 v{aW+2}, s68, v{aW+2}")
    A(f"v_xor_b32 v{aW+3}, 32, v{aW+2}\nv_add_u32 v{aW}, 0x10000, v{aW+2}\nv_add_u32 v{aW+1}, 0x10000, v{aW+3}")
    A(f"s_lshl_b32 s68, s41, 14\ns_lshl_b32 s70, s48, 13\ns_add_u32 s68, s68, s70\nv_add_u32 v{aH+1}, s68, v2\nv_add_u32 v{aH}, 0x10000, v{aH+1}")
    A(f"v_lshl_add_u32 v{aD+1}, v1, 9, v28\ns_lshl_b32 s68, s48, 14\ns_add_u32 s68, s68, 32768\nv_add_u32 v{aD+1}, s68, v{aD+1}\nv_add_u32 v{aD}, 0x10000, v{aD+1}")
    A(f"s_lshl_b32 s54, s46, 2\ns_lshl_b32 s68, s41, 1\ns_add_u32 s54, s54, s68\ns_mul_i32 s54, s54, 112\ns_lshl_b32 s68, s47, 3\ns_add_u32 s54, s54, s68\ns_and_b32 s68, s40, 6\ns_add_u32 s54, s54, s68\ns_lshl_b32 s54, s54, 10\ns_add_u32 s54, s54, {WS_H}\ns_add_u32 s55, s54, {112*1024}")
    A("s_lshl_b32 s80, s48, 12\ns_add_u32 s80, s80, s101")
    A(f"s_lshl_b32 s81, s48, 12\ns_add_u32 s81, s81, s49\ns_lshl_b32 s82, s48, 16\ns_add_u32 s82, s82, s50\ns_mul_i32 s83, s48, {32*3584}\ns_lshl_b32 s84, s48, 17\ns_mul_i32 s85, s48, {112*1024}\ns_add_u32 s85, s85, s51")
    def dmaKV(vm,it,hi=None):
        vm.add(("KV",it))
        if hi is None: return [f"s_add_u32 m0, s80, {KVB+(it%3)*KVS}\ns_add_u32 s59, s81, {it*8192}\nbuffer_load_dwordx4 v2, s[32:35], s59 offen sc1 lds"]
        return [f"s_add_u32 m0, s101, {KVB+(it%3)*KVS+hi*4096}\ns_add_u32 s59, s49, {it*8192+hi*4096}\nbuffer_load_dwordx4 v2, s[32:35], s59 offen sc1 lds"]
    def dmaUX(vm,n,hi=None):
        b=GB[n%2]; vm.add(("U",n),2)
        m,s,o1,o2=("s80","s82",0,0) if hi is None else ("s101","s50",hi*8192,hi*65536)
        return [f"s_lshl_b32 s59, {m}, 1\ns_add_u32 m0, s59, {b+o1}\ns_add_u32 s59, {s}, {n*4096+o2}\nbuffer_load_dwordx4 v2, s[36:39], s59 offen sc1 lds",
                "buffer_load_dwordx4 v2, s[36:39], s59 offen offset:1024 sc1 lds"]
    def dmaUW(vm,n,hi=None):
        b=GB[n%2]; L=[]; vm.add(("U",n),4)
        for c in range(4):
            off=n*64*3584+(c//2)*128
            so=f"s_add_u32 s59, s83, {off}" if hi is None else f"s_mov_b32 s59, {off+hi*32*3584}"
            m=f"s80, {b+16384+c*8192}" if hi is None else f"s101, {b+16384+c*8192+hi*4096}"
            L.append(f"s_add_u32 m0, {m}\n{so}\nbuffer_load_dwordx4 v{vG+c%2}, s[{24+4*(c%2)}:{27+4*(c%2)}], s59 offen lds")
        return L
    def dmaU(vm,n,hi=None): return dmaUX(vm,n,hi)+dmaUW(vm,n,hi)
    def dmaRows(vm,tag,dst,row0,srdn):
        vm.add(tag,4)
        return [f"s_lshl_b32 s59, s80, 2\ns_add_u32 m0, s59, {dst+i*1024}\ns_add_u32 s59, s84, {(row0+8*i)*1024}\nbuffer_load_dwordx4 v{vD}, s[{srdn}:{srdn+3}], s59 offen lds" for i in range(4)]
    def dmaDW(vm,n): return dmaRows(vm,("D",n),GB[n%2]+32768,n*256,76)
    def dmaDH(vm,n):
        b=GB[n%2]; vm.add(("D",n),4)
        return [(f"s_lshl_b32 s59, s80, 2\ns_add_u32 m0, s59, {b}\ns_add_u32 s59, s85, {n*16384}\n" if i==0 else "")+f"buffer_load_dwordx4 v2, s[32:35], s59 offen offset:{1024*i} sc1 lds" for i in range(4)]
    st.mark(A,0)
    A("s_cmp_lt_u32 s40, 4\ns_cbranch_scc1 p1_w0\ns_waitcnt vmcnt(24)\ns_branch p1_w1")
    A.label("p1_w0")
    A("s_setprio 1\ns_waitcnt vmcnt(0)")
    A.label("p1_w1")
    for i in range(8):
        for d in range(4): A(f"v_dot2c_f32_bf16 v{12+d%2}, v{X+4*i+d}, v19\nv_dot2c_f32_bf16 v{14+d%2}, v{X+4*i+d}, v{X+4*i+d}")
    st.mark(A,1)
    A("s_nop 2\nv_add_f32 v12, v12, v13\nv_add_f32 v13, v14, v15\ns_nop 1")
    for mod in ("quad_perm:[1,0,3,2]","quad_perm:[2,3,0,1]","row_half_mirror"):
        A(f"v_add_f32_dpp v12, v12, v12 {mod} row_mask:0xf bank_mask:0xf\nv_add_f32_dpp v13, v13, v13 {mod} row_mask:0xf bank_mask:0xf\ns_nop 0")
    A(f"v_mul_f32 v12, {f2u(1/512):#x}, v12\nv_mul_f32 v13, {f2u(1/512):#x}, v13")
    A("v_fma_f32 v13, -v12, v12, v13\nv_max_f32 v13, 0, v13")
    A("v_cvt_pk_bf16_f32 v13, v13, v13\nv_and_b32 v13, 0xffff0000, v13")
    A(f"v_add_f32 v13, {f2u(1e-5):#x}, v13")
    A("v_cvt_pk_bf16_f32 v13, v13, v13\nv_and_b32 v13, 0xffff0000, v13\nv_sqrt_f32 v13, v13")
    A("v_cvt_pk_bf16_f32 v12, v12, v12\nv_cvt_pk_bf16_f32 v13, v13, v13\nv_and_b32 v13, 0xffff0000, v13\nv_rcp_f32 v14, v13\nv_and_b32 v12, 0xffff0000, v12")
    A("v_mov_b32 v15, v14\nv_mul_f32 v16, -v12, v14\nv_mov_b32 v17, v16")
    for i in range(8):
        for d in range(4):
            r=X+4*i+d; T=20+2*(d%2)
            A(f"v_lshlrev_b32 v{T}, 16, v{r}\nv_and_b32 v{T+1}, 0xffff0000, v{r}\nv_pk_fma_f32 {vr(T,2)}, {vr(T,2)}, v[14:15], v[16:17]\nv_cvt_pk_bf16_f32 v{r}, v{T}, v{T+1}")
        A(f"ds_write_b128 v4, {vr(X+4*i,4)} offset:{4096*i}")
    A(f"s_waitcnt vmcnt({vmh.n_after(('W',0))}) lgkmcnt(0)\ns_barrier")
    A("s_add_u32 s58, s58, 1")
    st.mark(A,2)
    A("s_cmp_ge_u32 s40, 4\ns_cbranch_scc1 p1_help")
    FS=[64,80,32]; ACC=96
    def reads(F,kp):
        d=kp//4; ks=kp%4; sl=d%4
        r=[f"ds_read_b128 {vr(F,4)}, v{5+ks} offset:{d*4096}"]
        for c in range(3):
            for i in range(2): r.append(f"ds_read_b64_tr_b16 {vr(F+4+4*c+2*i,2)}, v{9+sl//2} offset:{(sl%2)*24576+c*8192+(16*ks+4*i)*128}")
        return r
    for l in reads(FS[0],0)+reads(FS[1],1): A(l)
    pre=["s_lshl_b32 s68, s98, 1\ns_add_u32 s68, s68, s41",
         "s_lshl_b32 s59, s99, 1\ns_add_u32 s59, s59, s42\ns_lshl_b32 s59, s59, 7\ns_add_u32 s59, s59, s68",
         f"s_lshl_b32 s70, s59, 10\ns_add_u32 s71, s70, {64*1024}\ns_lshl_b32 s68, s59, 11\ns_add_u32 s68, s68, {WS_KV}\ns_add_u32 s69, s68, {64*2048}",
         f"v_and_b32 v20, 31, v0\nv_lshlrev_b32 v20, 6, v20\nv_lshl_add_u32 v20, v1, 3, v20\ns_lshl_b32 s59, s40, 11\ns_add_u32 s59, s59, {VSC}\nv_add_u32 v20, s59, v20",
         "v_lshlrev_b32 v22, 10, v1\nv_lshl_add_u32 v22, v27, 8, v22\nv_bfe_u32 v23, v0, 2, 2\nv_lshl_add_u32 v22, v23, 6, v22",
         "v_and_b32 v23, 3, v0\nv_lshl_add_u32 v22, v23, 3, v22\nv_add_u32 v22, s59, v22",
         f"v_mov_b32 v24, {f2u(0.25*LOG2E):#x}\nv_mov_b32 v25, v24"]
    for kp in range(32):
        F=FS[kp%3]
        fill=[]
        if kp%4==2: A("s_waitcnt lgkmcnt(0)\ns_barrier")
        else: A(f"s_waitcnt lgkmcnt({7 if kp<31 else 0})")
        if kp<30: fill+=reads(FS[(kp+2)%3],kp+2)
        if pre and kp>=4: fill.append(pre.pop(0))
        order=[2,1,0]
        weave(A,[mfma32(ACC+16*c,F+4+4*c,F,(ACC+16*c) if kp else "0") for c in order],fill)
    st.mark(A,3)
    V=ACC+32; Kk=ACC+16
    A("s_nop 9")
    for d in range(8): A(f"v_cvt_pk_bf16_f32 v{V+d}, v{V+2*d}, v{V+2*d+1}")
    for q in range(4): A(f"ds_write_b64 v20, {vr(V+2*q,2)} offset:{16*q}")
    for d in range(8): A(f"v_cvt_pk_bf16_f32 v{Kk+d}, v{Kk+2*d}, v{Kk+2*d+1}")
    A(f"buffer_store_dwordx4 {vr(Kk,4)}, v2, s[32:35], s68 offen sc1\nbuffer_store_dwordx4 {vr(Kk+4,4)}, v2, s[32:35], s69 offen sc1")
    A("s_waitcnt lgkmcnt(0)")
    for hh in range(2):
        for ii in range(2): A(f"ds_read_b64_tr_b16 {vr(V+4*hh+2*ii,2)}, v22 offset:{32*hh+512*ii}")
    for r in range(0,16,2): A(f"v_pk_mul_f32 {vr(ACC+r,2)}, {vr(ACC+r,2)}, v[24:25]")
    A("s_waitcnt lgkmcnt(0)")
    A(f"buffer_store_dwordx4 {vr(V,4)}, v2, s[32:35], s68 offen offset:1024 sc1\nbuffer_store_dwordx4 {vr(V+4,4)}, v2, s[32:35], s69 offen offset:1024 sc1")
    for d in range(8): A(f"v_cvt_pk_bf16_f32 v{ACC+d}, v{ACC+2*d}, v{ACC+2*d+1}")
    A(f"buffer_store_dwordx4 {vr(ACC,4)}, v2, s[32:35], s70 offen sc1\nbuffer_store_dwordx4 {vr(ACC+4,4)}, v2, s[32:35], s71 offen sc1")
    A("s_setprio 0\ns_branch p1_join")
    A.label("p1_help")
    A("s_sub_u32 s59, s99, s100\ns_and_b32 s59, s59, 7\ns_lshl_b32 s59, s59, 12")
    A(f"s_mul_i32 s68, s42, {2*1056}\nv_xor_b32 v20, s68, v5\nv_xor_b32 v21, s68, v6\nv_add_u32 v20, s59, v20\nv_add_u32 v21, s59, v21")
    A("ds_read_b128 v[64:67], v20\nds_read_b128 v[68:71], v21")
    A(f"s_lshl_b32 s68, s98, 1\ns_add_u32 s68, s68, s41\ns_lshl_b32 s68, s68, 15\ns_lshl_b32 s59, s99, 12\ns_add_u32 s68, s68, s59\ns_lshl_b32 s59, s42, 11\ns_add_u32 s68, s68, s59\ns_add_u32 s68, s68, {WS_XN}")
    A(f"v_and_b32 v22, 15, v0\nv_lshlrev_b32 v22, 2, v22\ns_lshl_b32 s56, s46, 6\ns_add_u32 s56, s56, {FL1}")
    A("s_waitcnt lgkmcnt(0)")
    A("buffer_store_dwordx4 v[64:67], v2, s[32:35], s68 offen sc1\nbuffer_store_dwordx4 v[68:71], v2, s[32:35], s68 offen offset:1024 sc1"); vmh.add("xst",2)
    for d in range(8):
        needs=[]
        if d<7: needs.append(vmh.n_after(('W',d+1)))
        if d==2: needs.append(vmh.n_after("xst"))
        A((f"s_waitcnt vmcnt({min(needs)})\n" if needs else "")+"s_barrier")
        if d==2: flag_store(A,"p1_f1",7,f"s_lshl_b32 s59, s98, 5\ns_lshl_b32 s68, s99, 2\ns_add_u32 s59, s59, s68\ns_add_u32 s59, s59, {FL1}",24,25)
        if d+4<8:
            for l in dmaW(vmh,d+4): A(l)
        if d==3 and TOUCH:
            A("s_lshl_b32 s59, s2, 2\ns_and_b32 s69, s40, 3\ns_add_u32 s59, s59, s69\ns_mul_i32 s69, s59, 1792\ns_lshl_b32 s59, s59, 9\nv_lshlrev_b32 v20, 7, v0\ns_mov_b64 exec, 0x3fff")
            A("buffer_load_dword v26, v20, s[24:27], s69 offen\nbuffer_load_dword v26, v20, s[28:31], s69 offen\nbuffer_load_dword v26, v20, s[76:79], s69 offen\ns_mov_b64 exec, 0xf\nbuffer_load_dword v26, v20, s[60:63], s59 offen\ns_mov_b64 exec, -1"); vmh.add("t",4)
        if d==3: A("s_cmp_eq_u32 s44, 7\ns_cselect_b32 s26, 0, s26\ns_cselect_b32 s30, 0, s30\ns_cselect_b32 s38, 0, s38")
        if d==5:
            for hi in range(2):
                for l in dmaUW(vmh,0,hi): A(l)
        if d==6:
            A("buffer_load_dword v23, v22, s[32:35], s56 offen sc1"); vmh.add("f1")
        if d==7:
            for hi in range(2):
                for l in dmaUW(vmh,1,hi): A(l)
            poll_check(A,"p1_c1",22,23,"s56",vmh.n_after("f1"))
            for n in range(2):
                for hi in range(2):
                    for l in dmaUX(vmh,n,hi): A(l)
    A.label("p1_join")
    A("s_cmp_eq_u32 s44, 7\ns_cselect_b32 s26, 0, s26\ns_cselect_b32 s30, 0, s30\ns_cselect_b32 s38, 0, s38")
    for i in range(8): A(f"v_mov_b32 v{VA+i}, 0")
    A("s_mov_b32 exec_lo, 0x110000\ns_mov_b32 exec_hi, 0x110000")
    for i in range(8): A(f"v_mov_b32 v{VA+i}, 0x3f803f80")
    A("s_mov_b64 exec, -1")
    A(f"v_and_b32 v30, 31, v0\nv_lshlrev_b32 v30, 2, v30\ns_lshr_b32 s56, s43, 2\ns_lshl_b32 s56, s56, 7\ns_add_u32 s56, s56, {FL2}")
    A("s_waitcnt vmcnt(0)\ns_barrier")
    st.mark(A,4)
    flag_store(A,"p1_f2",0,f"s_lshl_b32 s59, s99, 7\ns_lshl_b32 s68, s98, 2\ns_add_u32 s59, s59, s68\ns_add_u32 s59, s59, {FL2}",28,29)
    vm=VM()
    kv=lambda t: ((t//4)%3)*KVS+(t%4)*2048
    def up_reads(g):
        n,ks=g//4,g%4; F=FR[g%2]; b=n%2
        L=[f"ds_read_b128 {vr(F+8+4*t,4)}, v{aX+b} offset:{t*4096+ks*1024}" for t in range(2)]
        for jj in range(2):
            for i in range(2): L.append(f"ds_read_b64_tr_b16 {vr(F+4*jj+2*i,2)}, v{aW+2*b+jj} offset:{(16*ks+4*i)*128}")
        return L
    def up_mf(g):
        F=FR[g%2]
        return [mfma32(GACC+16*(2*t+jj),F+4*jj,F+8+4*t,(GACC+16*(2*t+jj)) if g else "0") for t in range(2) for jj in range(2)]
    def dn_reads(g):
        n,u=g//4,g%4; F=FR[g%2]; b=n%2; L=[]
        for k in range(2):
            ks=2*u+k
            L.append(f"ds_read_b128 {vr(F+8+4*k,4)}, v{aH+b} offset:{ks*1024}")
            for i in range(2): L.append(f"ds_read_b64_tr_b16 {vr(F+4*k+2*i,2)}, v{aD+b} offset:{ks*2048+i*1024}")
        return L
    def dn_mf(g):
        F=FR[g%2]
        return [mfma32(DACC,F+4*k,F+8+4*k,DACC if (g or k) else "0") for k in range(2)]
    def up_epi(ti):
        acc=GACC+16*ti; t,jj=ti//2,ti%2
        L=[f"v_max_f32 v{acc+r}, 0, v{acc+r}" for r in range(8)]+[f"v_mul_f32 v{acc+r}, v{acc+r}, v{acc+8+r}" for r in range(8)]
        L+=[f"v_cvt_pk_bf16_f32 v{acc+d}, v{acc+2*d}, v{acc+2*d+1}" for d in range(4)]
        L.append(f"buffer_store_dwordx4 {vr(acc,4)}, v2, s[36:39], s{54+t} offen offset:{1024*jj} sc1")
        return L
    for n in range(NPRE):
        dml=[]
        if n>0:
            A((f"s_waitcnt vmcnt({vm.n_after(('U',n))}) lgkmcnt(0)" if n>=2 else "s_waitcnt lgkmcnt(0)")+"\ns_barrier")
        if n==NPRE-1:
            if n==0: A("buffer_load_dword v31, v30, s[32:35], s56 offen sc1"); vm.add("f2")
            poll_check(A,"m_c2",30,31,"s56",vm.n_after("f2"))
            A(f"s_lshl_b32 s59, s43, 6\ns_add_u32 s59, s59, s45\ns_lshl_b32 s59, s59, 10\nbuffer_load_dwordx4 {vr(Q,4)}, v2, s[32:35], s59 offen sc1"); vm.add("q")
            for l in dmaKV(vm,0)+dmaKV(vm,1): A(l)
        if n>0: dml=dmaU(vm,n+1)
        for u in range(4):
            g=4*n+u
            if u>0: A("s_waitcnt lgkmcnt(0)")
            fill=up_reads(g)+dml[:2]; dml=dml[2:]
            if n==NPRE-2 and u==3: fill.append("buffer_load_dword v31, v30, s[32:35], s56 offen sc1"); vm.add("f2")
            if g>0: weave(A,up_mf(g-1),fill)
            else:
                for l in fill: A(l)
    st.mark(A,5)
    A(f"s_waitcnt vmcnt({vm.n_after(('KV',0))})\ns_barrier")
    st.mark(A,6)
    A(f"ds_read_b128 {vr(K,4)}, v{aK}")
    A(f"s_mov_b64 exec, s[52:53]\nds_read_b128 {vr(VA,4)}, v3\ns_mov_b64 exec, -1")
    A("s_waitcnt lgkmcnt(1)")
    A(mfma32(SA,K,Q,"0"))
    for r in range(16): A(f"v_mov_b32 v{O+r}, 0")
    def max16(dst,S,first):
        if first:
            A(f"v_max3_f32 v{dst}, v{S}, v{S+1}, v{S+2}\nv_max_f32 v{dst}, v{dst}, v{S+3}")
            s0=4
        else: s0=0
        for r in range(s0,16,2): A(f"v_max3_f32 v{dst}, v{dst}, v{S+r}, v{S+r+1}")
    max16(28,SA,True)
    A(f"v_add_f32 v28, {f2u(MOFF):#x}, v28")
    A(f"v_mov_b32 v29, v28\nv_mov_b32 v{P+4}, 0\nv_mov_b32 v{P+5}, 0\nv_permlane32_swap_b32 v28, v29\nv_max_f32 v28, v28, v29")
    for r in range(16): A(f"v_sub_f32 v{C+r}, 0, v28")
    A(f"v_mov_b32 v{P+6}, 0\nv_mov_b32 v{P+7}, 0")
    A(mfma32(SA,K,Q,C))
    A(f"ds_read_b128 {vr(K,4)}, v{aK} offset:2048\ns_nop 5")
    if PRIO: A("s_setprio 1")
    UP0=-NPRE; D0=UP0+8+DGAP
    for it in range(16):
        needs=[]
        if it+1<16: needs.append(vm.n_after(("KV",it+1)))
        n=it-UP0; dn=it-D0
        if 2<=n<8: needs.append(vm.n_after(("U",n)))
        if 0<=dn<7: needs.append(vm.n_after(("D",dn)))
        if n==9: needs.append(vm.n_after("hst"))
        A((f"s_waitcnt vmcnt({min(needs)}) lgkmcnt(0)" if needs else "s_waitcnt lgkmcnt(0)")+"\ns_barrier")
        st.mark(A,8+it)
        if PRIO: A(f"s_cmp_lt_u32 s40, 4\ns_cbranch_scc1 m_pa{it}\ns_setprio 2\nm_pa{it}:")
        if n==9:
            flag_store(A,"m_f3",7,f"s_lshl_b32 s59, s46, 6\ns_lshl_b32 s68, s47, 2\ns_add_u32 s59, s59, s68\ns_add_u32 s59, s59, {FL3}",30,31,"s_cmp_eq_u32 s44, 7\ns_cbranch_scc1 @")
            A(f"v_min_u32 v30, 13, v0\nv_lshlrev_b32 v30, 2, v30\ns_lshr_b32 s56, s43, 1\ns_lshl_b32 s56, s56, 6\ns_add_u32 s56, s56, {FL3}")
        if dn==-1: poll_check(A,"m_c3",30,31,"s56",vm.n_after("f3"))
        dml=[]
        if dn+1==0: dml+=dmaDH(vm,0)
        if 0<dn+1<7: dml+=dmaDH(vm,dn+1)+dmaDW(vm,dn+1)
        if 2<=n+1<8: dml+=dmaU(vm,n+1)
        if it+2<16: dml+=dmaKV(vm,it+2)
        if dn+2==0: dml+=dmaDW(vm,0)
        if dn==6: dml+=dmaRows(vm,"wo",GB[1],0,60)+dmaRows(vm,"wo",GB[1]+32768,256,60)
        for u in range(4):
            t=4*it+u
            if PRIO and u==PRIO: A(f"s_cmp_lt_u32 s40, 4\ns_cbranch_scc1 m_pb{it}\ns_setprio 0\nm_pb{it}:")
            Sc,Sn=(SA,SB) if u%2==0 else (SB,SA)
            val=[f"v_exp_f32 v{Sc+r}, v{Sc+r}" for r in range(8)]+[f"v_cvt_pk_bf16_f32 v{P+d}, v{Sc+2*d}, v{Sc+2*d+1}" for d in range(4)]+[f"v_exp_f32 v{Sc+r}, v{Sc+r}" for r in range(8,16)]+[f"v_cvt_pk_bf16_f32 v{P+d}, v{Sc+2*d}, v{Sc+2*d+1}" for d in range(4,8)]
            g=4*n+u; gd=4*dn+u
            ex=[]; rds=[]
            if 0<=g-1<32: ex+=up_mf(g-1)
            if 0<=g<32: rds+=up_reads(g)
            if 0<=gd-1<28: ex+=dn_mf(gd-1)
            if 0<=gd<28: rds+=dn_reads(gd)
            extra=[]
            if n==8 and u in (1,2):
                for ti in ([0,1],[2,3])[u-1]: extra+=up_epi(ti); vm.add("hst")
            if dn==-2 and u==3: extra.append("buffer_load_dword v31, v30, s[32:35], s56 offen sc1"); vm.add("f3")
            k=(len(dml)+1)//2 if u==0 and n!=8 else len(dml)
            mine=dml[:k]; dml=dml[k:]
            EXm="s_mov_b64 exec, s[52:53]"; EN="s_mov_b64 exec, -1"
            qk=[mfma32(Sn,K,Q,C)]+([f"ds_read_b128 {vr(K,4)}, v{aK} offset:{kv(t+2)}"] if t+2<64 else [])
            if t==63: qk=[]
            pv1=[mfma32(O,VB,P+4,O),EXm,f"ds_read_b128 {vr(VB,4)}, v3 offset:{kv(t)+512}",EN]
            pv0=[mfma32(O,VA,P,O)]+([EXm,f"ds_read_b128 {vr(VA,4)}, v3 offset:{kv(t+1)}",EN] if t+1<64 else [])
            nx=len(ex); e=[[m] for m in ex]
            seq={0:[qk,pv1,pv0],2:[qk]+e[0:1]+[pv1,pv0]+e[1:2],4:[qk]+e[0:1]+[pv1]+e[1:3]+[pv0]+e[3:4]}[nx]
            ng=len(seq)
            for i,x in enumerate(rds): seq[min(ng-2,(i*(ng-1))//max(1,len(rds)))].append(x)
            for i,x in enumerate(mine): seq[(i*ng)//len(mine)].append(x)
            if u>0: A("s_waitcnt lgkmcnt(0)")
            val=val+extra
            cost=[8 if "exp" in x else 4 for x in val]; tot=sum(cost); acc=0; gi=0
            for i,x in enumerate(val):
                while gi<ng and ((acc>=tot*gi/ng and not (seq[gi] is pv0 and i<14)) or (seq[gi] is pv1 and i>=19)):
                    for y in seq[gi]: A(y)
                    gi+=1
                A(x); acc+=cost[i]
            while gi<ng:
                for y in seq[gi]: A(y)
                gi+=1
    assert D0+7<=16, "down must finish inside loop"
    A("s_waitcnt lgkmcnt(0)\ns_nop 0")
    A(mfma32(O,VB,P+4,O))
    if D0+7==16:
        for m in dn_mf(27): A(m)
    st.mark(A,24)
    A("s_lshl_b32 s57, s43, 1\ns_add_u32 s57, s57, s48\ns_lshl_b32 s57, s57, 15\ns_lshl_b32 s68, s44, 7\ns_add_u32 s57, s57, s68\ns_lshr_b32 s68, s101, 5\ns_add_u32 s57, s57, s68")
    A(f"v_and_b32 v{XR+4}, 31, v0\nv_lshlrev_b32 v{XR+4}, 10, v{XR+4}\nv_lshl_add_u32 v{XR+4}, v1, 3, v{XR+4}")
    A(f"s_lshl_b32 s59, s45, 5\ns_add_u32 s59, s59, s43\ns_lshl_b32 s59, s59, 10\ns_add_u32 s70, s59, {WS_O}")
    A(f"v_max3_f32 v28, |v{O}|, |v{O+1}|, |v{O+2}|\nv_max3_f32 v28, v28, |v{O+3}|, |v{O+4}|\nv_max3_f32 v28, v28, |v{O+5}|, |v{O+6}|")
    A(f"v_max3_f32 v28, v28, |v{O+7}|, v{O+8}")
    A(f"v_add_f32 v29, v{O}, v{O+1}")
    for r in range(2,9): A(f"v_add_f32 v29, v29, v{O+r}")
    A("v_fma_f32 v28, 0, v29, v28")
    A(f"v_cmp_ngt_f32 vcc, {f2u(2.0**120):#x}, v28")
    A("s_nop 4\ns_cbranch_vccnz m_fallback")
    A.label("m_fin")
    A(f"v_rcp_f32 v28, v{O+8}\ns_nop 0")
    for r in range(8): A(f"v_mul_f32 v{O+r}, v28, v{O+r}")
    for d in range(4): A(f"v_cvt_pk_bf16_f32 v{P+d}, v{O+2*d}, v{O+2*d+1}")
    A(f"buffer_store_dwordx4 {vr(P,4)}, v2, s[32:35], s70 offen sc1")
    A(f"buffer_load_dwordx2 {vr(XR,2)}, v{XR+4}, s[16:19], s57 offen\nbuffer_load_dwordx2 {vr(XR+2,2)}, v{XR+4}, s[16:19], s57 offen offset:16")
    A(f"s_lshl_b32 s68, s41, 14\ns_lshl_b32 s69, s48, 13\ns_add_u32 s68, s68, s69\ns_lshl_b32 s69, s42, 12\ns_add_u32 s68, s68, s69\nv_add_u32 v28, s68, v{aK}")
    A(f"s_lshl_b32 s68, s48, 14\ns_lshl_b32 s69, s101, 1\ns_add_u32 s68, s68, s69\nv_add_u32 v29, s68, v{aK}")
    A(f"v_and_b32 v30, 31, v0\nv_lshlrev_b32 v30, 2, v30\ns_lshr_b32 s56, s43, 2\ns_lshl_b32 s56, s56, 7\ns_add_u32 s56, s56, {FL4}")
    A("s_waitcnt vmcnt(2)\ns_barrier")
    st.mark(A,25)
    flag_store(A,"m_f4",0,f"s_lshl_b32 s59, s44, 7\ns_lshl_b32 s68, s43, 2\ns_add_u32 s59, s59, s68\ns_add_u32 s59, s59, {FL4}",32,33)
    for q in range(4): A(f"ds_write_b128 v28, {vr(DACC+4*q,4)} offset:{q*1024}")
    A(f"s_lshl_b32 s68, s48, 14\ns_add_u32 s68, s68, 32768\ns_lshl_b32 s69, s101, 4\ns_sub_u32 s68, s69, s68\nv_add_u32 v34, s68, v{aD+1}\ns_lshl_b32 s68, s42, 6\nv_xor_b32 v34, s68, v34\nv_xor_b32 v35, 64, v34")
    A(f"s_lshl_b32 s70, s43, 1\ns_add_u32 s70, s70, s48\ns_lshl_b32 s70, s70, 15\ns_lshl_b32 s68, s101, 3\ns_add_u32 s70, s70, s68\ns_add_u32 s70, s70, {WS_O}\ns_add_u32 s71, s70, 4096")
    A("s_waitcnt lgkmcnt(0)\ns_barrier")
    A("buffer_load_dword v31, v30, s[32:35], s56 offen sc1")
    for kh in range(2):
        for q in range(2): A(f"ds_read_b128 {vr(40+8*kh+4*q,4)}, v29 offset:{kh*8192+q*1024}")
    AF=128
    A("s_waitcnt lgkmcnt(0)")
    rd=[f"ds_read_b64_tr_b16 {vr(AF+8*n+4*cb+2*i,2)}, v{34+cb} offset:{n*2048+i*1024}" for n in range(8) for cb in range(2) for i in range(2)]
    G=56
    val=[f"v_add_f32 v{G+r}, v{40+r}, v{48+r}" for r in range(8)]+[f"v_mul_f32 v{40+r}, {f2u(-LOG2E):#x}, v{G+r}" for r in range(8)]+[f"v_exp_f32 v{40+r}, v{40+r}" for r in range(8)]+[f"v_add_f32 v{40+r}, 1.0, v{40+r}" for r in range(8)]+[f"v_rcp_f32 v{40+r}, v{40+r}" for r in range(8)]+[f"v_mul_f32 v{G+r}, v{G+r}, v{40+r}" for r in range(8)]
    for i,x in enumerate(val):
        A(x)
        if i<32: A(rd[i])
    poll_check(A,"m_c4",30,31,"s56",0)
    st.mark(A,26)
    OF=64; ACS=96
    for i in range(8): A(f"buffer_load_dwordx4 {vr(OF+4*i,4)}, v2, s[32:35], {'s70' if i<4 else 's71'} offen offset:{1024*(i%4)} sc1")
    for d in range(4): A(f"v_lshlrev_b32 v{40+2*d}, 16, v{XR+d}\nv_and_b32 v{41+2*d}, 0xffff0000, v{XR+d}")
    A(f"s_lshl_b32 s68, s40, 13\ns_add_u32 s68, s68, {GB[0]}\nv_add_u32 v36, s68, v2")
    A(f"s_lshl_b32 s68, s48, 15\ns_lshl_b32 s69, s101, 1\ns_add_u32 s68, s68, s69\ns_add_u32 s68, s68, {GB[0]}\nv_add_u32 v37, s68, v2")
    A("s_waitcnt lgkmcnt(0)")
    for n in range(8):
        A(f"s_waitcnt vmcnt({7-n})")
        for cb in range(2): A(mfma32(ACS+16*cb,AF+8*n+4*cb,OF+4*n,(ACS+16*cb) if n else "0"))
    st.mark(A,27)
    A("s_nop 10")
    for q in range(8): A(f"ds_write_b128 v36, {vr(ACS+4*q,4)} offset:{q*1024}")
    A("s_waitcnt lgkmcnt(0)\ns_barrier")
    T=64
    for kq in range(4):
        for q in range(2): A(f"ds_read_b128 {vr(T+8*kq+4*q,4)}, v37 offset:{kq*8192+q*1024}")
    A("s_waitcnt lgkmcnt(4)")
    for r in range(8): A(f"v_add_f32 v{T+r}, v{T+r}, v{T+8+r}")
    A("s_waitcnt lgkmcnt(0)")
    for r in range(8): A(f"v_add_f32 v{T+16+r}, v{T+16+r}, v{T+24+r}")
    for r in range(8): A(f"v_add_f32 v{T+r}, v{T+r}, v{T+16+r}")
    for r in range(8): A(f"v_fma_f32 v{40+r}, v{T+r}, v{G+r}, v{40+r}")
    for d in range(4): A(f"v_cvt_pk_bf16_f32 v{48+d}, v{40+2*d}, v{41+2*d}")
    A(f"buffer_store_dwordx2 v[48:49], v{XR+4}, s[64:67], s57 offen\nbuffer_store_dwordx2 v[50:51], v{XR+4}, s[64:67], s57 offen offset:16")
    flag_store(A,"m_bump",0,f"s_mov_b32 s59, {WS_T}",32,33,"s_cmp_eq_u32 s2, 0\ns_cbranch_scc0 @")
    if STAMP:
        st.mark(A,28)
        A("s_waitcnt vmcnt(0)")
        st.mark(A,29)
        A("v_subrev_u32 v250, s94, v250\ns_memrealtime s[96:97]\ns_waitcnt lgkmcnt(0)\nv_writelane_b32 v250, s92, 30\nv_writelane_b32 v250, s96, 31")
        A(f"s_lshl_b32 s96, s2, 3\ns_add_u32 s96, s96, s40\ns_lshl_b32 s96, s96, 7\ns_add_u32 s96, s96, {WS_ST}\nv_lshlrev_b32 v251, 2, v0\ns_mov_b32 exec_hi, 0\nbuffer_store_dword v250, v251, s[32:35], s96 offen")
    A.label("k_end")
    A("s_endpgm")
    for name,va,vd,so in spins:
        A.label(name+"_spin")
        A(f"s_mov_b32 s59, {SPIN}")
        A.label(name+"_l")
        A(f"s_sleep 1\nbuffer_load_dword v{vd}, v{va}, s[32:35], {so} offen sc1\ns_waitcnt vmcnt(0)\nv_cmp_ne_u32 vcc, s58, v{vd}\ns_sub_u32 s59, s59, 1\ns_nop 3")
        A(f"s_cbranch_vccz {name}_ret\ns_cmp_lg_u32 s59, 0\ns_cbranch_scc1 {name}_l\ns_branch {name}_ret")
    A.label("m_fallback")
    A(f"s_sub_u32 s68, s49, s101\ns_mov_b32 s69, 0\nv_mov_b32 v28, 0xff800000\nv_subrev_u32 v30, {KVB}, v3")
    A.label("m_fb1")
    A(f"buffer_load_dwordx4 {vr(K,4)}, v2, s[32:35], s68 offen sc1\ns_add_u32 s68, s68, 2048\ns_waitcnt vmcnt(0)")
    A(mfma32(SA,K,Q,"0"))
    A("s_nop 15")
    max16(28,SA,False)
    A("s_add_u32 s69, s69, 1\ns_cmp_lt_u32 s69, 64\ns_cbranch_scc1 m_fb1")
    A("v_mov_b32 v29, v28\ns_nop 1\nv_permlane32_swap_b32 v28, v29\nv_max_f32 v28, v28, v29")
    for r in range(16): A(f"v_sub_f32 v{C+r}, 0, v28\nv_mov_b32 v{O+r}, 0")
    A(f"s_sub_u32 s68, s49, s101\ns_mov_b32 s69, 0")
    A.label("m_fb2")
    A(f"buffer_load_dwordx4 {vr(K,4)}, v2, s[32:35], s68 offen sc1\ns_mov_b64 exec, s[52:53]\nbuffer_load_dwordx4 {vr(VA,4)}, v30, s[32:35], s68 offen sc1\nbuffer_load_dwordx4 {vr(VB,4)}, v30, s[32:35], s68 offen offset:512 sc1\ns_mov_b64 exec, -1")
    A("s_add_u32 s68, s68, 2048\ns_waitcnt vmcnt(0)")
    A(mfma32(SA,K,Q,C))
    A("s_nop 15")
    for r in range(16): A(f"v_exp_f32 v{SA+r}, v{SA+r}")
    for d in range(8): A(f"v_cvt_pk_bf16_f32 v{P+d}, v{SA+2*d}, v{SA+2*d+1}")
    A("s_nop 1")
    A(mfma32(O,VA,P,O)); A(mfma32(O,VB,P+4,O))
    A("s_add_u32 s69, s69, 1\ns_cmp_lt_u32 s69, 64\ns_cbranch_scc1 m_fb2")
    A("s_nop 15\ns_branch m_fin")

def main(out):
    hdr=open("cdna_kernels/"+NAME+".s.ref").read().split("\n")
    head=[l for l in hdr if l.startswith(";") and "@launch" not in l]
    T="\n".join(head)+"\n"
    if E("LIST",0): T+=f"; @launch kernel={KN} grid=(256,1,1) block=(512,1,1) lds={LDS}\n"
    else: T+=f"; @launch grid=(256,1,1) block=(512,1,1) lds={LDS}\n"
    T+='.amdgcn_target "amdgcn-amd-amdhsa--gfx950"\n.text\n'
    A=Asm(); kern(A)
    for e in hazard_check(A.text()): print(e)
    T+=f".globl {KN}\n.p2align 8\n.type {KN},@function\n"+A.text()
    T+='.section .rodata,"a"\n'+kdesc(KN,256,102)
    open(out,"w").write(T)
if __name__=="__main__":
    main(sys.argv[1] if len(sys.argv)>1 else "cdna_kernels/"+NAME+".s")
```

```python
import sys, struct, os, copy
from asmlib import *
NAME="recurrent_scan__mha_block__glu_gated_reglu__prompt"
KN=NAME+"_kernel"
WS_Q=0; WS_KV=2<<20; WS_H=6<<20; WS_O=13<<20; WS_XN=22<<20; WS_FL=21<<20; WS_T=WS_FL+98304; WS_SIZE=32<<20; WS_ST=24<<20
FL1=WS_FL; FL2=WS_FL+32768; FL3=WS_FL+65536; FL4=WS_FL+524288; FL2=WS_FL+786432
def f2u(f): return struct.unpack("<I",struct.pack("<f",f))[0]
LOG2E=1.4426950408889634
E=lambda k,d: int(os.environ.get(k,str(d)))
STAMP=E("STAMP",0); TOUCH=E("TOUCH",0); G0=E("G0",0); PRIO=E("PRIO",0); NPRE=E("NPRE",3); DGAP=E("DGAP",4)
SPIN=400000
SLEEP=E('SLEEP',2)
CODEPF=E("CODEPF",1); WTOUCH=E("WTOUCH",0); NW0=E("NW0",1); NW1=E("NW1",2); F1D=E("F1D",4); F1P=E("F1P",22); F1C=E("F1C",25); PBURST=E("PBURST",1); U1H=E("U1H",1); UWD=E("UWD",6); TLB=E("TLB",1); RSW=E("RSW",1); XBAR=E("XBAR",0); F2G=E("F2G",-1); HPRIO=E("HPRIO",0); PROG=E("PROG",1); ROT=E("ROT",1); WOT=E("WOT",1); UT=E("UT",0); UTK=E("UTK",27)
MOFF=90.0
class VM:
    def __init__(s): s.ops=[]
    def add(s,tag,n=1): s.ops+= [tag]*n
    def n_after(s,tag):
        idx=max(i for i,t in enumerate(s.ops) if t==tag)
        return len(s.ops)-1-idx
def weave(A,mf,fill):
    n=len(mf); k=len(fill); j=0
    for i,m in enumerate(mf):
        A(m)
        e=(k*(i+1))//n
        while j<e: A(fill[j]); j+=1
class St:
    def __init__(s): s.pend=None
    def mark(s,A,i):
        if STAMP:
            A(f"s_memtime s[96:97]\ns_waitcnt lgkmcnt(0)\nv_writelane_b32 v250, s96, {i}")
st=St()
WB=65536; GB=[65536,0]; KVB=131072; KVS=8192; VSC=114688; LDS=163840
Q,K,VA,VB,P,C,SA,SB,O=4,8,12,16,20,32,48,64,80
FR=[96,112]; GACC=128; DACC=208
vG,vU,vD=192,193,194; aW,aH,aD=198,202,204; aK=206; XR=224; aX=232; vX=196
WS_XS=WS_FL+131072; WS_CS=WS_FL+262144
CSC=VSC+8192; SSC=VSC+12288
SLOT=[0,32768,131072,65536,98304]
spins=[]
ONLY7="\ns_cmp_eq_u32 s40, 7\ns_cselect_b32 s56, s56, 0x7ff00000"
def poll_check(A,name,vaddr,vdst,soff,wait,only7=True):
    if only7: A(f"s_cmp_eq_u32 s40, 7\ns_cbranch_scc0 {name}_ret")
    A(f"s_waitcnt vmcnt({wait})\nv_cmp_ne_u32 vcc, s58, v{vdst}\ns_nop 4\ns_cbranch_vccnz {name}_spin\n{name}_ret:")
    spins.append((name,vaddr,vdst,soff))
def flag_store(A,name,wave,soff_code,va,vb,cond=None):
    A(soff_code)
    if wave is not None: A(f"s_cmp_eq_u32 s40, {wave}\ns_cselect_b32 s59, s59, 0x7ffffff0")
    if cond: A(f"{cond}\ns_cselect_b32 s59, s59, 0x7ffffff0")
    A(f"v_mov_b32 v{va}, s58\nv_mov_b32 v{vb}, 0\ns_mov_b64 exec, 1\nbuffer_store_dword v{va}, v{vb}, s[32:35], s59 offen sc1\ns_mov_b64 exec, -1")

def kern(A):
    vm=VM()
    A.label(KN)
    A("s_cmp_ge_u32 s2, 256\ns_cbranch_scc1 k_end")
    if STAMP: A("s_memrealtime s[92:93]\ns_memtime s[94:95]")
    A("s_load_dwordx4 s[4:7], s[0:1], 0\ns_load_dwordx2 s[14:15], s[0:1], 72\ns_load_dwordx4 s[8:11], s[0:1], 32")
    A("s_load_dwordx4 s[72:75], s[0:1], 48\ns_load_dwordx2 s[12:13], s[0:1], 16")
    if CODEPF:
        A("s_getpc_b64 s[70:71]\nk_pc:\ns_and_b32 s68, s2, 0xf8\nv_add_u32 v26, s68, v0\nv_lshlrev_b32 v26, 7, v26\nv_min_u32 v26, k_last-k_pc, v26\nv_cmp_gt_u32 vcc, 8, v0\ns_and_saveexec_b64 s[68:69], vcc\ns_cbranch_execz k_nopf\nglobal_load_dword v26, v26, s[70:71]\nk_nopf:\ns_mov_b64 exec, -1")
    A("v_lshrrev_b32 v1, 6, v0\nv_and_b32 v0, 63, v0\nv_readfirstlane_b32 s40, v1")
    A("s_and_b32 s3, s2, 7\ns_lshr_b32 s59, s2, 3\ns_and_b32 s100, s59, 7")
    A("s_and_b32 s98, s3, 3\ns_lshl_b32 s98, s98, 3\ns_add_u32 s98, s98, s100")
    A("s_lshr_b32 s99, s3, 2\ns_lshl_b32 s99, s99, 2\ns_lshr_b32 s68, s59, 3\ns_add_u32 s99, s99, s68")
    A("s_add_u32 s100, s100, s99")
    A("v_lshrrev_b32 v20, 3, v0\nv_and_b32 v21, 7, v0\nv_lshrrev_b32 v1, 5, v0\ns_and_b32 s70, s40, 3\ns_lshl_b32 s101, s70, 10")
    A(f"v_lshrrev_b32 v22, 4, v0\nv_xor_b32 v22, v22, v21\nv_lshlrev_b32 v22, 4, v22\nv_lshl_add_u32 v{vX}, v20, 10, v22\ns_lshl_b32 s68, s70, 14\nv_add_u32 v{vX}, s68, v{vX}\nv_xor_b32 v{vX+1}, 64, v{vX}\nv_add_u32 v{vX+1}, 0x2000, v{vX+1}")
    A("v_bfe_u32 v31, v0, 4, 1\nv_lshlrev_b32 v31, 2, v31\nv_xor_b32 v31, v31, v21\nv_lshlrev_b32 v31, 4, v31")
    A("s_lshl_b32 s70, s70, 3\nv_add_u32 v29, s70, v20\nv_mul_u32_u24 v30, 3072, v29\nv_add_u32 v30, v30, v31\ns_lshl_b32 s68, s99, 7\nv_add_u32 v30, s68, v30")
    A("s_and_b32 s89, s99, 1\ns_lshl_b32 s89, s89, 2\ns_xor_b32 s89, s89, s40" if RSW else "s_mov_b32 s89, s40")
    if WTOUCH: A("v_lshlrev_b32 v24, 7, v0\ns_lshl_b32 s59, s2, 3\ns_add_u32 s59, s59, s40\ns_mul_i32 s59, s59, 768")
    A("v_and_b32 v22, 31, v0\ns_lshl_b32 s68, s89, 13\nv_lshlrev_b32 v11, 4, v21\nv_lshl_add_u32 v11, v20, 10, v11\nv_add_u32 v11, s68, v11\ns_lshl_b32 s57, s98, 16")
    A("s_waitcnt lgkmcnt(0)")
    srd(A,16,4,2048*1024); srd(A,20,6,512*3072)
    if WTOUCH: A("s_mov_b64 exec, 0x3f\nbuffer_load_dword v25, v24, s[20:23], s59 offen\ns_mov_b64 exec, -1")
    if TLB:
        A("s_cmp_lt_u32 s40, 6\ns_cbranch_scc1 k_notlb\ns_cmp_eq_u32 s40, 7\ns_cbranch_scc1 k_tlb7")
        A("v_lshlrev_b32 v24, 21, v0\ns_mov_b64 exec, 0xfff\nglobal_load_dword v26, v24, s[14:15] sc1\ns_branch k_tlbd")
        A.label("k_tlb7")
        A("v_lshlrev_b32 v24, 20, v0\ns_mov_b64 exec, 3\nglobal_load_dword v26, v24, s[8:9]\nglobal_load_dword v26, v24, s[10:11]\nglobal_load_dword v26, v24, s[72:73]\nglobal_load_dword v26, v24, s[74:75]\ns_mov_b64 exec, 1\nglobal_load_dword v26, v24, s[12:13]")
        A.label("k_tlbd")
        A("s_mov_b64 exec, -1")
        A.label("k_notlb")
    X=32
    vm=VM()
    for i in range(8):
        A(f"s_add_u32 s88, s100, {i}\ns_and_b32 s88, s88, 7\ns_lshl_b32 s88, s88, 7\ns_add_u32 s88, s88, s57\nbuffer_load_dwordx4 {vr(X+4*i,4)}, v11, s[16:19], s88 offen"); vm.add(("x",i))
    if XBAR==1: A("s_barrier")
    def dmaW(vm,d,his):
        L=[]; b=WB+(d%4)*24576
        for k,hi in enumerate(his):
            for c in range(3):
                vm.add(("W",d))
                if c==0: pre=f"s_add_u32 s88, s100, {d}\ns_and_b32 s88, s88, 7\ns_mul_i32 s59, s88, {64*3072}\n"+("s_add_u32 s59, s59, s91\n" if hi is None else (f"s_add_u32 s59, s59, {32*3072}\n" if hi else ""))
                else: pre="s_add_u32 s59, s59, 1024\n"
                m=f"s80, {b+c*8192}" if hi is None else f"s101, {b+c*8192+hi*4096}"
                L.append(f"s_add_u32 m0, {m}\n"+pre+"buffer_load_dwordx4 v30, s[20:23], s59 offen lds")
        return L
    srd(A,32,14,WS_SIZE)
    A(f"s_add_u32 s70, s14, {WS_T}\ns_addc_u32 s71, s15, 0\ns_load_dword s58, s[70:71], 0")
    A("s_and_b32 s41, s40, 1\ns_bfe_u32 s42, s40, 0x10001")
    A("v_bfe_u32 v23, v0, 1, 3\nv_xor_b32 v23, v23, v1\nv_lshlrev_b32 v23, 4, v23\nv_lshl_add_u32 v23, v22, 7, v23")
    A(f"s_lshl_b32 s68, s41, 12\nv_add_u32 v5, s68, v23")
    for kq in range(1,4): A(f"v_xor_b32 v{5+kq}, {32*kq}, v5")
    A("v_bfe_u32 v28, v0, 2, 2\nv_lshlrev_b32 v28, 7, v28\nv_and_b32 v24, 3, v0\nv_lshl_add_u32 v28, v24, 3, v28")
    A("v_bfe_u32 v24, v0, 3, 1\nv_xor_b32 v24, s42, v24\nv_lshl_add_u32 v28, v24, 6, v28\nv_bfe_u32 v27, v0, 4, 1\nv_lshl_add_u32 v28, v27, 5, v28")
    A(f"v_lshl_add_u32 v9, v1, 10, v28\nv_add_u32 v9, {WB}, v9\nv_add_u32 v10, {2*24576}, v9")
    A("v_lshrrev_b32 v4, 4, v0\ns_lshl_b32 s68, s41, 2\nv_xor_b32 v4, s68, v4\nv_xor_b32 v4, v4, v21\nv_lshlrev_b32 v4, 4, v4\nv_lshl_add_u32 v4, v20, 7, v4\ns_lshl_b32 s68, s89, 10\nv_add_u32 v4, s68, v4")
    A("v_mov_b32 v12, 0\nv_mov_b32 v13, 0\nv_mov_b32 v14, 0\nv_mov_b32 v15, 0")
    A("v_lshlrev_b32 v2, 4, v0\nv_mov_b32 v19, 0x3f803f80")
    srd(A,24,8,512*3584); srd(A,28,10,512*3584); srd(A,36,14,WS_SIZE); srd(A,76,72,1792*1024); srd(A,60,12,512*1024); srd(A,64,74,2048*1024)
    A("s_bfe_u32 s59, s2, 0x20003\ns_lshl_b32 s43, s3, 2\ns_add_u32 s43, s43, s59")
    A("s_lshr_b32 s44, s2, 5")
    A("s_lshl_b32 s45, s44, 3\ns_add_u32 s45, s45, s40")
    A("s_lshr_b32 s46, s3, 1\ns_lshl_b32 s46, s46, 2\ns_add_u32 s46, s46, s59")
    A("s_and_b32 s47, s3, 1\ns_mul_i32 s47, s47, 7\ns_add_u32 s47, s47, s44")
    A(f"s_lshl_b32 s49, s43, 17\ns_add_u32 s49, s49, s101\ns_add_u32 s49, s49, {WS_KV}")
    A(f"s_lshl_b32 s50, s46, 17\ns_add_u32 s50, s50, {WS_XN}")
    A(f"v_mul_u32_u24 v{vG}, 3584, v29\nv_add_u32 v{vG}, v{vG}, v31\ns_lshl_b32 s68, s47, 8\nv_add_u32 v{vG}, s68, v{vG}\nv_xor_b32 v{vU}, 32, v{vG}")
    A(f"s_lshr_b32 s68, s101, 5\nv_add_u32 v29, s68, v20\nv_lshl_add_u32 v{vD}, v29, 10, v31\ns_lshl_b32 s68, s44, 7\nv_add_u32 v{vD}, s68, v{vD}")
    A(f"s_mul_i32 s51, s43, {224*1024}\ns_lshl_b32 s68, s101, 2\ns_add_u32 s51, s51, s68\ns_add_u32 s51, s51, {WS_H}")
    A("s_lshr_b32 s48, s40, 2")
    A(f"v_and_b32 v3, 15, v0\nv_lshlrev_b32 v3, 4, v3\nv_lshl_add_u32 v3, v1, 8, v3\nv_add_u32 v3, {KVB+1024}, v3\nv_add_u32 v{aK}, {KVB}, v2")
    A("s_mov_b32 s52, 0xffff\ns_mov_b32 s53, 0xffff")
    A(f"s_lshl_b32 s68, s41, 13\nv_add_u32 v{aX+4}, s68, v23")
    for kq in range(1,4): A(f"v_xor_b32 v{aX+4+kq}, {32*kq}, v{aX+4}")
    for kq in range(4): A(f"v_add_u32 v{aX+kq}, 0x10000, v{aX+4+kq}")
    A(f"v_lshl_add_u32 v{aW+2}, v27, 13, v28\nv_lshl_add_u32 v{aW+2}, v1, 10, v{aW+2}\ns_lshl_b32 s68, s48, 14\ns_add_u32 s68, s68, 16384\nv_add_u32 v{aW+2}, s68, v{aW+2}")
    A(f"v_xor_b32 v{aW+3}, 32, v{aW+2}\nv_add_u32 v{aW}, 0x10000, v{aW+2}\nv_add_u32 v{aW+1}, 0x10000, v{aW+3}")
    A(f"s_lshl_b32 s68, s41, 14\ns_lshl_b32 s70, s48, 13\ns_add_u32 s68, s68, s70\nv_add_u32 v{aH+1}, s68, v2\nv_add_u32 v{aH}, 0x10000, v{aH+1}")
    A(f"v_lshl_add_u32 v{aD+1}, v1, 9, v28\ns_lshl_b32 s68, s48, 14\ns_add_u32 s68, s68, 32768\nv_add_u32 v{aD+1}, s68, v{aD+1}\nv_add_u32 v{aD}, 0x10000, v{aD+1}")
    A(f"s_lshl_b32 s54, s46, 2\ns_lshl_b32 s68, s41, 1\ns_add_u32 s54, s54, s68\ns_mul_i32 s54, s54, 112\ns_lshl_b32 s68, s47, 3\ns_add_u32 s54, s54, s68\ns_and_b32 s68, s40, 6\ns_add_u32 s54, s54, s68\ns_lshl_b32 s54, s54, 10\ns_add_u32 s54, s54, {WS_H}\ns_add_u32 s55, s54, {112*1024}")
    A("s_lshl_b32 s80, s48, 12\ns_add_u32 s80, s80, s101")
    A(f"s_lshl_b32 s81, s48, 12\ns_add_u32 s81, s81, s49\ns_lshl_b32 s82, s48, 16\ns_add_u32 s82, s82, s50\ns_mul_i32 s83, s48, {32*3584}\ns_lshl_b32 s84, s48, 17\ns_mul_i32 s85, s48, {112*1024}\ns_add_u32 s85, s85, s51")
    A("s_lshr_b32 s86, s46, 1\ns_mul_i32 s68, s43, 37\ns_lshr_b32 s68, s68, 8\ns_mul_i32 s68, s68, 7\ns_sub_u32 s87, s43, s68")
    if not ROT: A("s_mov_b32 s86, 0\ns_mov_b32 s87, 0")
    rotU=lambda n: f"s_add_u32 s88, s86, {n}\ns_and_b32 s88, s88, 7\n"
    rotD=lambda n: f"s_add_u32 s88, s87, {n}\ns_sub_u32 s89, s88, 7\ns_cmp_ge_u32 s88, 7\ns_cselect_b32 s88, s89, s88\n"
    def dmaKV(vm,it,hi=None):
        vm.add(("KV",it))
        if hi is None: return [f"s_add_u32 m0, s80, {KVB+(it%3)*KVS}\ns_add_u32 s59, s81, {it*8192}\nbuffer_load_dwordx4 v2, s[32:35], s59 offen sc1 lds"]
        return [f"s_add_u32 m0, s101, {KVB+(it%3)*KVS+hi*4096}\ns_add_u32 s59, s49, {it*8192+hi*4096}\nbuffer_load_dwordx4 v2, s[32:35], s59 offen sc1 lds"]
    def dmaUX(vm,n,hi=None):
        b=GB[n%2]; vm.add(("U",n),2)
        m,s,o1,o2=("s80","s82",0,0) if hi is None else ("s101","s50",hi*8192,hi*65536)
        return [f"s_lshl_b32 s59, {m}, 1\ns_add_u32 m0, s59, {b+o1}\n"+rotU(n)+f"s_lshl_b32 s59, s88, 7\ns_add_u32 s59, s59, {s}\n"+(f"s_add_u32 s59, s59, {o2}\n" if o2 else "")+f"buffer_load_dwordx4 v{vX}, s[36:39], s59 offen sc1 lds",
                f"s_add_u32 m0, m0, 1024\ns_nop 0\nbuffer_load_dwordx4 v{vX+1}, s[36:39], s59 offen sc1 lds"]
    def dmaUW(vm,n,hi=None):
        b=GB[n%2]; L=[]; vm.add(("U",n),4)
        for c in range(4):
            if c==0: so=rotU(n)+f"s_mul_i32 s59, s88, {64*3584}\n"+("s_add_u32 s59, s59, s83" if hi is None else f"s_add_u32 s59, s59, {hi*32*3584}")
            else: so="s_add_u32 s59, s59, 128" if c==2 else "s_nop 0"
            m=f"s80, {b+16384+c*8192}" if hi is None else f"s101, {b+16384+c*8192+hi*4096}"
            L.append(f"s_add_u32 m0, {m}\n{so}\nbuffer_load_dwordx4 v{vG+c%2}, s[{24+4*(c%2)}:{27+4*(c%2)}], s59 offen lds")
        return L
    def dmaU(vm,n,hi=None): return dmaUX(vm,n,hi)+dmaUW(vm,n,hi)
    def dmaRows(vm,tag,dst,pre,srdn):
        vm.add(tag,4)
        return [(f"s_lshl_b32 s90, s80, 2\n" if i==0 else "")+f"s_add_u32 m0, s90, {dst+i*1024}\n"+(pre if i==0 else "s_add_u32 s59, s59, 8192\n")+f"buffer_load_dwordx4 v{vD}, s[{srdn}:{srdn+3}], s59 offen lds" for i in range(4)]
    def dmaDW(vm,n): return dmaRows(vm,("D",n),GB[n%2]+32768,rotD(n)+"s_lshl_b32 s59, s88, 18\ns_add_u32 s59, s59, s84\n",76)
    def dmaWO(vm): return dmaRows(vm,"wo",GB[1],"s_mov_b32 s59, s84\n",60)+dmaRows(vm,"wo",GB[1]+32768,f"s_add_u32 s59, s84, {256*1024}\n",60)
    def dmaDH(vm,n):
        b=GB[n%2]; vm.add(("D",n),4)
        return [(f"s_lshl_b32 s59, s80, 2\ns_add_u32 m0, s59, {b}\n"+rotD(n)+"s_lshl_b32 s59, s88, 14\ns_add_u32 s59, s59, s85\n" if i==0 else "")+f"buffer_load_dwordx4 v2, s[32:35], s59 offen offset:{1024*i} sc1 lds" for i in range(4)]
    A(f"s_mul_i32 s91, s48, {32*3072}")
    if XBAR==2: A("s_barrier")
    for d in range(NW0):
        for l in dmaW(vm,d,[None]): A(l)
    st.mark(A,0)
    for i in range(8):
        if i%2==0: A(f"s_waitcnt vmcnt({vm.n_after(('x',i+1))})")
        for d in range(4): A(f"v_dot2c_f32_bf16 v{12+d%2}, v{X+4*i+d}, v19\nv_dot2c_f32_bf16 v{14+d%2}, v{X+4*i+d}, v{X+4*i+d}")
    st.mark(A,1)
    later=[]
    for d in range(NW0,NW1): later+=dmaW(vm,d,[None])
    A("s_nop 2\nv_add_f32 v12, v12, v13\nv_add_f32 v13, v14, v15\ns_nop 1")
    for mod in ("quad_perm:[1,0,3,2]","quad_perm:[2,3,0,1]","row_half_mirror"):
        A(f"v_add_f32_dpp v12, v12, v12 {mod} row_mask:0xf bank_mask:0xf\nv_add_f32_dpp v13, v13, v13 {mod} row_mask:0xf bank_mask:0xf\ns_nop 0")
    A(f"v_mul_f32 v12, {f2u(1/512):#x}, v12\nv_mul_f32 v13, {f2u(1/512):#x}, v13")
    A("v_fma_f32 v13, -v12, v12, v13\nv_max_f32 v13, 0, v13")
    A("v_cvt_pk_bf16_f32 v13, v13, v13\nv_and_b32 v13, 0xffff0000, v13")
    A(f"v_add_f32 v13, {f2u(1e-5):#x}, v13")
    A("v_cvt_pk_bf16_f32 v13, v13, v13\nv_and_b32 v13, 0xffff0000, v13\nv_sqrt_f32 v13, v13")
    A("v_cvt_pk_bf16_f32 v12, v12, v12\nv_cvt_pk_bf16_f32 v13, v13, v13\nv_and_b32 v13, 0xffff0000, v13\nv_rcp_f32 v14, v13\nv_and_b32 v12, 0xffff0000, v12")
    A("v_mov_b32 v15, v14\nv_mul_f32 v16, -v12, v14\nv_mov_b32 v17, v16")
    for i in range(8):
        for d in range(0,4,2):
            r=X+4*i+d
            A(f"v_lshlrev_b32 v20, 16, v{r}\nv_and_b32 v21, 0xffff0000, v{r}\nv_lshlrev_b32 v22, 16, v{r+1}\nv_and_b32 v23, 0xffff0000, v{r+1}")
            A(f"v_pk_fma_f32 v[20:21], v[20:21], v[14:15], v[16:17]\nv_pk_fma_f32 v[22:23], v[22:23], v[14:15], v[16:17]\nv_cvt_pk_bf16_f32 v{r}, v20, v21\nv_cvt_pk_bf16_f32 v{r+1}, v22, v23")
        A(f"ds_write_b128 v4, {vr(X+4*i,4)} offset:{8192*i}")
    for l in later: A(l)
    A(f"s_waitcnt vmcnt({vm.n_after(('W',0))}) lgkmcnt(0)\ns_barrier\ns_add_u32 s58, s58, 1")
    st.mark(A,2)
    vmh=copy.deepcopy(vm); vmc=vm
    A("s_cmp_ge_u32 s40, 4\ns_cbranch_scc1 p1_help\ns_setprio 1")
    FS=[64,80,32]; ACC=96
    def reads(F,kp):
        d=kp//4; ks=kp%4; sl=d%4
        r=[f"ds_read_b128 {vr(F,4)}, v{5+ks} offset:{d*8192}"]
        for c in range(3):
            for i in range(2): r.append(f"ds_read_b64_tr_b16 {vr(F+4+4*c+2*i,2)}, v{9+sl//2} offset:{(sl%2)*24576+c*8192+(16*ks+4*i)*128}")
        return r
    A("s_lshl_b32 s68, s101, 1\nv_add_u32 v20, s68, v2\nds_read_b128 v[48:51], v20\nds_read_b128 v[52:55], v20 offset:1024")
    for l in reads(FS[0],0)+reads(FS[1],1): A(l)
    A(f"s_and_b32 s59, s100, 7\ns_lshl_b32 s59, s59, 7\ns_add_u32 s59, s59, s57\ns_add_u32 s59, s59, {WS_XN}")
    pre=[f"buffer_store_dwordx4 v[48:51], v{vX}, s[32:35], s59 offen sc1",
         f"buffer_store_dwordx4 v[52:55], v{vX+1}, s[32:35], s59 offen sc1",
         "s_lshl_b32 s68, s98, 1\ns_add_u32 s68, s68, s41\ns_lshl_b32 s59, s99, 1\ns_add_u32 s59, s59, s42\ns_lshl_b32 s59, s59, 7\ns_add_u32 s59, s59, s68",
         f"s_lshl_b32 s70, s59, 10\ns_add_u32 s71, s70, {64*1024}\ns_lshl_b32 s68, s59, 11\ns_add_u32 s68, s68, {WS_KV}\ns_add_u32 s69, s68, {64*2048}",
         f"v_and_b32 v20, 31, v0\nv_lshlrev_b32 v20, 6, v20\nv_lshl_add_u32 v20, v1, 3, v20\ns_lshl_b32 s72, s40, 11\ns_add_u32 s72, s72, {VSC}\nv_add_u32 v20, s72, v20",
         "v_lshlrev_b32 v22, 10, v1\nv_lshl_add_u32 v22, v27, 8, v22\nv_bfe_u32 v23, v0, 2, 2\nv_lshl_add_u32 v22, v23, 6, v22",
         f"v_and_b32 v23, 3, v0\nv_lshl_add_u32 v22, v23, 3, v22\nv_add_u32 v22, s72, v22\nv_mov_b32 v24, {f2u(0.25*LOG2E):#x}\nv_mov_b32 v25, v24"]
    for kp in range(32):
        F=FS[kp%3]; d=kp//4
        fill=[]
        if kp==4*F1D+2:
            A("s_waitcnt vmcnt(0) lgkmcnt(0)\ns_barrier")
            fill.append("FLAG")
        elif kp%4==2:
            w=f"vmcnt({vmc.n_after(('W',d+1))}) " if ('W',d+1) in vmc.ops else ""
            A(f"s_waitcnt {w}lgkmcnt(0)\ns_barrier")
        else: A(f"s_waitcnt lgkmcnt({7 if kp<31 else 0})")
        if kp%4==2: st.mark(A,32+d)
        fl="FLAG" in fill; fill=[]
        if kp<30: fill+=reads(FS[(kp+2)%3],kp+2)
        if pre:
            fill.append(pre.pop(0))
            if kp<2: vmc.add("xst")
        weave(A,[mfma32(ACC+16*c,F+4+4*c,F,(ACC+16*c) if kp else "0") for c in (2,1,0)],fill)
        if fl: flag_store(A,"p1_f1",0,f"s_lshl_b32 s59, s98, 10\ns_lshl_b32 s74, s99, 7\ns_add_u32 s59, s59, s74\ns_add_u32 s59, s59, {FL1}",56,57)
    st.mark(A,3)
    V=ACC+32; Kk=ACC+16
    A("s_nop 9")
    for d in range(8): A(f"v_cvt_pk_bf16_f32 v{V+d}, v{V+2*d}, v{V+2*d+1}")
    for q in range(4): A(f"ds_write_b64 v20, {vr(V+2*q,2)} offset:{16*q}")
    for d in range(8): A(f"v_cvt_pk_bf16_f32 v{Kk+d}, v{Kk+2*d}, v{Kk+2*d+1}")
    A("s_waitcnt lgkmcnt(0)")
    for hh in range(2):
        for ii in range(2): A(f"ds_read_b64_tr_b16 {vr(V+4*hh+2*ii,2)}, v22 offset:{32*hh+512*ii}")
    A(f"buffer_store_dwordx4 {vr(Kk,4)}, v2, s[32:35], s68 offen sc1\nbuffer_store_dwordx4 {vr(Kk+4,4)}, v2, s[32:35], s69 offen sc1")
    A("s_waitcnt lgkmcnt(0)")
    A(f"buffer_store_dwordx4 {vr(V,4)}, v2, s[32:35], s68 offen offset:1024 sc1\nbuffer_store_dwordx4 {vr(V+4,4)}, v2, s[32:35], s69 offen offset:1024 sc1")
    for r in range(0,16,2): A(f"v_pk_mul_f32 {vr(ACC+r,2)}, {vr(ACC+r,2)}, v[24:25]")
    for d in range(8): A(f"v_cvt_pk_bf16_f32 v{ACC+d}, v{ACC+2*d}, v{ACC+2*d+1}")
    A(f"buffer_store_dwordx4 {vr(ACC,4)}, v2, s[32:35], s70 offen sc1\nbuffer_store_dwordx4 {vr(ACC+4,4)}, v2, s[32:35], s71 offen sc1")
    st.mark(A,49)
    A("s_setprio 0\ns_branch p1_join")
    A.label("p1_help")
    A(f"v_and_b32 v22, 15, v0\nv_lshlrev_b32 v22, 7, v22\ns_lshl_b32 s56, s46, 11\ns_add_u32 s56, s56, {FL1}")
    A("s_cmp_eq_u32 s44, 7\ns_cselect_b32 s26, 0, s26\ns_cselect_b32 s30, 0, s30\ns_cselect_b32 s38, 0, s38")
    nxt=NW1
    if nxt<4:
        for l in dmaW(vmh,nxt,[0,1]): A(l)
        nxt+=1
    for d in range(8):
        st.mark(A,40+d)
        if d<7: A(f"s_waitcnt vmcnt({vmh.n_after(('W',d+1))})")
        st.mark(A,32+d)
        A("s_barrier")
        if nxt<8:
            assert nxt<=d+4
            for l in dmaW(vmh,nxt,[0,1]): A(l)
            nxt+=1
        if d==5:
            for l in dmaUW(vmh,0,0): A(l)
        if d==6:
            for l in dmaUW(vmh,0,1): A(l)
            A("buffer_load_dword v23, v22, s[32:35], s56 offen sc1"); vmh.add("f1")
    poll_check(A,"p1_c1",22,23,"s56",0,False)
    st.mark(A,48)
    for hi in range(2):
        for l in dmaUX(vmh,0,hi): A(l)
    if U1H:
        for hi in range(2):
            for l in dmaU(vmh,1,hi): A(l)
    st.mark(A,49)
    A(f"s_waitcnt vmcnt({12 if U1H else 0})")
    st.mark(A,55)
    A.label("p1_join")
    A("s_cmp_eq_u32 s44, 7\ns_cselect_b32 s26, 0, s26\ns_cselect_b32 s30, 0, s30\ns_cselect_b32 s38, 0, s38")
    for i in range(8): A(f"v_mov_b32 v{VA+i}, 0")
    A("s_mov_b32 exec_lo, 0x110000\ns_mov_b32 exec_hi, 0x110000")
    for i in range(8): A(f"v_mov_b32 v{VA+i}, 0x3f803f80")
    A("s_mov_b64 exec, -1")
    A(f"v_lshlrev_b32 v30, 7, v0\ns_lshr_b32 s56, s43, 1\ns_lshl_b32 s56, s56, 13\ns_add_u32 s56, s56, {FL2}"+ONLY7)
    st.mark(A,4)
    vm=VM(); vm.add(("U",1)); vm.add(("U",0))
    if F2G<0: vm=VM(); vm.add(("U",0)); vm.add(("U",1))
    def f2flag():
        if F2G<0: A("s_cmp_ge_u32 s40, 4\ns_cbranch_scc1 j_nw\ns_waitcnt vmcnt(0)\nj_nw:")
        else: A(f"s_waitcnt vmcnt({vm.n_after(('U',0))})")
        flag_store(A,"p1_f2",None,f"s_lshl_b32 s59, s99, 1\ns_add_u32 s59, s59, s42\ns_lshl_b32 s59, s59, 6\ns_lshl_b32 s68, s98, 1\ns_add_u32 s59, s59, s68\ns_add_u32 s59, s59, s41\ns_lshl_b32 s59, s59, 7\ns_add_u32 s59, s59, {FL2}",28,29,"s_cmp_lt_u32 s40, 4"); vm.add("fs")
        st.mark(A,57)
    if NPRE==1 or F2G<0: f2flag()
    kv=lambda t: ((t//4)%3)*KVS+(t%4)*2048
    def up_reads(g):
        n,ks=g//4,g%4; F=FR[g%2]; b=n%2
        L=[f"ds_read_b128 {vr(F+8+4*t,4)}, v{aX+4*b+ks} offset:{t*4096}" for t in range(2)]
        for jj in range(2):
            for i in range(2): L.append(f"ds_read_b64_tr_b16 {vr(F+4*jj+2*i,2)}, v{aW+2*b+jj} offset:{(16*ks+4*i)*128}")
        return L
    def up_mf(g):
        F=FR[g%2]
        return [mfma32(GACC+16*(2*t+jj),F+4*jj,F+8+4*t,(GACC+16*(2*t+jj)) if g else "0") for t in range(2) for jj in range(2)]
    def dn_reads(g):
        n,u=g//4,g%4; F=FR[g%2]; b=n%2; L=[]
        for k in range(2):
            ks=2*u+k
            L.append(f"ds_read_b128 {vr(F+8+4*k,4)}, v{aH+b} offset:{ks*1024}")
            for i in range(2): L.append(f"ds_read_b64_tr_b16 {vr(F+4*k+2*i,2)}, v{aD+b} offset:{ks*2048+i*1024}")
        return L
    def dn_mf(g):
        F=FR[g%2]
        return [mfma32(DACC,F+4*k,F+8+4*k,DACC if (g or k) else "0") for k in range(2)]
    def up_epi(ti):
        acc=GACC+16*ti; t,jj=ti//2,ti%2
        L=[f"v_max_f32 v{acc+r}, 0, v{acc+r}" for r in range(8)]+[f"v_mul_f32 v{acc+r}, v{acc+r}, v{acc+8+r}" for r in range(8)]
        L+=[f"v_cvt_pk_bf16_f32 v{acc+d}, v{acc+2*d}, v{acc+2*d+1}" for d in range(4)]
        L.append(f"buffer_store_dwordx4 {vr(acc,4)}, v2, s[36:39], s{54+t} offen offset:{1024*jj} sc1")
        return L
    for n in range(NPRE):
        if n==NPRE-1:
            if n==0: A("buffer_load_dword v31, v30, s[32:35], s56 offen sc1"); vm.add("f2")
            st.mark(A,56)
            poll_check(A,"m_c2",30,31,"s56",vm.n_after("f2"))
        A((f"s_waitcnt vmcnt({vm.n_after(('U',n))}) lgkmcnt(0)" if n else "s_waitcnt lgkmcnt(0)")+"\ns_barrier")
        if n==2: st.mark(A,7)
        st.mark(A,50+n)
        if n==NPRE-1:
            A(f"s_lshl_b32 s59, s43, 6\ns_add_u32 s59, s59, s45\ns_lshl_b32 s59, s59, 10\nbuffer_load_dwordx4 {vr(Q,4)}, v2, s[32:35], s59 offen sc1"); vm.add("q")
            for l in dmaKV(vm,0)+dmaKV(vm,1): A(l)
        dml=dmaU(vm,n+1) if (n or not U1H) else []
        for u in range(4):
            g=4*n+u
            if u>0: A("s_waitcnt lgkmcnt(0)")
            fill=up_reads(g)+dml[:3]; dml=dml[3:]
            if n==NPRE-2 and u==3: fill.append("buffer_load_dword v31, v30, s[32:35], s56 offen sc1"); vm.add("f2")
            if g>0: weave(A,up_mf(g-1),fill)
            else:
                for l in fill: A(l)
            if g==F2G and NPRE>1: f2flag()
    st.mark(A,5)
    A(f"s_waitcnt vmcnt({vm.n_after(('KV',0))})\ns_barrier")
    st.mark(A,6)
    A(f"ds_read_b128 {vr(K,4)}, v{aK}")
    A(f"s_mov_b64 exec, s[52:53]\nds_read_b128 {vr(VA,4)}, v3\ns_mov_b64 exec, -1")
    A("s_waitcnt lgkmcnt(1)")
    A(mfma32(SA,K,Q,"0"))
    for r in range(16): A(f"v_mov_b32 v{O+r}, 0")
    def max16(dst,S,first):
        if first:
            A(f"v_max3_f32 v{dst}, v{S}, v{S+1}, v{S+2}\nv_max_f32 v{dst}, v{dst}, v{S+3}")
            s0=4
        else: s0=0
        for r in range(s0,16,2): A(f"v_max3_f32 v{dst}, v{dst}, v{S+r}, v{S+r+1}")
    max16(28,SA,True)
    A(f"v_add_f32 v28, {f2u(MOFF):#x}, v28")
    A(f"v_mov_b32 v29, v28\nv_mov_b32 v{P+4}, 0\nv_mov_b32 v{P+5}, 0\nv_permlane32_swap_b32 v28, v29\nv_max_f32 v28, v28, v29")
    for r in range(16): A(f"v_sub_f32 v{C+r}, 0, v28")
    A(f"v_mov_b32 v{P+6}, 0\nv_mov_b32 v{P+7}, 0")
    A(mfma32(SA,K,Q,C))
    A(f"ds_read_b128 {vr(K,4)}, v{aK} offset:2048\ns_nop 5")
    if PRIO: A("s_setprio 1")
    UP0=-NPRE; D0=UP0+8+DGAP
    for it in range(16):
        needs=[]
        if it+1<16: needs.append(vm.n_after(("KV",it+1)))
        n=it-UP0; dn=it-D0
        if 0<=n<8: needs.append(vm.n_after(("U",n)))
        if 0<=dn<7: needs.append(vm.n_after(("D",dn)))
        if n==9: needs.append(vm.n_after("hst"))
        if dn==-1: poll_check(A,"m_c3",30,31,"s56",vm.n_after("f3"))
        A((f"s_waitcnt vmcnt({min(needs)}) lgkmcnt(0)" if needs else "s_waitcnt lgkmcnt(0)")+"\ns_barrier")
        st.mark(A,8+it)
        if PRIO: A(f"s_cmp_lt_u32 s40, 4\ns_cbranch_scc1 m_pa{it}\ns_setprio 2\nm_pa{it}:")
        if n==9:
            A(f"v_min_u32 v30, 13, v0\nv_lshlrev_b32 v30, 7, v30\ns_lshr_b32 s56, s43, 1\ns_lshl_b32 s56, s56, 11\ns_add_u32 s56, s56, {FL3}"+ONLY7)
        dml=[]
        if dn+1==0: dml+=dmaDH(vm,0)
        if 0<dn+1<7: dml+=dmaDH(vm,dn+1)+dmaDW(vm,dn+1)
        if 2<=n+1<8: dml+=dmaU(vm,n+1)
        if it+2<16: dml+=dmaKV(vm,it+2)
        if n==7: dml+=dmaDW(vm,0)
        if dn==6: dml+=dmaWO(vm)
        if n==7 and WOT: dml.append("s_lshl_b32 s59, s2, 3\ns_add_u32 s59, s59, s40\ns_lshl_b32 s59, s59, 8\nv_lshlrev_b32 v28, 7, v0\ns_mov_b64 exec, 3\nbuffer_load_dword v195, v28, s[60:63], s59 offen\ns_mov_b64 exec, -1"); vm.add("t")
        if n==9:
            for l in dml: A(l)
            dml=[]
            flag_store(A,"m_f3",0,f"s_lshl_b32 s59, s46, 11\ns_lshl_b32 s68, s47, 7\ns_add_u32 s59, s59, s68\ns_add_u32 s59, s59, {FL3}",28,29,"s_cmp_lg_u32 s44, 7"); vm.add("fs")
        for u in range(4):
            t=4*it+u
            if PRIO and u==PRIO: A(f"s_cmp_lt_u32 s40, 4\ns_cbranch_scc1 m_pb{it}\ns_setprio 0\nm_pb{it}:")
            if PROG and u!=1: A(f"s_setprio {[3,3,2,1][u]}")
            Sc,Sn=(SA,SB) if u%2==0 else (SB,SA)
            val=[f"v_exp_f32 v{Sc+r}, v{Sc+r}" for r in range(8)]+[f"v_cvt_pk_bf16_f32 v{P+d}, v{Sc+2*d}, v{Sc+2*d+1}" for d in range(4)]+[f"v_exp_f32 v{Sc+r}, v{Sc+r}" for r in range(8,16)]+[f"v_cvt_pk_bf16_f32 v{P+d}, v{Sc+2*d}, v{Sc+2*d+1}" for d in range(4,8)]
            g=4*n+u; gd=4*dn+u
            ex=[]; rds=[]
            if 0<=g-1<32: ex+=up_mf(g-1)
            if 0<=g<32: rds+=up_reads(g)
            if 0<=gd-1<28: ex+=dn_mf(gd-1)
            if 0<=gd<28: rds+=dn_reads(gd)
            extra=[]
            if n==8 and u in (1,2):
                for ti in ([0,1],[2,3])[u-1]: extra+=up_epi(ti); vm.add("hst")
            if dn==-2 and u==2: extra.append("buffer_load_dword v31, v30, s[32:35], s56 offen sc1"); vm.add("f3")
            k=(len(dml)+1)//2 if u==0 and n!=8 else len(dml)
            mine=dml[:k]; dml=dml[k:]
            EXm="s_mov_b64 exec, s[52:53]"; EN="s_mov_b64 exec, -1"
            qk=[mfma32(Sn,K,Q,C)]+([f"ds_read_b128 {vr(K,4)}, v{aK} offset:{kv(t+2)}"] if t+2<64 else [])
            if t==63: qk=[]
            pv1=[mfma32(O,VB,P+4,O),EXm,f"ds_read_b128 {vr(VB,4)}, v3 offset:{kv(t)+512}",EN]
            pv0=[mfma32(O,VA,P,O)]+([EXm,f"ds_read_b128 {vr(VA,4)}, v3 offset:{kv(t+1)}",EN] if t+1<64 else [])
            nx=len(ex); e=[[m] for m in ex]
            seq={0:[qk,pv1,pv0],2:[qk]+e[0:1]+[pv1,pv0]+e[1:2],4:[qk]+e[0:1]+[pv1]+e[1:3]+[pv0]+e[3:4]}[nx]
            ng=len(seq)
            for i,x in enumerate(rds): seq[min(ng-2,(i*(ng-1))//max(1,len(rds)))].append(x)
            for i,x in enumerate(mine): seq[(i*ng)//len(mine)].append(x)
            if u>0: A("s_waitcnt lgkmcnt(0)")
            val=val+extra
            cost=[8 if "exp" in x else 4 for x in val]; tot=sum(cost); acc=0; gi=0
            for i,x in enumerate(val):
                if PROG and u==3 and i==12: A("s_setprio 0")
                while gi<ng and ((acc>=tot*gi/ng and not (seq[gi] is pv0 and i<14)) or (seq[gi] is pv1 and i>=19)):
                    for y in seq[gi]: A(y)
                    gi+=1
                A(x); acc+=cost[i]
            while gi<ng:
                for y in seq[gi]: A(y)
                gi+=1
    A("s_waitcnt lgkmcnt(0)\ns_nop 0")
    A(mfma32(O,VB,P+4,O))
    if D0+7>=16:
        for m in dn_mf(4*(16-D0)-1): A(m)
    st.mark(A,24)
    A("s_lshl_b32 s57, s43, 1\ns_add_u32 s57, s57, s48\ns_lshl_b32 s57, s57, 15\ns_lshl_b32 s68, s44, 7\ns_add_u32 s57, s57, s68\ns_lshr_b32 s68, s101, 5\ns_add_u32 s57, s57, s68")
    A(f"v_and_b32 v{XR+4}, 31, v0\nv_lshlrev_b32 v{XR+4}, 10, v{XR+4}\nv_lshl_add_u32 v{XR+4}, v1, 3, v{XR+4}")
    A(f"s_lshl_b32 s59, s45, 5\ns_add_u32 s59, s59, s43\ns_lshl_b32 s59, s59, 10\ns_add_u32 s70, s59, {WS_O}")
    A(f"v_max3_f32 v28, |v{O}|, |v{O+1}|, |v{O+2}|\nv_max3_f32 v28, v28, |v{O+3}|, |v{O+4}|\nv_max3_f32 v28, v28, |v{O+5}|, |v{O+6}|")
    A(f"v_max3_f32 v28, v28, |v{O+7}|, v{O+8}")
    A(f"v_add_f32 v29, v{O}, v{O+1}")
    for r in range(2,9): A(f"v_add_f32 v29, v29, v{O+r}")
    A("v_fma_f32 v28, 0, v29, v28")
    A(f"v_cmp_ngt_f32 vcc, {f2u(2.0**120):#x}, v28")
    A("s_nop 4\ns_cbranch_vccnz m_fallback")
    A.label("m_fin")
    A(f"v_rcp_f32 v28, v{O+8}\ns_nop 0")
    for r in range(8): A(f"v_mul_f32 v{O+r}, v28, v{O+r}")
    for d in range(4): A(f"v_cvt_pk_bf16_f32 v{P+d}, v{O+2*d}, v{O+2*d+1}")
    A(f"buffer_store_dwordx4 {vr(P,4)}, v2, s[32:35], s70 offen sc1"); vm.add("ost"); vm.add("x",2)
    A(f"buffer_load_dwordx2 {vr(XR,2)}, v{XR+4}, s[16:19], s57 offen\nbuffer_load_dwordx2 {vr(XR+2,2)}, v{XR+4}, s[16:19], s57 offen offset:16")
    A(f"s_lshl_b32 s68, s41, 14\ns_lshl_b32 s69, s48, 13\ns_add_u32 s68, s68, s69\ns_lshl_b32 s69, s42, 12\ns_add_u32 s68, s68, s69\nv_add_u32 v28, s68, v{aK}")
    A(f"s_lshl_b32 s68, s48, 14\ns_lshl_b32 s69, s101, 1\ns_add_u32 s68, s68, s69\nv_add_u32 v29, s68, v{aK}")
    A(f"v_and_b32 v30, 7, v0\nv_lshlrev_b32 v30, 7, v30\ns_lshl_b32 s56, s43, 1\ns_add_u32 s56, s56, s48\ns_lshl_b32 s56, s56, 12\ns_add_u32 s56, s56, s101\ns_add_u32 s56, s56, {FL4}")
    f4=lambda: (A(f"s_waitcnt vmcnt({vm.n_after('ost')})"), flag_store(A,"m_f4",None,f"s_lshl_b32 s59, s45, 12\ns_lshl_b32 s68, s43, 7\ns_add_u32 s59, s59, s68\ns_add_u32 s59, s59, {FL4}",32,33), vm.add("fs"))
    done=False
    for dn in range(max(0,16-D0),7):
        A(f"s_waitcnt vmcnt({vm.n_after(('D',dn))})\ns_barrier")
        for l in dn_reads(4*dn): A(l)
        dml=(dmaDH(vm,dn+1)+dmaDW(vm,dn+1)) if dn<6 else dmaWO(vm)
        for u in range(4):
            A("s_waitcnt lgkmcnt(0)")
            weave(A,dn_mf(4*dn+u),(dn_reads(4*dn+u+1) if u<3 else [])+dml[2*u:2*u+2])
        if not done: f4(); done=True
    if not done: f4()
    A(f"s_waitcnt vmcnt({vm.n_after('wo')})\ns_nop 8\ns_barrier")
    st.mark(A,25)
    for q in range(4): A(f"ds_write_b128 v28, {vr(DACC+4*q,4)} offset:{q*1024}")
    A(f"s_lshl_b32 s68, s48, 14\ns_add_u32 s68, s68, 32768\ns_lshl_b32 s69, s101, 4\ns_sub_u32 s68, s69, s68\nv_add_u32 v34, s68, v{aD+1}\ns_lshl_b32 s68, s42, 6\nv_xor_b32 v34, s68, v34\nv_xor_b32 v35, 64, v34")
    A(f"s_lshl_b32 s70, s43, 1\ns_add_u32 s70, s70, s48\ns_lshl_b32 s70, s70, 15\ns_lshl_b32 s68, s101, 3\ns_add_u32 s70, s70, s68\ns_add_u32 s70, s70, {WS_O}\ns_add_u32 s71, s70, 4096")
    A("s_waitcnt lgkmcnt(0)\ns_barrier")
    A("buffer_load_dword v31, v30, s[32:35], s56 offen sc1")
    for kh in range(2):
        for q in range(2): A(f"ds_read_b128 {vr(40+8*kh+4*q,4)}, v29 offset:{kh*8192+q*1024}")
    AF=128
    A("s_waitcnt lgkmcnt(0)")
    rd=[f"ds_read_b64_tr_b16 {vr(AF+8*n+4*cb+2*i,2)}, v{34+cb} offset:{n*2048+i*1024}" for n in range(8) for cb in range(2) for i in range(2)]
    G=56
    val=[f"v_add_f32 v{G+r}, v{40+r}, v{48+r}" for r in range(8)]+[f"v_mul_f32 v{40+r}, {f2u(-LOG2E):#x}, v{G+r}" for r in range(8)]+[f"v_exp_f32 v{40+r}, v{40+r}" for r in range(8)]+[f"v_add_f32 v{40+r}, 1.0, v{40+r}" for r in range(8)]+[f"v_rcp_f32 v{40+r}, v{40+r}" for r in range(8)]+[f"v_mul_f32 v{G+r}, v{G+r}, v{40+r}" for r in range(8)]
    for i,x in enumerate(val):
        A(x)
        if i<32: A(rd[i])
    poll_check(A,"m_c4",30,31,"s56",0,False)
    st.mark(A,26)
    OF=64; ACS=96
    for i in range(8): A(f"buffer_load_dwordx4 {vr(OF+4*i,4)}, v2, s[32:35], {'s70' if i<4 else 's71'} offen offset:{1024*(i%4)} sc1")
    for d in range(4): A(f"v_lshlrev_b32 v{40+2*d}, 16, v{XR+d}\nv_and_b32 v{41+2*d}, 0xffff0000, v{XR+d}")
    A(f"s_lshl_b32 s68, s40, 13\ns_add_u32 s68, s68, {GB[0]}\nv_add_u32 v36, s68, v2")
    A(f"s_lshl_b32 s68, s48, 15\ns_lshl_b32 s69, s101, 1\ns_add_u32 s68, s68, s69\ns_add_u32 s68, s68, {GB[0]}\nv_add_u32 v37, s68, v2")
    A("s_waitcnt lgkmcnt(0)")
    for n in range(8):
        A(f"s_waitcnt vmcnt({7-n})")
        for cb in range(2): A(mfma32(ACS+16*cb,AF+8*n+4*cb,OF+4*n,(ACS+16*cb) if n else "0"))
    st.mark(A,27)
    A("s_nop 10")
    for q in range(8): A(f"ds_write_b128 v36, {vr(ACS+4*q,4)} offset:{q*1024}")
    A("s_waitcnt lgkmcnt(0)\ns_barrier")
    T=64
    for kq in range(4):
        for q in range(2): A(f"ds_read_b128 {vr(T+8*kq+4*q,4)}, v37 offset:{kq*8192+q*1024}")
    A("s_waitcnt lgkmcnt(4)")
    for r in range(8): A(f"v_add_f32 v{T+r}, v{T+r}, v{T+8+r}")
    A("s_waitcnt lgkmcnt(0)")
    for r in range(8): A(f"v_add_f32 v{T+16+r}, v{T+16+r}, v{T+24+r}")
    for r in range(8): A(f"v_add_f32 v{T+r}, v{T+r}, v{T+16+r}")
    for r in range(8): A(f"v_fma_f32 v{40+r}, v{T+r}, v{G+r}, v{40+r}")
    for d in range(4): A(f"v_cvt_pk_bf16_f32 v{48+d}, v{40+2*d}, v{41+2*d}")
    A(f"buffer_store_dwordx2 v[48:49], v{XR+4}, s[64:67], s57 offen\nbuffer_store_dwordx2 v[50:51], v{XR+4}, s[64:67], s57 offen offset:16")
    flag_store(A,"m_bump",0,f"s_mov_b32 s59, {WS_T}",32,33,"s_cmp_eq_u32 s2, 0")
    if STAMP:
        st.mark(A,28)
        A("s_waitcnt vmcnt(0)")
        st.mark(A,29)
        A("v_subrev_u32 v250, s94, v250\ns_memrealtime s[96:97]\ns_waitcnt lgkmcnt(0)\nv_writelane_b32 v250, s92, 30\nv_writelane_b32 v250, s96, 31")
        A(f"s_lshl_b32 s96, s2, 3\ns_add_u32 s96, s96, s40\ns_lshl_b32 s96, s96, 8\ns_add_u32 s96, s96, {WS_ST}\nv_lshlrev_b32 v251, 2, v0\nbuffer_store_dword v250, v251, s[32:35], s96 offen")
    A.label("k_end")
    A("s_endpgm")
    for name,va,vd,so in spins:
        A.label(name+"_spin")
        A(f"s_mov_b32 s59, {SPIN}")
        A.label(name+"_l")
        A(f"s_sleep {SLEEP}\nbuffer_load_dword v{vd}, v{va}, s[32:35], {so} offen sc1\ns_waitcnt vmcnt(0)\nv_cmp_ne_u32 vcc, s58, v{vd}\ns_sub_u32 s59, s59, 1\ns_nop 3")
        A(f"s_cbranch_vccz {name}_ret\ns_cmp_lg_u32 s59, 0\ns_cbranch_scc1 {name}_l\ns_branch {name}_ret")
    A.label("m_fallback")
    A(f"s_sub_u32 s68, s49, s101\ns_mov_b32 s69, 0\nv_mov_b32 v28, 0xff800000\nv_subrev_u32 v30, {KVB}, v3")
    A.label("m_fb1")
    A(f"buffer_load_dwordx4 {vr(K,4)}, v2, s[32:35], s68 offen sc1\ns_add_u32 s68, s68, 2048\ns_waitcnt vmcnt(0)")
    A(mfma32(SA,K,Q,"0"))
    A("s_nop 15")
    max16(28,SA,False)
    A("s_add_u32 s69, s69, 1\ns_cmp_lt_u32 s69, 64\ns_cbranch_scc1 m_fb1")
    A("v_mov_b32 v29, v28\ns_nop 1\nv_permlane32_swap_b32 v28, v29\nv_max_f32 v28, v28, v29")
    for r in range(16): A(f"v_sub_f32 v{C+r}, 0, v28\nv_mov_b32 v{O+r}, 0")
    A(f"s_sub_u32 s68, s49, s101\ns_mov_b32 s69, 0")
    A.label("m_fb2")
    A(f"buffer_load_dwordx4 {vr(K,4)}, v2, s[32:35], s68 offen sc1\ns_mov_b64 exec, s[52:53]\nbuffer_load_dwordx4 {vr(VA,4)}, v30, s[32:35], s68 offen sc1\nbuffer_load_dwordx4 {vr(VB,4)}, v30, s[32:35], s68 offen offset:512 sc1\ns_mov_b64 exec, -1")
    A("s_add_u32 s68, s68, 2048\ns_waitcnt vmcnt(0)")
    A(mfma32(SA,K,Q,C))
    A("s_nop 15")
    for r in range(16): A(f"v_exp_f32 v{SA+r}, v{SA+r}")
    for d in range(8): A(f"v_cvt_pk_bf16_f32 v{P+d}, v{SA+2*d}, v{SA+2*d+1}")
    A("s_nop 1")
    A(mfma32(O,VA,P,O)); A(mfma32(O,VB,P+4,O))
    A("s_add_u32 s69, s69, 1\ns_cmp_lt_u32 s69, 64\ns_cbranch_scc1 m_fb2")
    A("s_nop 15\nk_last:\ns_branch m_fin")

def main(out):
    hdr=open("cdna_kernels/"+NAME+".s.ref").read().split("\n")
    head=[l for l in hdr if l.startswith(";") and "@launch" not in l]
    T="\n".join(head)+"\n"
    if E("LIST",0): T+=f"; @launch kernel={KN} grid=(256,1,1) block=(512,1,1) lds={LDS}\n"
    else: T+=f"; @launch grid=(256,1,1) block=(512,1,1) lds={LDS}\n"
    T+='.amdgcn_target "amdgcn-amd-amdhsa--gfx950"\n.text\n'
    A=Asm(); kern(A)
    for e in hazard_check(A.text()): print(e)
    T+=f".globl {KN}\n.p2align 8\n.type {KN},@function\n"+A.text()
    T+='.section .rodata,"a"\n'+kdesc(KN,256,102)
    open(out,"w").write(T)
if __name__=="__main__":
    main(sys.argv[1] if len(sys.argv)>1 else "cdna_kernels/"+NAME+".s")
```

```python
import sys, struct, os, copy
from asmlib import *
NAME="recurrent_scan__mha_block__glu_gated_reglu__prompt"
KN=NAME+"_kernel"
WS_Q=0; WS_KV=2<<20; WS_H=6<<20; WS_O=13<<20; WS_XN=22<<20; WS_FL=21<<20; WS_T=WS_FL+98304; WS_SIZE=32<<20; WS_ST=24<<20
FL1=WS_FL; FL2=WS_FL+32768; FL3=WS_FL+65536; FL4=WS_FL+524288; FL2=WS_FL+786432
def f2u(f): return struct.unpack("<I",struct.pack("<f",f))[0]
LOG2E=1.4426950408889634
E=lambda k,d: int(os.environ.get(k,str(d)))
STAMP=E("STAMP",0); TOUCH=E("TOUCH",0); G0=E("G0",0); PRIO=E("PRIO",0); NPRE=E("NPRE",3); DGAP=E("DGAP",4)
SPIN=400000
SLEEP=E('SLEEP',2)
CODEPF=E("CODEPF",1); WTOUCH=E("WTOUCH",0); NW0=E("NW0",1); NW1=E("NW1",2); F1D=E("F1D",4); F1P=E("F1P",22); F1C=E("F1C",25); PBURST=E("PBURST",1); U1H=E("U1H",1); UWD=E("UWD",6); TLB=E("TLB",0); RSW=E("RSW",1); XBAR=E("XBAR",0); F2G=E("F2G",-1); HPRIO=E("HPRIO",0); PROG=E("PROG",1); ROT=E("ROT",1); WOT=E("WOT",1); UT=E("UT",0); UTK=E("UTK",27)
MOFF=90.0
class VM:
    def __init__(s): s.ops=[]
    def add(s,tag,n=1): s.ops+= [tag]*n
    def n_after(s,tag):
        idx=max(i for i,t in enumerate(s.ops) if t==tag)
        return len(s.ops)-1-idx
def weave(A,mf,fill):
    n=len(mf); k=len(fill); j=0
    for i,m in enumerate(mf):
        A(m)
        e=(k*(i+1))//n
        while j<e: A(fill[j]); j+=1
class St:
    def __init__(s): s.pend=None
    def mark(s,A,i):
        if STAMP:
            A(f"s_memtime s[96:97]\ns_waitcnt lgkmcnt(0)\nv_writelane_b32 v250, s96, {i}")
st=St()
WB=65536; GB=[65536,0]; KVB=131072; KVS=8192; VSC=114688; LDS=163840
Q,K,VA,VB,P,C,SA,SB,O=4,8,12,16,20,32,48,64,80
FR=[96,112]; GACC=128; DACC=208
vG,vU,vD=192,193,194; aW,aH,aD=198,202,204; aK=206; XR=224; aX=232; vX=196
WS_XS=WS_FL+131072; WS_CS=WS_FL+262144
CSC=VSC+8192; SSC=VSC+12288
SLOT=[0,32768,131072,65536,98304]
spins=[]
ONLY7="\ns_cmp_eq_u32 s40, 7\ns_cselect_b32 s56, s56, 0x7ff00000"
def poll_check(A,name,vaddr,vdst,soff,wait,only7=True):
    if only7: A(f"s_cmp_eq_u32 s40, 7\ns_cbranch_scc0 {name}_ret")
    A(f"s_waitcnt vmcnt({wait})\nv_cmp_ne_u32 vcc, s58, v{vdst}\ns_nop 4\ns_cbranch_vccnz {name}_spin\n{name}_ret:")
    spins.append((name,vaddr,vdst,soff))
def flag_store(A,name,wave,soff_code,va,vb,cond=None):
    A(soff_code)
    if wave is not None: A(f"s_cmp_eq_u32 s40, {wave}\ns_cselect_b32 s59, s59, 0x7ffffff0")
    if cond: A(f"{cond}\ns_cselect_b32 s59, s59, 0x7ffffff0")
    A(f"v_mov_b32 v{va}, s58\nv_mov_b32 v{vb}, 0\ns_mov_b64 exec, 1\nbuffer_store_dword v{va}, v{vb}, s[32:35], s59 offen sc1\ns_mov_b64 exec, -1")

def kern(A):
    vm=VM()
    A.label(KN)
    A("s_cmp_ge_u32 s2, 256\ns_cbranch_scc1 k_end")
    if STAMP or E("DBG",0): A("s_memrealtime s[92:93]\ns_memtime s[94:95]")
    A("s_load_dwordx4 s[4:7], s[0:1], 0\ns_load_dwordx2 s[14:15], s[0:1], 72\ns_load_dwordx4 s[8:11], s[0:1], 32")
    A("s_load_dwordx4 s[72:75], s[0:1], 48\ns_load_dwordx2 s[12:13], s[0:1], 16")
    if CODEPF:
        A("s_getpc_b64 s[70:71]\nk_pc:\ns_and_b32 s68, s2, 0xf8\nv_add_u32 v26, s68, v0\nv_lshlrev_b32 v26, 7, v26\nv_min_u32 v26, k_last-k_pc, v26\nv_cmp_gt_u32 vcc, 8, v0\ns_and_saveexec_b64 s[68:69], vcc\ns_cbranch_execz k_nopf\nglobal_load_dword v26, v26, s[70:71]\nk_nopf:\ns_mov_b64 exec, -1")
    A("v_lshrrev_b32 v1, 6, v0\nv_and_b32 v0, 63, v0\nv_readfirstlane_b32 s40, v1")
    A("s_and_b32 s3, s2, 7\ns_lshr_b32 s59, s2, 3\ns_and_b32 s100, s59, 7")
    A("s_and_b32 s98, s3, 3\ns_lshl_b32 s98, s98, 3\ns_add_u32 s98, s98, s100")
    A("s_lshr_b32 s99, s3, 2\ns_lshl_b32 s99, s99, 2\ns_lshr_b32 s68, s59, 3\ns_add_u32 s99, s99, s68")
    A("s_add_u32 s100, s100, s99")
    A("v_lshrrev_b32 v20, 3, v0\nv_and_b32 v21, 7, v0\nv_lshrrev_b32 v1, 5, v0\ns_and_b32 s70, s40, 3\ns_lshl_b32 s101, s70, 10")
    A(f"v_lshrrev_b32 v22, 4, v0\nv_xor_b32 v22, v22, v21\nv_lshlrev_b32 v22, 4, v22\nv_lshl_add_u32 v{vX}, v20, 10, v22\ns_lshl_b32 s68, s70, 14\nv_add_u32 v{vX}, s68, v{vX}\nv_xor_b32 v{vX+1}, 64, v{vX}\nv_add_u32 v{vX+1}, 0x2000, v{vX+1}")
    A("v_bfe_u32 v31, v0, 4, 1\nv_lshlrev_b32 v31, 2, v31\nv_xor_b32 v31, v31, v21\nv_lshlrev_b32 v31, 4, v31")
    A("s_lshl_b32 s70, s70, 3\nv_add_u32 v29, s70, v20\nv_mul_u32_u24 v30, 3072, v29\nv_add_u32 v30, v30, v31\ns_lshl_b32 s68, s99, 7\nv_add_u32 v30, s68, v30")
    A("s_and_b32 s89, s99, 1\ns_lshl_b32 s89, s89, 2\ns_xor_b32 s89, s89, s40" if RSW else "s_mov_b32 s89, s40")
    if WTOUCH: A("v_lshlrev_b32 v24, 7, v0\ns_lshl_b32 s59, s2, 3\ns_add_u32 s59, s59, s40\ns_mul_i32 s59, s59, 768")
    A("v_and_b32 v22, 31, v0\ns_lshl_b32 s68, s89, 13\nv_lshlrev_b32 v11, 4, v21\nv_lshl_add_u32 v11, v20, 10, v11\nv_add_u32 v11, s68, v11\ns_lshl_b32 s57, s98, 16")
    A("s_waitcnt lgkmcnt(0)")
    srd(A,16,4,2048*1024); srd(A,20,6,512*3072)
    if WTOUCH: A("s_mov_b64 exec, 0x3f\nbuffer_load_dword v25, v24, s[20:23], s59 offen\ns_mov_b64 exec, -1")
    if TLB:
        A("s_cmp_lt_u32 s40, 6\ns_cbranch_scc1 k_notlb\ns_cmp_eq_u32 s40, 7\ns_cbranch_scc1 k_tlb7")
        A("v_lshlrev_b32 v24, 21, v0\ns_mov_b64 exec, 0xfff\nglobal_load_dword v26, v24, s[14:15] sc1\ns_branch k_tlbd")
        A.label("k_tlb7")
        A("v_lshlrev_b32 v24, 20, v0\ns_mov_b64 exec, 3\nglobal_load_dword v26, v24, s[8:9]\nglobal_load_dword v26, v24, s[10:11]\nglobal_load_dword v26, v24, s[72:73]\nglobal_load_dword v26, v24, s[74:75]\ns_mov_b64 exec, 1\nglobal_load_dword v26, v24, s[12:13]")
        A.label("k_tlbd")
        A("s_mov_b64 exec, -1")
        A.label("k_notlb")
    X=32
    vm=VM()
    for i in range(8):
        A(f"s_add_u32 s88, s100, {i}\ns_and_b32 s88, s88, 7\ns_lshl_b32 s88, s88, 7\ns_add_u32 s88, s88, s57\nbuffer_load_dwordx4 {vr(X+4*i,4)}, v11, s[16:19], s88 offen"); vm.add(("x",i))
    if XBAR==1: A("s_barrier")
    def dmaW(vm,d,his):
        L=[]; b=WB+(d%4)*24576
        for k,hi in enumerate(his):
            for c in range(3):
                vm.add(("W",d))
                if c==0: pre=f"s_add_u32 s88, s100, {d}\ns_and_b32 s88, s88, 7\ns_mul_i32 s59, s88, {64*3072}\n"+("s_add_u32 s59, s59, s91\n" if hi is None else (f"s_add_u32 s59, s59, {32*3072}\n" if hi else ""))
                else: pre="s_add_u32 s59, s59, 1024\n"
                m=f"s80, {b+c*8192}" if hi is None else f"s101, {b+c*8192+hi*4096}"
                L.append(f"s_add_u32 m0, {m}\n"+pre+"buffer_load_dwordx4 v30, s[20:23], s59 offen lds")
        return L
    srd(A,32,14,WS_SIZE)
    A(f"s_add_u32 s70, s14, {WS_T}\ns_addc_u32 s71, s15, 0\ns_load_dword s58, s[70:71], 0")
    A("s_and_b32 s41, s40, 1\ns_bfe_u32 s42, s40, 0x10001")
    A("v_bfe_u32 v23, v0, 1, 3\nv_xor_b32 v23, v23, v1\nv_lshlrev_b32 v23, 4, v23\nv_lshl_add_u32 v23, v22, 7, v23")
    A(f"s_lshl_b32 s68, s41, 12\nv_add_u32 v5, s68, v23")
    for kq in range(1,4): A(f"v_xor_b32 v{5+kq}, {32*kq}, v5")
    A("v_bfe_u32 v28, v0, 2, 2\nv_lshlrev_b32 v28, 7, v28\nv_and_b32 v24, 3, v0\nv_lshl_add_u32 v28, v24, 3, v28")
    A("v_bfe_u32 v24, v0, 3, 1\nv_xor_b32 v24, s42, v24\nv_lshl_add_u32 v28, v24, 6, v28\nv_bfe_u32 v27, v0, 4, 1\nv_lshl_add_u32 v28, v27, 5, v28")
    A(f"v_lshl_add_u32 v9, v1, 10, v28\nv_add_u32 v9, {WB}, v9\nv_add_u32 v10, {2*24576}, v9")
    A("v_lshrrev_b32 v4, 4, v0\ns_lshl_b32 s68, s41, 2\nv_xor_b32 v4, s68, v4\nv_xor_b32 v4, v4, v21\nv_lshlrev_b32 v4, 4, v4\nv_lshl_add_u32 v4, v20, 7, v4\ns_lshl_b32 s68, s89, 10\nv_add_u32 v4, s68, v4")
    A("v_mov_b32 v12, 0\nv_mov_b32 v13, 0\nv_mov_b32 v14, 0\nv_mov_b32 v15, 0")
    A("v_lshlrev_b32 v2, 4, v0\nv_mov_b32 v19, 0x3f803f80")
    srd(A,24,8,512*3584); srd(A,28,10,512*3584); srd(A,36,14,WS_SIZE); srd(A,76,72,1792*1024); srd(A,60,12,512*1024); srd(A,64,74,2048*1024)
    A("s_bfe_u32 s59, s2, 0x20003\ns_lshl_b32 s43, s3, 2\ns_add_u32 s43, s43, s59")
    A("s_lshr_b32 s44, s2, 5")
    A("s_lshl_b32 s45, s44, 3\ns_add_u32 s45, s45, s40")
    A("s_lshr_b32 s46, s3, 1\ns_lshl_b32 s46, s46, 2\ns_add_u32 s46, s46, s59")
    A("s_and_b32 s47, s3, 1\ns_mul_i32 s47, s47, 7\ns_add_u32 s47, s47, s44")
    A(f"s_lshl_b32 s49, s43, 17\ns_add_u32 s49, s49, s101\ns_add_u32 s49, s49, {WS_KV}")
    A(f"s_lshl_b32 s50, s46, 17\ns_add_u32 s50, s50, {WS_XN}")
    A(f"v_mul_u32_u24 v{vG}, 3584, v29\nv_add_u32 v{vG}, v{vG}, v31\ns_lshl_b32 s68, s47, 8\nv_add_u32 v{vG}, s68, v{vG}\nv_xor_b32 v{vU}, 32, v{vG}")
    A(f"s_lshr_b32 s68, s101, 5\nv_add_u32 v29, s68, v20\nv_lshl_add_u32 v{vD}, v29, 10, v31\ns_lshl_b32 s68, s44, 7\nv_add_u32 v{vD}, s68, v{vD}")
    A(f"s_mul_i32 s51, s43, {224*1024}\ns_lshl_b32 s68, s101, 2\ns_add_u32 s51, s51, s68\ns_add_u32 s51, s51, {WS_H}")
    A("s_lshr_b32 s48, s40, 2")
    A(f"v_and_b32 v3, 15, v0\nv_lshlrev_b32 v3, 4, v3\nv_lshl_add_u32 v3, v1, 8, v3\nv_add_u32 v3, {KVB+1024}, v3\nv_add_u32 v{aK}, {KVB}, v2")
    A("s_mov_b32 s52, 0xffff\ns_mov_b32 s53, 0xffff")
    A(f"s_lshl_b32 s68, s41, 13\nv_add_u32 v{aX+4}, s68, v23")
    for kq in range(1,4): A(f"v_xor_b32 v{aX+4+kq}, {32*kq}, v{aX+4}")
    for kq in range(4): A(f"v_add_u32 v{aX+kq}, 0x10000, v{aX+4+kq}")
    A(f"v_lshl_add_u32 v{aW+2}, v27, 13, v28\nv_lshl_add_u32 v{aW+2}, v1, 10, v{aW+2}\ns_lshl_b32 s68, s48, 14\ns_add_u32 s68, s68, 16384\nv_add_u32 v{aW+2}, s68, v{aW+2}")
    A(f"v_xor_b32 v{aW+3}, 32, v{aW+2}\nv_add_u32 v{aW}, 0x10000, v{aW+2}\nv_add_u32 v{aW+1}, 0x10000, v{aW+3}")
    A(f"s_lshl_b32 s68, s41, 14\ns_lshl_b32 s70, s48, 13\ns_add_u32 s68, s68, s70\nv_add_u32 v{aH+1}, s68, v2\nv_add_u32 v{aH}, 0x10000, v{aH+1}")
    A(f"v_lshl_add_u32 v{aD+1}, v1, 9, v28\ns_lshl_b32 s68, s48, 14\ns_add_u32 s68, s68, 32768\nv_add_u32 v{aD+1}, s68, v{aD+1}\nv_add_u32 v{aD}, 0x10000, v{aD+1}")
    A(f"s_lshl_b32 s54, s46, 2\ns_lshl_b32 s68, s41, 1\ns_add_u32 s54, s54, s68\ns_mul_i32 s54, s54, 112\ns_lshl_b32 s68, s47, 3\ns_add_u32 s54, s54, s68\ns_and_b32 s68, s40, 6\ns_add_u32 s54, s54, s68\ns_lshl_b32 s54, s54, 10\ns_add_u32 s54, s54, {WS_H}\ns_add_u32 s55, s54, {112*1024}")
    A("s_lshl_b32 s80, s48, 12\ns_add_u32 s80, s80, s101")
    A(f"s_lshl_b32 s81, s48, 12\ns_add_u32 s81, s81, s49\ns_lshl_b32 s82, s48, 16\ns_add_u32 s82, s82, s50\ns_mul_i32 s83, s48, {32*3584}\ns_lshl_b32 s84, s48, 17\ns_mul_i32 s85, s48, {112*1024}\ns_add_u32 s85, s85, s51")
    A("s_lshr_b32 s86, s46, 1\ns_mul_i32 s68, s43, 37\ns_lshr_b32 s68, s68, 8\ns_mul_i32 s68, s68, 7\ns_sub_u32 s87, s43, s68")
    if not ROT: A("s_mov_b32 s86, 0\ns_mov_b32 s87, 0")
    rotU=lambda n: f"s_add_u32 s88, s86, {n}\ns_and_b32 s88, s88, 7\n"
    rotD=lambda n: f"s_add_u32 s88, s87, {n}\ns_sub_u32 s89, s88, 7\ns_cmp_ge_u32 s88, 7\ns_cselect_b32 s88, s89, s88\n"
    def dmaKV(vm,it,hi=None):
        vm.add(("KV",it))
        if hi is None: return [f"s_add_u32 m0, s80, {KVB+(it%3)*KVS}\ns_add_u32 s59, s81, {it*8192}\nbuffer_load_dwordx4 v2, s[32:35], s59 offen sc1 lds"]
        return [f"s_add_u32 m0, s101, {KVB+(it%3)*KVS+hi*4096}\ns_add_u32 s59, s49, {it*8192+hi*4096}\nbuffer_load_dwordx4 v2, s[32:35], s59 offen sc1 lds"]
    def dmaUX(vm,n,hi=None):
        b=GB[n%2]; vm.add(("U",n),2)
        m,s,o1,o2=("s80","s82",0,0) if hi is None else ("s101","s50",hi*8192,hi*65536)
        return [f"s_lshl_b32 s59, {m}, 1\ns_add_u32 m0, s59, {b+o1}\n"+rotU(n)+f"s_lshl_b32 s59, s88, 7\ns_add_u32 s59, s59, {s}\n"+(f"s_add_u32 s59, s59, {o2}\n" if o2 else "")+f"buffer_load_dwordx4 v{vX}, s[36:39], s59 offen sc1 lds",
                f"s_add_u32 m0, m0, 1024\ns_nop 0\nbuffer_load_dwordx4 v{vX+1}, s[36:39], s59 offen sc1 lds"]
    def dmaUW(vm,n,hi=None):
        b=GB[n%2]; L=[]; vm.add(("U",n),4)
        for c in range(4):
            if c==0: so=rotU(n)+f"s_mul_i32 s59, s88, {64*3584}\n"+("s_add_u32 s59, s59, s83" if hi is None else f"s_add_u32 s59, s59, {hi*32*3584}")
            else: so="s_add_u32 s59, s59, 128" if c==2 else "s_nop 0"
            m=f"s80, {b+16384+c*8192}" if hi is None else f"s101, {b+16384+c*8192+hi*4096}"
            L.append(f"s_add_u32 m0, {m}\n{so}\nbuffer_load_dwordx4 v{vG+c%2}, s[{24+4*(c%2)}:{27+4*(c%2)}], s59 offen lds")
        return L
    def dmaU(vm,n,hi=None): return dmaUX(vm,n,hi)+dmaUW(vm,n,hi)
    def dmaRows(vm,tag,dst,pre,srdn):
        vm.add(tag,4)
        return [(f"s_lshl_b32 s90, s80, 2\n" if i==0 else "")+f"s_add_u32 m0, s90, {dst+i*1024}\n"+(pre if i==0 else "s_add_u32 s59, s59, 8192\n")+f"buffer_load_dwordx4 v{vD}, s[{srdn}:{srdn+3}], s59 offen lds" for i in range(4)]
    def dmaDW(vm,n): return dmaRows(vm,("D",n),GB[n%2]+32768,rotD(n)+"s_lshl_b32 s59, s88, 18\ns_add_u32 s59, s59, s84\n",76)
    def dmaWO(vm): return dmaRows(vm,"wo",GB[1],"s_mov_b32 s59, s84\n",60)+dmaRows(vm,"wo",GB[1]+32768,f"s_add_u32 s59, s84, {256*1024}\n",60)
    def dmaDH(vm,n):
        b=GB[n%2]; vm.add(("D",n),4)
        return [(f"s_lshl_b32 s59, s80, 2\ns_add_u32 m0, s59, {b}\n"+rotD(n)+"s_lshl_b32 s59, s88, 14\ns_add_u32 s59, s59, s85\n" if i==0 else "")+f"buffer_load_dwordx4 v2, s[32:35], s59 offen offset:{1024*i} sc1 lds" for i in range(4)]
    A(f"s_mul_i32 s91, s48, {32*3072}")
    if XBAR==2: A("s_barrier")
    for d in range(NW0):
        for l in dmaW(vm,d,[None]): A(l)
    st.mark(A,0)
    for i in range(8):
        if i%2==0: A(f"s_waitcnt vmcnt({vm.n_after(('x',i+1))})")
        for d in range(4): A(f"v_dot2c_f32_bf16 v{12+d%2}, v{X+4*i+d}, v19\nv_dot2c_f32_bf16 v{14+d%2}, v{X+4*i+d}, v{X+4*i+d}")
    st.mark(A,1)
    later=[]
    for d in range(NW0,NW1): later+=dmaW(vm,d,[None])
    A("s_nop 2\nv_add_f32 v12, v12, v13\nv_add_f32 v13, v14, v15\ns_nop 1")
    for mod in ("quad_perm:[1,0,3,2]","quad_perm:[2,3,0,1]","row_half_mirror"):
        A(f"v_add_f32_dpp v12, v12, v12 {mod} row_mask:0xf bank_mask:0xf\nv_add_f32_dpp v13, v13, v13 {mod} row_mask:0xf bank_mask:0xf\ns_nop 0")
    A(f"v_mul_f32 v12, {f2u(1/512):#x}, v12\nv_mul_f32 v13, {f2u(1/512):#x}, v13")
    A("v_fma_f32 v13, -v12, v12, v13\nv_max_f32 v13, 0, v13")
    A("v_cvt_pk_bf16_f32 v13, v13, v13\nv_and_b32 v13, 0xffff0000, v13")
    A(f"v_add_f32 v13, {f2u(1e-5):#x}, v13")
    A("v_cvt_pk_bf16_f32 v13, v13, v13\nv_and_b32 v13, 0xffff0000, v13\nv_sqrt_f32 v13, v13")
    A("v_cvt_pk_bf16_f32 v12, v12, v12\nv_cvt_pk_bf16_f32 v13, v13, v13\nv_and_b32 v13, 0xffff0000, v13\nv_rcp_f32 v14, v13\nv_and_b32 v12, 0xffff0000, v12")
    A("v_mov_b32 v15, v14\nv_mul_f32 v16, -v12, v14\nv_mov_b32 v17, v16")
    for i in range(8):
        for d in range(0,4,2):
            r=X+4*i+d
            A(f"v_lshlrev_b32 v20, 16, v{r}\nv_and_b32 v21, 0xffff0000, v{r}\nv_lshlrev_b32 v22, 16, v{r+1}\nv_and_b32 v23, 0xffff0000, v{r+1}")
            A(f"v_pk_fma_f32 v[20:21], v[20:21], v[14:15], v[16:17]\nv_pk_fma_f32 v[22:23], v[22:23], v[14:15], v[16:17]\nv_cvt_pk_bf16_f32 v{r}, v20, v21\nv_cvt_pk_bf16_f32 v{r+1}, v22, v23")
        A(f"ds_write_b128 v4, {vr(X+4*i,4)} offset:{8192*i}")
    for l in later: A(l)
    A(f"s_waitcnt vmcnt({vm.n_after(('W',0))}) lgkmcnt(0)\ns_barrier\ns_add_u32 s58, s58, 1")
    st.mark(A,2)
    vmh=copy.deepcopy(vm); vmc=vm
    A("s_cmp_ge_u32 s40, 4\ns_cbranch_scc1 p1_help\ns_setprio 1")
    FS=[64,80,32]; ACC=96
    def reads(F,kp):
        d=kp//4; ks=kp%4; sl=d%4
        r=[f"ds_read_b128 {vr(F,4)}, v{5+ks} offset:{d*8192}"]
        for c in range(3):
            for i in range(2): r.append(f"ds_read_b64_tr_b16 {vr(F+4+4*c+2*i,2)}, v{9+sl//2} offset:{(sl%2)*24576+c*8192+(16*ks+4*i)*128}")
        return r
    A("s_lshl_b32 s68, s101, 1\nv_add_u32 v20, s68, v2\nds_read_b128 v[48:51], v20\nds_read_b128 v[52:55], v20 offset:1024")
    for l in reads(FS[0],0)+reads(FS[1],1): A(l)
    A(f"s_and_b32 s59, s100, 7\ns_lshl_b32 s59, s59, 7\ns_add_u32 s59, s59, s57\ns_add_u32 s59, s59, {WS_XN}")
    pre=[f"buffer_store_dwordx4 v[48:51], v{vX}, s[32:35], s59 offen sc1",
         f"buffer_store_dwordx4 v[52:55], v{vX+1}, s[32:35], s59 offen sc1",
         "s_lshl_b32 s68, s98, 1\ns_add_u32 s68, s68, s41\ns_lshl_b32 s59, s99, 1\ns_add_u32 s59, s59, s42\ns_lshl_b32 s59, s59, 7\ns_add_u32 s59, s59, s68",
         f"s_lshl_b32 s70, s59, 10\ns_add_u32 s71, s70, {64*1024}\ns_lshl_b32 s68, s59, 11\ns_add_u32 s68, s68, {WS_KV}\ns_add_u32 s69, s68, {64*2048}",
         f"v_and_b32 v20, 31, v0\nv_lshlrev_b32 v20, 6, v20\nv_lshl_add_u32 v20, v1, 3, v20\ns_lshl_b32 s72, s40, 11\ns_add_u32 s72, s72, {VSC}\nv_add_u32 v20, s72, v20",
         "v_lshlrev_b32 v22, 10, v1\nv_lshl_add_u32 v22, v27, 8, v22\nv_bfe_u32 v23, v0, 2, 2\nv_lshl_add_u32 v22, v23, 6, v22",
         f"v_and_b32 v23, 3, v0\nv_lshl_add_u32 v22, v23, 3, v22\nv_add_u32 v22, s72, v22\nv_mov_b32 v24, {f2u(0.25*LOG2E):#x}\nv_mov_b32 v25, v24"]
    for kp in range(32):
        F=FS[kp%3]; d=kp//4
        fill=[]
        if kp==4*F1D+2:
            A("s_waitcnt vmcnt(0) lgkmcnt(0)\ns_barrier")
            fill.append("FLAG")
        elif kp%4==2:
            w=f"vmcnt({vmc.n_after(('W',d+1))}) " if ('W',d+1) in vmc.ops else ""
            A(f"s_waitcnt {w}lgkmcnt(0)\ns_barrier")
        else: A(f"s_waitcnt lgkmcnt({7 if kp<31 else 0})")
        if kp%4==2: st.mark(A,32+d)
        fl="FLAG" in fill; fill=[]
        if kp<30: fill+=reads(FS[(kp+2)%3],kp+2)
        if pre:
            fill.append(pre.pop(0))
            if kp<2: vmc.add("xst")
        weave(A,[mfma32(ACC+16*c,F+4+4*c,F,(ACC+16*c) if kp else "0") for c in (2,1,0)],fill)
        if fl: flag_store(A,"p1_f1",0,f"s_lshl_b32 s59, s98, 10\ns_lshl_b32 s74, s99, 7\ns_add_u32 s59, s59, s74\ns_add_u32 s59, s59, {FL1}",56,57)
    st.mark(A,3)
    V=ACC+32; Kk=ACC+16
    A("s_nop 9")
    for d in range(8): A(f"v_cvt_pk_bf16_f32 v{V+d}, v{V+2*d}, v{V+2*d+1}")
    for q in range(4): A(f"ds_write_b64 v20, {vr(V+2*q,2)} offset:{16*q}")
    for d in range(8): A(f"v_cvt_pk_bf16_f32 v{Kk+d}, v{Kk+2*d}, v{Kk+2*d+1}")
    A("s_waitcnt lgkmcnt(0)")
    for hh in range(2):
        for ii in range(2): A(f"ds_read_b64_tr_b16 {vr(V+4*hh+2*ii,2)}, v22 offset:{32*hh+512*ii}")
    A(f"buffer_store_dwordx4 {vr(Kk,4)}, v2, s[32:35], s68 offen sc1\nbuffer_store_dwordx4 {vr(Kk+4,4)}, v2, s[32:35], s69 offen sc1")
    A("s_waitcnt lgkmcnt(0)")
    A(f"buffer_store_dwordx4 {vr(V,4)}, v2, s[32:35], s68 offen offset:1024 sc1\nbuffer_store_dwordx4 {vr(V+4,4)}, v2, s[32:35], s69 offen offset:1024 sc1")
    for r in range(0,16,2): A(f"v_pk_mul_f32 {vr(ACC+r,2)}, {vr(ACC+r,2)}, v[24:25]")
    for d in range(8): A(f"v_cvt_pk_bf16_f32 v{ACC+d}, v{ACC+2*d}, v{ACC+2*d+1}")
    A(f"buffer_store_dwordx4 {vr(ACC,4)}, v2, s[32:35], s70 offen sc1\nbuffer_store_dwordx4 {vr(ACC+4,4)}, v2, s[32:35], s71 offen sc1")
    st.mark(A,49)
    A("s_setprio 0\ns_branch p1_join")
    A.label("p1_help")
    A(f"v_and_b32 v22, 15, v0\nv_lshlrev_b32 v22, 7, v22\ns_lshl_b32 s56, s46, 11\ns_add_u32 s56, s56, {FL1}")
    A("s_cmp_eq_u32 s44, 7\ns_cselect_b32 s26, 0, s26\ns_cselect_b32 s30, 0, s30\ns_cselect_b32 s38, 0, s38")
    nxt=NW1
    if nxt<4:
        for l in dmaW(vmh,nxt,[0,1]): A(l)
        nxt+=1
    for d in range(8):
        st.mark(A,40+d)
        if d<7: A(f"s_waitcnt vmcnt({vmh.n_after(('W',d+1))})")
        st.mark(A,32+d)
        A("s_barrier")
        if nxt<8:
            assert nxt<=d+4
            for l in dmaW(vmh,nxt,[0,1]): A(l)
            nxt+=1
        if d==5:
            for l in dmaUW(vmh,0,0): A(l)
        if d==6:
            for l in dmaUW(vmh,0,1): A(l)
            A("buffer_load_dword v23, v22, s[32:35], s56 offen sc1"); vmh.add("f1")
    poll_check(A,"p1_c1",22,23,"s56",0,False)
    st.mark(A,48)
    for hi in range(2):
        for l in dmaUX(vmh,0,hi): A(l)
    if U1H:
        for hi in range(2):
            for l in dmaU(vmh,1,hi): A(l)
    st.mark(A,49)
    A(f"s_waitcnt vmcnt({12 if U1H else 0})")
    st.mark(A,55)
    A.label("p1_join")
    A("s_cmp_eq_u32 s44, 7\ns_cselect_b32 s26, 0, s26\ns_cselect_b32 s30, 0, s30\ns_cselect_b32 s38, 0, s38")
    for i in range(8): A(f"v_mov_b32 v{VA+i}, 0")
    A("s_mov_b32 exec_lo, 0x110000\ns_mov_b32 exec_hi, 0x110000")
    for i in range(8): A(f"v_mov_b32 v{VA+i}, 0x3f803f80")
    A("s_mov_b64 exec, -1")
    A(f"v_lshlrev_b32 v30, 7, v0\ns_lshr_b32 s56, s43, 1\ns_lshl_b32 s56, s56, 13\ns_add_u32 s56, s56, {FL2}"+ONLY7)
    st.mark(A,4)
    vm=VM(); vm.add(("U",1)); vm.add(("U",0))
    if F2G<0: vm=VM(); vm.add(("U",0)); vm.add(("U",1))
    def f2flag():
        if F2G<0: A("s_cmp_ge_u32 s40, 4\ns_cbranch_scc1 j_nw\ns_waitcnt vmcnt(0)\nj_nw:")
        else: A(f"s_waitcnt vmcnt({vm.n_after(('U',0))})")
        flag_store(A,"p1_f2",None,f"s_lshl_b32 s59, s99, 1\ns_add_u32 s59, s59, s42\ns_lshl_b32 s59, s59, 6\ns_lshl_b32 s68, s98, 1\ns_add_u32 s59, s59, s68\ns_add_u32 s59, s59, s41\ns_lshl_b32 s59, s59, 7\ns_add_u32 s59, s59, {FL2}",28,29,"s_cmp_lt_u32 s40, 4"); vm.add("fs")
        st.mark(A,57)
    if NPRE==1 or F2G<0: f2flag()
    kv=lambda t: ((t//4)%3)*KVS+(t%4)*2048
    def up_reads(g):
        n,ks=g//4,g%4; F=FR[g%2]; b=n%2
        L=[f"ds_read_b128 {vr(F+8+4*t,4)}, v{aX+4*b+ks} offset:{t*4096}" for t in range(2)]
        for jj in range(2):
            for i in range(2): L.append(f"ds_read_b64_tr_b16 {vr(F+4*jj+2*i,2)}, v{aW+2*b+jj} offset:{(16*ks+4*i)*128}")
        return L
    def up_mf(g):
        F=FR[g%2]
        return [mfma32(GACC+16*(2*t+jj),F+4*jj,F+8+4*t,(GACC+16*(2*t+jj)) if g else "0") for t in range(2) for jj in range(2)]
    def dn_reads(g):
        n,u=g//4,g%4; F=FR[g%2]; b=n%2; L=[]
        for k in range(2):
            ks=2*u+k
            L.append(f"ds_read_b128 {vr(F+8+4*k,4)}, v{aH+b} offset:{ks*1024}")
            for i in range(2): L.append(f"ds_read_b64_tr_b16 {vr(F+4*k+2*i,2)}, v{aD+b} offset:{ks*2048+i*1024}")
        return L
    def dn_mf(g):
        F=FR[g%2]
        return [mfma32(DACC,F+4*k,F+8+4*k,DACC if (g or k) else "0") for k in range(2)]
    def up_epi(ti):
        acc=GACC+16*ti; t,jj=ti//2,ti%2
        L=[f"v_max_f32 v{acc+r}, 0, v{acc+r}" for r in range(8)]+[f"v_mul_f32 v{acc+r}, v{acc+r}, v{acc+8+r}" for r in range(8)]
        L+=[f"v_cvt_pk_bf16_f32 v{acc+d}, v{acc+2*d}, v{acc+2*d+1}" for d in range(4)]
        L.append(f"buffer_store_dwordx4 {vr(acc,4)}, v2, s[36:39], s{54+t} offen offset:{1024*jj} sc1")
        return L
    for n in range(NPRE):
        if n==NPRE-1:
            if n==0: A("buffer_load_dword v31, v30, s[32:35], s56 offen sc1"); vm.add("f2")
            st.mark(A,56)
            poll_check(A,"m_c2",30,31,"s56",vm.n_after("f2"))
        A((f"s_waitcnt vmcnt({vm.n_after(('U',n))}) lgkmcnt(0)" if n else "s_waitcnt lgkmcnt(0)")+"\ns_barrier")
        if n==2: st.mark(A,7)
        st.mark(A,50+n)
        if n==NPRE-1:
            A(f"s_lshl_b32 s59, s43, 6\ns_add_u32 s59, s59, s45\ns_lshl_b32 s59, s59, 10\nbuffer_load_dwordx4 {vr(Q,4)}, v2, s[32:35], s59 offen sc1"); vm.add("q")
            for l in dmaKV(vm,0)+dmaKV(vm,1): A(l)
        dml=dmaU(vm,n+1) if (n or not U1H) else []
        for u in range(4):
            g=4*n+u
            if u>0: A("s_waitcnt lgkmcnt(0)")
            fill=up_reads(g)+dml[:3]; dml=dml[3:]
            if n==NPRE-2 and u==3: fill.append("buffer_load_dword v31, v30, s[32:35], s56 offen sc1"); vm.add("f2")
            if g>0: weave(A,up_mf(g-1),fill)
            else:
                for l in fill: A(l)
            if g==F2G and NPRE>1: f2flag()
    st.mark(A,5)
    A(f"s_waitcnt vmcnt({vm.n_after(('KV',0))})\ns_barrier")
    st.mark(A,6)
    A(f"ds_read_b128 {vr(K,4)}, v{aK}")
    A(f"s_mov_b64 exec, s[52:53]\nds_read_b128 {vr(VA,4)}, v3\ns_mov_b64 exec, -1")
    A("s_waitcnt lgkmcnt(1)")
    A(mfma32(SA,K,Q,"0"))
    for r in range(16): A(f"v_mov_b32 v{O+r}, 0")
    def max16(dst,S,first):
        if first:
            A(f"v_max3_f32 v{dst}, v{S}, v{S+1}, v{S+2}\nv_max_f32 v{dst}, v{dst}, v{S+3}")
            s0=4
        else: s0=0
        for r in range(s0,16,2): A(f"v_max3_f32 v{dst}, v{dst}, v{S+r}, v{S+r+1}")
    max16(28,SA,True)
    A(f"v_add_f32 v28, {f2u(MOFF):#x}, v28")
    A(f"v_mov_b32 v29, v28\nv_mov_b32 v{P+4}, 0\nv_mov_b32 v{P+5}, 0\nv_permlane32_swap_b32 v28, v29\nv_max_f32 v28, v28, v29")
    for r in range(16): A(f"v_sub_f32 v{C+r}, 0, v28")
    A(f"v_mov_b32 v{P+6}, 0\nv_mov_b32 v{P+7}, 0")
    A(mfma32(SA,K,Q,C))
    A(f"ds_read_b128 {vr(K,4)}, v{aK} offset:2048\ns_nop 5")
    if PRIO: A("s_setprio 1")
    UP0=-NPRE; D0=UP0+8+DGAP
    for it in range(16):
        needs=[]
        if it+1<16: needs.append(vm.n_after(("KV",it+1)))
        n=it-UP0; dn=it-D0
        if 0<=n<8: needs.append(vm.n_after(("U",n)))
        if 0<=dn<7: needs.append(vm.n_after(("D",dn)))
        if n==9: needs.append(vm.n_after("hst"))
        if dn==-1: poll_check(A,"m_c3",30,31,"s56",vm.n_after("f3"))
        A((f"s_waitcnt vmcnt({min(needs)}) lgkmcnt(0)" if needs else "s_waitcnt lgkmcnt(0)")+"\ns_barrier")
        st.mark(A,8+it)
        if PRIO: A(f"s_cmp_lt_u32 s40, 4\ns_cbranch_scc1 m_pa{it}\ns_setprio 2\nm_pa{it}:")
        if n==9:
            A(f"v_min_u32 v30, 13, v0\nv_lshlrev_b32 v30, 7, v30\ns_lshr_b32 s56, s43, 1\ns_lshl_b32 s56, s56, 11\ns_add_u32 s56, s56, {FL3}"+ONLY7)
        dml=[]
        if dn+1==0: dml+=dmaDH(vm,0)
        if 0<dn+1<7: dml+=dmaDH(vm,dn+1)+dmaDW(vm,dn+1)
        if 2<=n+1<8: dml+=dmaU(vm,n+1)
        if it+2<16: dml+=dmaKV(vm,it+2)
        if n==7: dml+=dmaDW(vm,0)
        if dn==6: dml+=dmaWO(vm)
        if n==7 and WOT: dml.append("s_lshl_b32 s59, s2, 3\ns_add_u32 s59, s59, s40\ns_lshl_b32 s59, s59, 8\nv_lshlrev_b32 v28, 7, v0\ns_mov_b64 exec, 3\nbuffer_load_dword v195, v28, s[60:63], s59 offen\ns_mov_b64 exec, -1"); vm.add("t")
        if n==9:
            for l in dml: A(l)
            dml=[]
            flag_store(A,"m_f3",0,f"s_lshl_b32 s59, s46, 11\ns_lshl_b32 s68, s47, 7\ns_add_u32 s59, s59, s68\ns_add_u32 s59, s59, {FL3}",28,29,"s_cmp_lg_u32 s44, 7"); vm.add("fs")
        for u in range(4):
            t=4*it+u
            if PRIO and u==PRIO: A(f"s_cmp_lt_u32 s40, 4\ns_cbranch_scc1 m_pb{it}\ns_setprio 0\nm_pb{it}:")
            if PROG and u!=1: A(f"s_setprio {[3,3,2,1][u]}")
            Sc,Sn=(SA,SB) if u%2==0 else (SB,SA)
            val=[f"v_exp_f32 v{Sc+r}, v{Sc+r}" for r in range(8)]+[f"v_cvt_pk_bf16_f32 v{P+d}, v{Sc+2*d}, v{Sc+2*d+1}" for d in range(4)]+[f"v_exp_f32 v{Sc+r}, v{Sc+r}" for r in range(8,16)]+[f"v_cvt_pk_bf16_f32 v{P+d}, v{Sc+2*d}, v{Sc+2*d+1}" for d in range(4,8)]
            g=4*n+u; gd=4*dn+u
            ex=[]; rds=[]
            if 0<=g-1<32: ex+=up_mf(g-1)
            if 0<=g<32: rds+=up_reads(g)
            if 0<=gd-1<28: ex+=dn_mf(gd-1)
            if 0<=gd<28: rds+=dn_reads(gd)
            extra=[]
            if n==8 and u in (1,2):
                for ti in ([0,1],[2,3])[u-1]: extra+=up_epi(ti); vm.add("hst")
            if dn==-2 and u==2: extra.append("buffer_load_dword v31, v30, s[32:35], s56 offen sc1"); vm.add("f3")
            k=(len(dml)+1)//2 if u==0 and n!=8 else len(dml)
            mine=dml[:k]; dml=dml[k:]
            EXm="s_mov_b64 exec, s[52:53]"; EN="s_mov_b64 exec, -1"
            qk=[mfma32(Sn,K,Q,C)]+([f"ds_read_b128 {vr(K,4)}, v{aK} offset:{kv(t+2)}"] if t+2<64 else [])
            if t==63: qk=[]
            pv1=[mfma32(O,VB,P+4,O),EXm,f"ds_read_b128 {vr(VB,4)}, v3 offset:{kv(t)+512}",EN]
            pv0=[mfma32(O,VA,P,O)]+([EXm,f"ds_read_b128 {vr(VA,4)}, v3 offset:{kv(t+1)}",EN] if t+1<64 else [])
            nx=len(ex); e=[[m] for m in ex]
            seq={0:[qk,pv1,pv0],2:[qk]+e[0:1]+[pv1,pv0]+e[1:2],4:[qk]+e[0:1]+[pv1]+e[1:3]+[pv0]+e[3:4]}[nx]
            ng=len(seq)
            for i,x in enumerate(rds): seq[min(ng-2,(i*(ng-1))//max(1,len(rds)))].append(x)
            for i,x in enumerate(mine): seq[(i*ng)//len(mine)].append(x)
            if u>0: A("s_waitcnt lgkmcnt(0)")
            val=val+extra
            cost=[8 if "exp" in x else 4 for x in val]; tot=sum(cost); acc=0; gi=0
            for i,x in enumerate(val):
                if PROG and u==3 and i==12: A("s_setprio 0")
                while gi<ng and ((acc>=tot*gi/ng and not (seq[gi] is pv0 and i<14)) or (seq[gi] is pv1 and i>=19)):
                    for y in seq[gi]: A(y)
                    gi+=1
                A(x); acc+=cost[i]
            while gi<ng:
                for y in seq[gi]: A(y)
                gi+=1
    A("s_waitcnt lgkmcnt(0)\ns_nop 0")
    A(mfma32(O,VB,P+4,O))
    if D0+7>=16:
        for m in dn_mf(4*(16-D0)-1): A(m)
    st.mark(A,24)
    A("s_lshl_b32 s57, s43, 1\ns_add_u32 s57, s57, s48\ns_lshl_b32 s57, s57, 15\ns_lshl_b32 s68, s44, 7\ns_add_u32 s57, s57, s68\ns_lshr_b32 s68, s101, 5\ns_add_u32 s57, s57, s68")
    A(f"v_and_b32 v{XR+4}, 31, v0\nv_lshlrev_b32 v{XR+4}, 10, v{XR+4}\nv_lshl_add_u32 v{XR+4}, v1, 3, v{XR+4}")
    A(f"s_lshl_b32 s59, s45, 5\ns_add_u32 s59, s59, s43\ns_lshl_b32 s59, s59, 10\ns_add_u32 s70, s59, {WS_O}")
    A(f"v_max3_f32 v28, |v{O}|, |v{O+1}|, |v{O+2}|\nv_max3_f32 v28, v28, |v{O+3}|, |v{O+4}|\nv_max3_f32 v28, v28, |v{O+5}|, |v{O+6}|")
    A(f"v_max3_f32 v28, v28, |v{O+7}|, v{O+8}")
    A(f"v_add_f32 v29, v{O}, v{O+1}")
    for r in range(2,9): A(f"v_add_f32 v29, v29, v{O+r}")
    A("v_fma_f32 v28, 0, v29, v28")
    A(f"v_cmp_ngt_f32 vcc, {f2u(2.0**120):#x}, v28")
    A("s_nop 4\ns_cbranch_vccnz m_fallback")
    A.label("m_fin")
    A(f"v_rcp_f32 v28, v{O+8}\ns_nop 0")
    for r in range(8): A(f"v_mul_f32 v{O+r}, v28, v{O+r}")
    for d in range(4): A(f"v_cvt_pk_bf16_f32 v{P+d}, v{O+2*d}, v{O+2*d+1}")
    A(f"buffer_store_dwordx4 {vr(P,4)}, v2, s[32:35], s70 offen sc1"); vm.add("ost"); vm.add("x",2)
    A(f"buffer_load_dwordx2 {vr(XR,2)}, v{XR+4}, s[16:19], s57 offen\nbuffer_load_dwordx2 {vr(XR+2,2)}, v{XR+4}, s[16:19], s57 offen offset:16")
    A(f"s_lshl_b32 s68, s41, 14\ns_lshl_b32 s69, s48, 13\ns_add_u32 s68, s68, s69\ns_lshl_b32 s69, s42, 12\ns_add_u32 s68, s68, s69\nv_add_u32 v28, s68, v{aK}")
    A(f"s_lshl_b32 s68, s48, 14\ns_lshl_b32 s69, s101, 1\ns_add_u32 s68, s68, s69\nv_add_u32 v29, s68, v{aK}")
    A(f"v_and_b32 v30, 7, v0\nv_lshlrev_b32 v30, 7, v30\ns_lshl_b32 s56, s43, 1\ns_add_u32 s56, s56, s48\ns_lshl_b32 s56, s56, 12\ns_add_u32 s56, s56, s101\ns_add_u32 s56, s56, {FL4}")
    f4=lambda: (A(f"s_waitcnt vmcnt({vm.n_after('ost')})"), flag_store(A,"m_f4",None,f"s_lshl_b32 s59, s45, 12\ns_lshl_b32 s68, s43, 7\ns_add_u32 s59, s59, s68\ns_add_u32 s59, s59, {FL4}",32,33), vm.add("fs"))
    done=False
    for dn in range(max(0,16-D0),7):
        A(f"s_waitcnt vmcnt({vm.n_after(('D',dn))})\ns_barrier")
        for l in dn_reads(4*dn): A(l)
        dml=(dmaDH(vm,dn+1)+dmaDW(vm,dn+1)) if dn<6 else dmaWO(vm)
        for u in range(4):
            A("s_waitcnt lgkmcnt(0)")
            weave(A,dn_mf(4*dn+u),(dn_reads(4*dn+u+1) if u<3 else [])+dml[2*u:2*u+2])
        if not done: f4(); done=True
    if not done: f4()
    A(f"s_waitcnt vmcnt({vm.n_after('wo')})\ns_nop 8\ns_barrier")
    st.mark(A,25)
    for q in range(4): A(f"ds_write_b128 v28, {vr(DACC+4*q,4)} offset:{q*1024}")
    A(f"s_lshl_b32 s68, s48, 14\ns_add_u32 s68, s68, 32768\ns_lshl_b32 s69, s101, 4\ns_sub_u32 s68, s69, s68\nv_add_u32 v34, s68, v{aD+1}\ns_lshl_b32 s68, s42, 6\nv_xor_b32 v34, s68, v34\nv_xor_b32 v35, 64, v34")
    A(f"s_lshl_b32 s70, s43, 1\ns_add_u32 s70, s70, s48\ns_lshl_b32 s70, s70, 15\ns_lshl_b32 s68, s101, 3\ns_add_u32 s70, s70, s68\ns_add_u32 s70, s70, {WS_O}\ns_add_u32 s71, s70, 4096")
    A("s_waitcnt lgkmcnt(0)\ns_barrier")
    A("buffer_load_dword v31, v30, s[32:35], s56 offen sc1")
    for kh in range(2):
        for q in range(2): A(f"ds_read_b128 {vr(40+8*kh+4*q,4)}, v29 offset:{kh*8192+q*1024}")
    AF=128
    A("s_waitcnt lgkmcnt(0)")
    rd=[f"ds_read_b64_tr_b16 {vr(AF+8*n+4*cb+2*i,2)}, v{34+cb} offset:{n*2048+i*1024}" for n in range(8) for cb in range(2) for i in range(2)]
    G=56
    val=[f"v_add_f32 v{G+r}, v{40+r}, v{48+r}" for r in range(8)]+[f"v_mul_f32 v{40+r}, {f2u(-LOG2E):#x}, v{G+r}" for r in range(8)]+[f"v_exp_f32 v{40+r}, v{40+r}" for r in range(8)]+[f"v_add_f32 v{40+r}, 1.0, v{40+r}" for r in range(8)]+[f"v_rcp_f32 v{40+r}, v{40+r}" for r in range(8)]+[f"v_mul_f32 v{G+r}, v{G+r}, v{40+r}" for r in range(8)]
    for i,x in enumerate(val):
        A(x)
        if i<32: A(rd[i])
    poll_check(A,"m_c4",30,31,"s56",0,False)
    st.mark(A,26)
    OF=64; ACS=96
    for i in range(8): A(f"buffer_load_dwordx4 {vr(OF+4*i,4)}, v2, s[32:35], {'s70' if i<4 else 's71'} offen offset:{1024*(i%4)} sc1")
    for d in range(4): A(f"v_lshlrev_b32 v{40+2*d}, 16, v{XR+d}\nv_and_b32 v{41+2*d}, 0xffff0000, v{XR+d}")
    A(f"s_lshl_b32 s68, s40, 13\ns_add_u32 s68, s68, {GB[0]}\nv_add_u32 v36, s68, v2")
    A(f"s_lshl_b32 s68, s48, 15\ns_lshl_b32 s69, s101, 1\ns_add_u32 s68, s68, s69\ns_add_u32 s68, s68, {GB[0]}\nv_add_u32 v37, s68, v2")
    A("s_waitcnt lgkmcnt(0)")
    for n in range(8):
        A(f"s_waitcnt vmcnt({7-n})")
        for cb in range(2): A(mfma32(ACS+16*cb,AF+8*n+4*cb,OF+4*n,(ACS+16*cb) if n else "0"))
    st.mark(A,27)
    A("s_nop 10")
    for q in range(8): A(f"ds_write_b128 v36, {vr(ACS+4*q,4)} offset:{q*1024}")
    A("s_waitcnt lgkmcnt(0)\ns_barrier")
    T=64
    for kq in range(4):
        for q in range(2): A(f"ds_read_b128 {vr(T+8*kq+4*q,4)}, v37 offset:{kq*8192+q*1024}")
    A("s_waitcnt lgkmcnt(4)")
    for r in range(8): A(f"v_add_f32 v{T+r}, v{T+r}, v{T+8+r}")
    A("s_waitcnt lgkmcnt(0)")
    for r in range(8): A(f"v_add_f32 v{T+16+r}, v{T+16+r}, v{T+24+r}")
    for r in range(8): A(f"v_add_f32 v{T+r}, v{T+r}, v{T+16+r}")
    for r in range(8): A(f"v_fma_f32 v{40+r}, v{T+r}, v{G+r}, v{40+r}")
    for d in range(4): A(f"v_cvt_pk_bf16_f32 v{48+d}, v{40+2*d}, v{41+2*d}")
    A(f"buffer_store_dwordx2 v[48:49], v{XR+4}, s[64:67], s57 offen\nbuffer_store_dwordx2 v[50:51], v{XR+4}, s[64:67], s57 offen offset:16")
    flag_store(A,"m_bump",0,f"s_mov_b32 s59, {WS_T}",32,33,"s_cmp_eq_u32 s2, 0")
    if STAMP:
        st.mark(A,28)
        A("s_waitcnt vmcnt(0)")
        st.mark(A,29)
        A("v_subrev_u32 v250, s94, v250\ns_memrealtime s[96:97]\ns_waitcnt lgkmcnt(0)\nv_writelane_b32 v250, s92, 30\nv_writelane_b32 v250, s96, 31")
        A(f"s_lshl_b32 s96, s2, 3\ns_add_u32 s96, s96, s40\ns_lshl_b32 s96, s96, 8\ns_add_u32 s96, s96, {WS_ST}\nv_lshlrev_b32 v251, 2, v0\nbuffer_store_dword v250, v251, s[32:35], s96 offen")
    if E("DBG",0):
        A("s_cmp_eq_u32 s40, 0\ns_cbranch_scc0 k_end\ns_load_dwordx2 s[4:5], s[0:1], 64\ns_memrealtime s[96:97]\ns_memtime s[6:7]\ns_waitcnt vmcnt(0) lgkmcnt(0)")
        srd(A,8,4,256)
        A("s_not_b32 s92, s92\ns_sub_u32 s6, s6, s94\nv_mov_b32 v1, 0\nv_mov_b32 v2, s92\nv_mov_b32 v3, s96\nv_mov_b32 v4, s6\ns_mov_b64 exec, 1")
        A("buffer_atomic_umax v2, v1, s[8:11], 0 offen\nbuffer_atomic_umax v3, v1, s[8:11], 0 offen offset:4\nbuffer_atomic_umax v4, v1, s[8:11], 0 offen offset:8")
        if STAMP:
            for k,l in enumerate([0,1,2,3,49,50,6,8,16,24,25,26,29]):
                A(f"v_readlane_b32 s6, v250, {l}\ns_nop 3\nv_mov_b32 v4, s6\nbuffer_atomic_umax v4, v1, s[8:11], 0 offen offset:{12+4*k}")
    A.label("k_end")
    A("s_endpgm")
    for name,va,vd,so in spins:
        A.label(name+"_spin")
        A(f"s_mov_b32 s59, {SPIN}")
        A.label(name+"_l")
        A(f"s_sleep {SLEEP}\nbuffer_load_dword v{vd}, v{va}, s[32:35], {so} offen sc1\ns_waitcnt vmcnt(0)\nv_cmp_ne_u32 vcc, s58, v{vd}\ns_sub_u32 s59, s59, 1\ns_nop 3")
        A(f"s_cbranch_vccz {name}_ret\ns_cmp_lg_u32 s59, 0\ns_cbranch_scc1 {name}_l\ns_branch {name}_ret")
    A.label("m_fallback")
    A(f"s_sub_u32 s68, s49, s101\ns_mov_b32 s69, 0\nv_mov_b32 v28, 0xff800000\nv_subrev_u32 v30, {KVB}, v3")
    A.label("m_fb1")
    A(f"buffer_load_dwordx4 {vr(K,4)}, v2, s[32:35], s68 offen sc1\ns_add_u32 s68, s68, 2048\ns_waitcnt vmcnt(0)")
    A(mfma32(SA,K,Q,"0"))
    A("s_nop 15")
    max16(28,SA,False)
    A("s_add_u32 s69, s69, 1\ns_cmp_lt_u32 s69, 64\ns_cbranch_scc1 m_fb1")
    A("v_mov_b32 v29, v28\ns_nop 1\nv_permlane32_swap_b32 v28, v29\nv_max_f32 v28, v28, v29")
    for r in range(16): A(f"v_sub_f32 v{C+r}, 0, v28\nv_mov_b32 v{O+r}, 0")
    A(f"s_sub_u32 s68, s49, s101\ns_mov_b32 s69, 0")
    A.label("m_fb2")
    A(f"buffer_load_dwordx4 {vr(K,4)}, v2, s[32:35], s68 offen sc1\ns_mov_b64 exec, s[52:53]\nbuffer_load_dwordx4 {vr(VA,4)}, v30, s[32:35], s68 offen sc1\nbuffer_load_dwordx4 {vr(VB,4)}, v30, s[32:35], s68 offen offset:512 sc1\ns_mov_b64 exec, -1")
    A("s_add_u32 s68, s68, 2048\ns_waitcnt vmcnt(0)")
    A(mfma32(SA,K,Q,C))
    A("s_nop 15")
    for r in range(16): A(f"v_exp_f32 v{SA+r}, v{SA+r}")
    for d in range(8): A(f"v_cvt_pk_bf16_f32 v{P+d}, v{SA+2*d}, v{SA+2*d+1}")
    A("s_nop 1")
    A(mfma32(O,VA,P,O)); A(mfma32(O,VB,P+4,O))
    A("s_add_u32 s69, s69, 1\ns_cmp_lt_u32 s69, 64\ns_cbranch_scc1 m_fb2")
    A("s_nop 15\nk_last:\ns_branch m_fin")

def main(out):
    hdr=open("cdna_kernels/"+NAME+".s.ref").read().split("\n")
    head=[l for l in hdr if l.startswith(";") and "@launch" not in l]
    T="\n".join(head)+"\n"
    if E("LIST",0)==2: T+=f"; @launch kernel={KN} grid=(256,1,1) block=(512,1,1) lds={LDS}\n"
    if E("LIST",0): T+=f"; @launch kernel={KN} grid=(256,1,1) block=(512,1,1) lds={LDS}\n"
    else: T+=f"; @launch grid=(256,1,1) block=(512,1,1) lds={LDS}\n"
    T+='.amdgcn_target "amdgcn-amd-amdhsa--gfx950"\n.text\n'
    A=Asm(); kern(A)
    for e in hazard_check(A.text()): print(e)
    T+=f".globl {KN}\n.p2align 8\n.type {KN},@function\n"+A.text()
    T+='.section .rodata,"a"\n'+kdesc(KN,256,102)
    open(out,"w").write(T)
if __name__=="__main__":
    main(sys.argv[1] if len(sys.argv)>1 else "cdna_kernels/"+NAME+".s")
```

```python
import sys, struct, os, copy
from asmlib import *
NAME="recurrent_scan__mha_block__glu_gated_reglu__prompt"
KN=NAME+"_kernel"
WS_Q=0; WS_KV=2<<20; WS_H=6<<20; WS_O=13<<20; WS_XN=22<<20; WS_FL=21<<20; WS_T=WS_FL+98304; WS_SIZE=32<<20; WS_ST=24<<20
FL1=WS_FL; FL2=WS_FL+32768; FL3=WS_FL+65536; FL4=WS_FL+524288; FL2=WS_FL+786432
def f2u(f): return struct.unpack("<I",struct.pack("<f",f))[0]
LOG2E=1.4426950408889634
E=lambda k,d: int(os.environ.get(k,str(d)))
STAMP=E("STAMP",0); TOUCH=E("TOUCH",0); G0=E("G0",0); PRIO=E("PRIO",0); NPRE=E("NPRE",3); DGAP=E("DGAP",4)
SPIN=400000
SLEEP=E('SLEEP',2)
CODEPF=E("CODEPF",1); WTOUCH=E("WTOUCH",0); NW0=E("NW0",1); NW1=E("NW1",2); F1D=E("F1D",4); F1P=E("F1P",22); F1C=E("F1C",25); PBURST=E("PBURST",1); U1H=E("U1H",1); UWD=E("UWD",6); TLB=E("TLB",0); RSW=E("RSW",1); XBAR=E("XBAR",0); F2G=E("F2G",-1); HPRIO=E("HPRIO",0); PROG=E("PROG",1); ROT=E("ROT",1); WOT=E("WOT",1); UT=E("UT",0); UTK=E("UTK",27)
MOFF=90.0
class VM:
    def __init__(s): s.ops=[]
    def add(s,tag,n=1): s.ops+= [tag]*n
    def n_after(s,tag):
        idx=max(i for i,t in enumerate(s.ops) if t==tag)
        return len(s.ops)-1-idx
def weave(A,mf,fill):
    n=len(mf); k=len(fill); j=0
    for i,m in enumerate(mf):
        A(m)
        e=(k*(i+1))//n
        while j<e: A(fill[j]); j+=1
class St:
    def __init__(s): s.pend=None
    def mark(s,A,i):
        if STAMP:
            A(f"s_memtime s[96:97]\ns_waitcnt lgkmcnt(0)\nv_writelane_b32 v250, s96, {i}")
st=St()
WB=65536; GB=[65536,0]; KVB=131072; KVS=8192; VSC=114688; LDS=163840
Q,K,VA,VB,P,C,SA,SB,O=4,8,12,16,20,32,48,64,80
FR=[96,112]; GACC=128; DACC=208
vG,vU,vD=192,193,194; aW,aH,aD=198,202,204; aK=206; XR=224; aX=232; vX=196
WS_XS=WS_FL+131072; WS_CS=WS_FL+262144
CSC=VSC+8192; SSC=VSC+12288
SLOT=[0,32768,131072,65536,98304]
spins=[]
ONLY7="\ns_cmp_eq_u32 s40, 7\ns_cselect_b32 s56, s56, 0x7ff00000"
def poll_check(A,name,vaddr,vdst,soff,wait,only7=True):
    if only7: A(f"s_cmp_eq_u32 s40, 7\ns_cbranch_scc0 {name}_ret")
    A(f"s_waitcnt vmcnt({wait})\nv_cmp_ne_u32 vcc, s58, v{vdst}\ns_nop 4\ns_cbranch_vccnz {name}_spin\n{name}_ret:")
    spins.append((name,vaddr,vdst,soff))
def flag_store(A,name,wave,soff_code,va,vb,cond=None):
    A(soff_code)
    if wave is not None: A(f"s_cmp_eq_u32 s40, {wave}\ns_cselect_b32 s59, s59, 0x7ffffff0")
    if cond: A(f"{cond}\ns_cselect_b32 s59, s59, 0x7ffffff0")
    A(f"v_mov_b32 v{va}, s58\nv_mov_b32 v{vb}, 0\ns_mov_b64 exec, 1\nbuffer_store_dword v{va}, v{vb}, s[32:35], s59 offen sc1\ns_mov_b64 exec, -1")

def kern(A):
    vm=VM()
    A.label(KN)
    A("s_cmp_ge_u32 s2, 256\ns_cbranch_scc1 k_end")
    if STAMP or E("DBG",0) or E("PAD",0): A("s_memrealtime s[92:93]\ns_memtime s[94:95]")
    A("s_load_dwordx4 s[4:7], s[0:1], 0\ns_load_dwordx2 s[14:15], s[0:1], 72\ns_load_dwordx4 s[8:11], s[0:1], 32")
    A("s_load_dwordx4 s[72:75], s[0:1], 48\ns_load_dwordx2 s[12:13], s[0:1], 16")
    if CODEPF:
        A("s_getpc_b64 s[70:71]\nk_pc:\ns_and_b32 s68, s2, 0xf8\nv_add_u32 v26, s68, v0\nv_lshlrev_b32 v26, 7, v26\nv_min_u32 v26, k_last-k_pc, v26\nv_cmp_gt_u32 vcc, 8, v0\ns_and_saveexec_b64 s[68:69], vcc\ns_cbranch_execz k_nopf\nglobal_load_dword v26, v26, s[70:71]\nk_nopf:\ns_mov_b64 exec, -1")
    A("v_lshrrev_b32 v1, 6, v0\nv_and_b32 v0, 63, v0\nv_readfirstlane_b32 s40, v1")
    A("s_and_b32 s3, s2, 7\ns_lshr_b32 s59, s2, 3\ns_and_b32 s100, s59, 7")
    A("s_and_b32 s98, s3, 3\ns_lshl_b32 s98, s98, 3\ns_add_u32 s98, s98, s100")
    A("s_lshr_b32 s99, s3, 2\ns_lshl_b32 s99, s99, 2\ns_lshr_b32 s68, s59, 3\ns_add_u32 s99, s99, s68")
    A("s_add_u32 s100, s100, s99")
    A("v_lshrrev_b32 v20, 3, v0\nv_and_b32 v21, 7, v0\nv_lshrrev_b32 v1, 5, v0\ns_and_b32 s70, s40, 3\ns_lshl_b32 s101, s70, 10")
    A(f"v_lshrrev_b32 v22, 4, v0\nv_xor_b32 v22, v22, v21\nv_lshlrev_b32 v22, 4, v22\nv_lshl_add_u32 v{vX}, v20, 10, v22\ns_lshl_b32 s68, s70, 14\nv_add_u32 v{vX}, s68, v{vX}\nv_xor_b32 v{vX+1}, 64, v{vX}\nv_add_u32 v{vX+1}, 0x2000, v{vX+1}")
    A("v_bfe_u32 v31, v0, 4, 1\nv_lshlrev_b32 v31, 2, v31\nv_xor_b32 v31, v31, v21\nv_lshlrev_b32 v31, 4, v31")
    A("s_lshl_b32 s70, s70, 3\nv_add_u32 v29, s70, v20\nv_mul_u32_u24 v30, 3072, v29\nv_add_u32 v30, v30, v31\ns_lshl_b32 s68, s99, 7\nv_add_u32 v30, s68, v30")
    A("s_and_b32 s89, s99, 1\ns_lshl_b32 s89, s89, 2\ns_xor_b32 s89, s89, s40" if RSW else "s_mov_b32 s89, s40")
    if WTOUCH: A("v_lshlrev_b32 v24, 7, v0\ns_lshl_b32 s59, s2, 3\ns_add_u32 s59, s59, s40\ns_mul_i32 s59, s59, 768")
    A("v_and_b32 v22, 31, v0\ns_lshl_b32 s68, s89, 13\nv_lshlrev_b32 v11, 4, v21\nv_lshl_add_u32 v11, v20, 10, v11\nv_add_u32 v11, s68, v11\ns_lshl_b32 s57, s98, 16")
    A("s_waitcnt lgkmcnt(0)")
    srd(A,16,4,2048*1024); srd(A,20,6,512*3072)
    if WTOUCH: A("s_mov_b64 exec, 0x3f\nbuffer_load_dword v25, v24, s[20:23], s59 offen\ns_mov_b64 exec, -1")
    if TLB:
        A("s_cmp_lt_u32 s40, 6\ns_cbranch_scc1 k_notlb\ns_cmp_eq_u32 s40, 7\ns_cbranch_scc1 k_tlb7")
        A("v_lshlrev_b32 v24, 21, v0\ns_mov_b64 exec, 0xfff\nglobal_load_dword v26, v24, s[14:15] sc1\ns_branch k_tlbd")
        A.label("k_tlb7")
        A("v_lshlrev_b32 v24, 20, v0\ns_mov_b64 exec, 3\nglobal_load_dword v26, v24, s[8:9]\nglobal_load_dword v26, v24, s[10:11]\nglobal_load_dword v26, v24, s[72:73]\nglobal_load_dword v26, v24, s[74:75]\ns_mov_b64 exec, 1\nglobal_load_dword v26, v24, s[12:13]")
        A.label("k_tlbd")
        A("s_mov_b64 exec, -1")
        A.label("k_notlb")
    X=32
    vm=VM()
    for i in range(8):
        A(f"s_add_u32 s88, s100, {i}\ns_and_b32 s88, s88, 7\ns_lshl_b32 s88, s88, 7\ns_add_u32 s88, s88, s57\nbuffer_load_dwordx4 {vr(X+4*i,4)}, v11, s[16:19], s88 offen"); vm.add(("x",i))
    if XBAR==1: A("s_barrier")
    def dmaW(vm,d,his):
        L=[]; b=WB+(d%4)*24576
        for k,hi in enumerate(his):
            for c in range(3):
                vm.add(("W",d))
                if c==0: pre=f"s_add_u32 s88, s100, {d}\ns_and_b32 s88, s88, 7\ns_mul_i32 s59, s88, {64*3072}\n"+("s_add_u32 s59, s59, s91\n" if hi is None else (f"s_add_u32 s59, s59, {32*3072}\n" if hi else ""))
                else: pre="s_add_u32 s59, s59, 1024\n"
                m=f"s80, {b+c*8192}" if hi is None else f"s101, {b+c*8192+hi*4096}"
                L.append(f"s_add_u32 m0, {m}\n"+pre+"buffer_load_dwordx4 v30, s[20:23], s59 offen lds")
        return L
    srd(A,32,14,WS_SIZE)
    A(f"s_add_u32 s70, s14, {WS_T}\ns_addc_u32 s71, s15, 0\ns_load_dword s58, s[70:71], 0")
    A("s_and_b32 s41, s40, 1\ns_bfe_u32 s42, s40, 0x10001")
    A("v_bfe_u32 v23, v0, 1, 3\nv_xor_b32 v23, v23, v1\nv_lshlrev_b32 v23, 4, v23\nv_lshl_add_u32 v23, v22, 7, v23")
    A(f"s_lshl_b32 s68, s41, 12\nv_add_u32 v5, s68, v23")
    for kq in range(1,4): A(f"v_xor_b32 v{5+kq}, {32*kq}, v5")
    A("v_bfe_u32 v28, v0, 2, 2\nv_lshlrev_b32 v28, 7, v28\nv_and_b32 v24, 3, v0\nv_lshl_add_u32 v28, v24, 3, v28")
    A("v_bfe_u32 v24, v0, 3, 1\nv_xor_b32 v24, s42, v24\nv_lshl_add_u32 v28, v24, 6, v28\nv_bfe_u32 v27, v0, 4, 1\nv_lshl_add_u32 v28, v27, 5, v28")
    A(f"v_lshl_add_u32 v9, v1, 10, v28\nv_add_u32 v9, {WB}, v9\nv_add_u32 v10, {2*24576}, v9")
    A("v_lshrrev_b32 v4, 4, v0\ns_lshl_b32 s68, s41, 2\nv_xor_b32 v4, s68, v4\nv_xor_b32 v4, v4, v21\nv_lshlrev_b32 v4, 4, v4\nv_lshl_add_u32 v4, v20, 7, v4\ns_lshl_b32 s68, s89, 10\nv_add_u32 v4, s68, v4")
    A("v_mov_b32 v12, 0\nv_mov_b32 v13, 0\nv_mov_b32 v14, 0\nv_mov_b32 v15, 0")
    A("v_lshlrev_b32 v2, 4, v0\nv_mov_b32 v19, 0x3f803f80")
    srd(A,24,8,512*3584); srd(A,28,10,512*3584); srd(A,36,14,WS_SIZE); srd(A,76,72,1792*1024); srd(A,60,12,512*1024); srd(A,64,74,2048*1024)
    A("s_bfe_u32 s59, s2, 0x20003\ns_lshl_b32 s43, s3, 2\ns_add_u32 s43, s43, s59")
    A("s_lshr_b32 s44, s2, 5")
    A("s_lshl_b32 s45, s44, 3\ns_add_u32 s45, s45, s40")
    A("s_lshr_b32 s46, s3, 1\ns_lshl_b32 s46, s46, 2\ns_add_u32 s46, s46, s59")
    A("s_and_b32 s47, s3, 1\ns_mul_i32 s47, s47, 7\ns_add_u32 s47, s47, s44")
    A(f"s_lshl_b32 s49, s43, 17\ns_add_u32 s49, s49, s101\ns_add_u32 s49, s49, {WS_KV}")
    A(f"s_lshl_b32 s50, s46, 17\ns_add_u32 s50, s50, {WS_XN}")
    A(f"v_mul_u32_u24 v{vG}, 3584, v29\nv_add_u32 v{vG}, v{vG}, v31\ns_lshl_b32 s68, s47, 8\nv_add_u32 v{vG}, s68, v{vG}\nv_xor_b32 v{vU}, 32, v{vG}")
    A(f"s_lshr_b32 s68, s101, 5\nv_add_u32 v29, s68, v20\nv_lshl_add_u32 v{vD}, v29, 10, v31\ns_lshl_b32 s68, s44, 7\nv_add_u32 v{vD}, s68, v{vD}")
    A(f"s_mul_i32 s51, s43, {224*1024}\ns_lshl_b32 s68, s101, 2\ns_add_u32 s51, s51, s68\ns_add_u32 s51, s51, {WS_H}")
    A("s_lshr_b32 s48, s40, 2")
    A(f"v_and_b32 v3, 15, v0\nv_lshlrev_b32 v3, 4, v3\nv_lshl_add_u32 v3, v1, 8, v3\nv_add_u32 v3, {KVB+1024}, v3\nv_add_u32 v{aK}, {KVB}, v2")
    A("s_mov_b32 s52, 0xffff\ns_mov_b32 s53, 0xffff")
    A(f"s_lshl_b32 s68, s41, 13\nv_add_u32 v{aX+4}, s68, v23")
    for kq in range(1,4): A(f"v_xor_b32 v{aX+4+kq}, {32*kq}, v{aX+4}")
    for kq in range(4): A(f"v_add_u32 v{aX+kq}, 0x10000, v{aX+4+kq}")
    A(f"v_lshl_add_u32 v{aW+2}, v27, 13, v28\nv_lshl_add_u32 v{aW+2}, v1, 10, v{aW+2}\ns_lshl_b32 s68, s48, 14\ns_add_u32 s68, s68, 16384\nv_add_u32 v{aW+2}, s68, v{aW+2}")
    A(f"v_xor_b32 v{aW+3}, 32, v{aW+2}\nv_add_u32 v{aW}, 0x10000, v{aW+2}\nv_add_u32 v{aW+1}, 0x10000, v{aW+3}")
    A(f"s_lshl_b32 s68, s41, 14\ns_lshl_b32 s70, s48, 13\ns_add_u32 s68, s68, s70\nv_add_u32 v{aH+1}, s68, v2\nv_add_u32 v{aH}, 0x10000, v{aH+1}")
    A(f"v_lshl_add_u32 v{aD+1}, v1, 9, v28\ns_lshl_b32 s68, s48, 14\ns_add_u32 s68, s68, 32768\nv_add_u32 v{aD+1}, s68, v{aD+1}\nv_add_u32 v{aD}, 0x10000, v{aD+1}")
    A(f"s_lshl_b32 s54, s46, 2\ns_lshl_b32 s68, s41, 1\ns_add_u32 s54, s54, s68\ns_mul_i32 s54, s54, 112\ns_lshl_b32 s68, s47, 3\ns_add_u32 s54, s54, s68\ns_and_b32 s68, s40, 6\ns_add_u32 s54, s54, s68\ns_lshl_b32 s54, s54, 10\ns_add_u32 s54, s54, {WS_H}\ns_add_u32 s55, s54, {112*1024}")
    A("s_lshl_b32 s80, s48, 12\ns_add_u32 s80, s80, s101")
    A(f"s_lshl_b32 s81, s48, 12\ns_add_u32 s81, s81, s49\ns_lshl_b32 s82, s48, 16\ns_add_u32 s82, s82, s50\ns_mul_i32 s83, s48, {32*3584}\ns_lshl_b32 s84, s48, 17\ns_mul_i32 s85, s48, {112*1024}\ns_add_u32 s85, s85, s51")
    A("s_lshr_b32 s86, s46, 1\ns_mul_i32 s68, s43, 37\ns_lshr_b32 s68, s68, 8\ns_mul_i32 s68, s68, 7\ns_sub_u32 s87, s43, s68")
    if not ROT: A("s_mov_b32 s86, 0\ns_mov_b32 s87, 0")
    rotU=lambda n: f"s_add_u32 s88, s86, {n}\ns_and_b32 s88, s88, 7\n"
    rotD=lambda n: f"s_add_u32 s88, s87, {n}\ns_sub_u32 s89, s88, 7\ns_cmp_ge_u32 s88, 7\ns_cselect_b32 s88, s89, s88\n"
    def dmaKV(vm,it,hi=None):
        vm.add(("KV",it))
        if hi is None: return [f"s_add_u32 m0, s80, {KVB+(it%3)*KVS}\ns_add_u32 s59, s81, {it*8192}\nbuffer_load_dwordx4 v2, s[32:35], s59 offen sc1 lds"]
        return [f"s_add_u32 m0, s101, {KVB+(it%3)*KVS+hi*4096}\ns_add_u32 s59, s49, {it*8192+hi*4096}\nbuffer_load_dwordx4 v2, s[32:35], s59 offen sc1 lds"]
    def dmaUX(vm,n,hi=None):
        b=GB[n%2]; vm.add(("U",n),2)
        m,s,o1,o2=("s80","s82",0,0) if hi is None else ("s101","s50",hi*8192,hi*65536)
        return [f"s_lshl_b32 s59, {m}, 1\ns_add_u32 m0, s59, {b+o1}\n"+rotU(n)+f"s_lshl_b32 s59, s88, 7\ns_add_u32 s59, s59, {s}\n"+(f"s_add_u32 s59, s59, {o2}\n" if o2 else "")+f"buffer_load_dwordx4 v{vX}, s[36:39], s59 offen sc1 lds",
                f"s_add_u32 m0, m0, 1024\ns_nop 0\nbuffer_load_dwordx4 v{vX+1}, s[36:39], s59 offen sc1 lds"]
    def dmaUW(vm,n,hi=None):
        b=GB[n%2]; L=[]; vm.add(("U",n),4)
        for c in range(4):
            if c==0: so=rotU(n)+f"s_mul_i32 s59, s88, {64*3584}\n"+("s_add_u32 s59, s59, s83" if hi is None else f"s_add_u32 s59, s59, {hi*32*3584}")
            else: so="s_add_u32 s59, s59, 128" if c==2 else "s_nop 0"
            m=f"s80, {b+16384+c*8192}" if hi is None else f"s101, {b+16384+c*8192+hi*4096}"
            L.append(f"s_add_u32 m0, {m}\n{so}\nbuffer_load_dwordx4 v{vG+c%2}, s[{24+4*(c%2)}:{27+4*(c%2)}], s59 offen lds")
        return L
    def dmaU(vm,n,hi=None): return dmaUX(vm,n,hi)+dmaUW(vm,n,hi)
    def dmaRows(vm,tag,dst,pre,srdn):
        vm.add(tag,4)
        return [(f"s_lshl_b32 s90, s80, 2\n" if i==0 else "")+f"s_add_u32 m0, s90, {dst+i*1024}\n"+(pre if i==0 else "s_add_u32 s59, s59, 8192\n")+f"buffer_load_dwordx4 v{vD}, s[{srdn}:{srdn+3}], s59 offen lds" for i in range(4)]
    def dmaDW(vm,n): return dmaRows(vm,("D",n),GB[n%2]+32768,rotD(n)+"s_lshl_b32 s59, s88, 18\ns_add_u32 s59, s59, s84\n",76)
    def dmaWO(vm): return dmaRows(vm,"wo",GB[1],"s_mov_b32 s59, s84\n",60)+dmaRows(vm,"wo",GB[1]+32768,f"s_add_u32 s59, s84, {256*1024}\n",60)
    def dmaDH(vm,n):
        b=GB[n%2]; vm.add(("D",n),4)
        return [(f"s_lshl_b32 s59, s80, 2\ns_add_u32 m0, s59, {b}\n"+rotD(n)+"s_lshl_b32 s59, s88, 14\ns_add_u32 s59, s59, s85\n" if i==0 else "")+f"buffer_load_dwordx4 v2, s[32:35], s59 offen offset:{1024*i} sc1 lds" for i in range(4)]
    A(f"s_mul_i32 s91, s48, {32*3072}")
    if XBAR==2: A("s_barrier")
    for d in range(NW0):
        for l in dmaW(vm,d,[None]): A(l)
    st.mark(A,0)
    for i in range(8):
        if i%2==0: A(f"s_waitcnt vmcnt({vm.n_after(('x',i+1))})")
        for d in range(4): A(f"v_dot2c_f32_bf16 v{12+d%2}, v{X+4*i+d}, v19\nv_dot2c_f32_bf16 v{14+d%2}, v{X+4*i+d}, v{X+4*i+d}")
    st.mark(A,1)
    later=[]
    for d in range(NW0,NW1): later+=dmaW(vm,d,[None])
    A("s_nop 2\nv_add_f32 v12, v12, v13\nv_add_f32 v13, v14, v15\ns_nop 1")
    for mod in ("quad_perm:[1,0,3,2]","quad_perm:[2,3,0,1]","row_half_mirror"):
        A(f"v_add_f32_dpp v12, v12, v12 {mod} row_mask:0xf bank_mask:0xf\nv_add_f32_dpp v13, v13, v13 {mod} row_mask:0xf bank_mask:0xf\ns_nop 0")
    A(f"v_mul_f32 v12, {f2u(1/512):#x}, v12\nv_mul_f32 v13, {f2u(1/512):#x}, v13")
    A("v_fma_f32 v13, -v12, v12, v13\nv_max_f32 v13, 0, v13")
    A("v_cvt_pk_bf16_f32 v13, v13, v13\nv_and_b32 v13, 0xffff0000, v13")
    A(f"v_add_f32 v13, {f2u(1e-5):#x}, v13")
    A("v_cvt_pk_bf16_f32 v13, v13, v13\nv_and_b32 v13, 0xffff0000, v13\nv_sqrt_f32 v13, v13")
    A("v_cvt_pk_bf16_f32 v12, v12, v12\nv_cvt_pk_bf16_f32 v13, v13, v13\nv_and_b32 v13, 0xffff0000, v13\nv_rcp_f32 v14, v13\nv_and_b32 v12, 0xffff0000, v12")
    A("v_mov_b32 v15, v14\nv_mul_f32 v16, -v12, v14\nv_mov_b32 v17, v16")
    for i in range(8):
        for d in range(0,4,2):
            r=X+4*i+d
            A(f"v_lshlrev_b32 v20, 16, v{r}\nv_and_b32 v21, 0xffff0000, v{r}\nv_lshlrev_b32 v22, 16, v{r+1}\nv_and_b32 v23, 0xffff0000, v{r+1}")
            A(f"v_pk_fma_f32 v[20:21], v[20:21], v[14:15], v[16:17]\nv_pk_fma_f32 v[22:23], v[22:23], v[14:15], v[16:17]\nv_cvt_pk_bf16_f32 v{r}, v20, v21\nv_cvt_pk_bf16_f32 v{r+1}, v22, v23")
        A(f"ds_write_b128 v4, {vr(X+4*i,4)} offset:{8192*i}")
    for l in later: A(l)
    A(f"s_waitcnt vmcnt({vm.n_after(('W',0))}) lgkmcnt(0)\ns_barrier\ns_add_u32 s58, s58, 1")
    st.mark(A,2)
    vmh=copy.deepcopy(vm); vmc=vm
    A("s_cmp_ge_u32 s40, 4\ns_cbranch_scc1 p1_help\ns_setprio 1")
    FS=[64,80,32]; ACC=96
    def reads(F,kp):
        d=kp//4; ks=kp%4; sl=d%4
        r=[f"ds_read_b128 {vr(F,4)}, v{5+ks} offset:{d*8192}"]
        for c in range(3):
            for i in range(2): r.append(f"ds_read_b64_tr_b16 {vr(F+4+4*c+2*i,2)}, v{9+sl//2} offset:{(sl%2)*24576+c*8192+(16*ks+4*i)*128}")
        return r
    A("s_lshl_b32 s68, s101, 1\nv_add_u32 v20, s68, v2\nds_read_b128 v[48:51], v20\nds_read_b128 v[52:55], v20 offset:1024")
    for l in reads(FS[0],0)+reads(FS[1],1): A(l)
    A(f"s_and_b32 s59, s100, 7\ns_lshl_b32 s59, s59, 7\ns_add_u32 s59, s59, s57\ns_add_u32 s59, s59, {WS_XN}")
    pre=[f"buffer_store_dwordx4 v[48:51], v{vX}, s[32:35], s59 offen sc1",
         f"buffer_store_dwordx4 v[52:55], v{vX+1}, s[32:35], s59 offen sc1",
         "s_lshl_b32 s68, s98, 1\ns_add_u32 s68, s68, s41\ns_lshl_b32 s59, s99, 1\ns_add_u32 s59, s59, s42\ns_lshl_b32 s59, s59, 7\ns_add_u32 s59, s59, s68",
         f"s_lshl_b32 s70, s59, 10\ns_add_u32 s71, s70, {64*1024}\ns_lshl_b32 s68, s59, 11\ns_add_u32 s68, s68, {WS_KV}\ns_add_u32 s69, s68, {64*2048}",
         f"v_and_b32 v20, 31, v0\nv_lshlrev_b32 v20, 6, v20\nv_lshl_add_u32 v20, v1, 3, v20\ns_lshl_b32 s72, s40, 11\ns_add_u32 s72, s72, {VSC}\nv_add_u32 v20, s72, v20",
         "v_lshlrev_b32 v22, 10, v1\nv_lshl_add_u32 v22, v27, 8, v22\nv_bfe_u32 v23, v0, 2, 2\nv_lshl_add_u32 v22, v23, 6, v22",
         f"v_and_b32 v23, 3, v0\nv_lshl_add_u32 v22, v23, 3, v22\nv_add_u32 v22, s72, v22\nv_mov_b32 v24, {f2u(0.25*LOG2E):#x}\nv_mov_b32 v25, v24"]
    for kp in range(32):
        F=FS[kp%3]; d=kp//4
        fill=[]
        if kp==4*F1D+2:
            A("s_waitcnt vmcnt(0) lgkmcnt(0)\ns_barrier")
            fill.append("FLAG")
        elif kp%4==2:
            w=f"vmcnt({vmc.n_after(('W',d+1))}) " if ('W',d+1) in vmc.ops else ""
            A(f"s_waitcnt {w}lgkmcnt(0)\ns_barrier")
        else: A(f"s_waitcnt lgkmcnt({7 if kp<31 else 0})")
        if kp%4==2: st.mark(A,32+d)
        fl="FLAG" in fill; fill=[]
        if kp<30: fill+=reads(FS[(kp+2)%3],kp+2)
        if pre:
            fill.append(pre.pop(0))
            if kp<2: vmc.add("xst")
        weave(A,[mfma32(ACC+16*c,F+4+4*c,F,(ACC+16*c) if kp else "0") for c in (2,1,0)],fill)
        if fl: flag_store(A,"p1_f1",0,f"s_lshl_b32 s59, s98, 10\ns_lshl_b32 s74, s99, 7\ns_add_u32 s59, s59, s74\ns_add_u32 s59, s59, {FL1}",56,57)
    st.mark(A,3)
    V=ACC+32; Kk=ACC+16
    A("s_nop 9")
    for d in range(8): A(f"v_cvt_pk_bf16_f32 v{V+d}, v{V+2*d}, v{V+2*d+1}")
    for q in range(4): A(f"ds_write_b64 v20, {vr(V+2*q,2)} offset:{16*q}")
    for d in range(8): A(f"v_cvt_pk_bf16_f32 v{Kk+d}, v{Kk+2*d}, v{Kk+2*d+1}")
    A("s_waitcnt lgkmcnt(0)")
    for hh in range(2):
        for ii in range(2): A(f"ds_read_b64_tr_b16 {vr(V+4*hh+2*ii,2)}, v22 offset:{32*hh+512*ii}")
    A(f"buffer_store_dwordx4 {vr(Kk,4)}, v2, s[32:35], s68 offen sc1\nbuffer_store_dwordx4 {vr(Kk+4,4)}, v2, s[32:35], s69 offen sc1")
    A("s_waitcnt lgkmcnt(0)")
    A(f"buffer_store_dwordx4 {vr(V,4)}, v2, s[32:35], s68 offen offset:1024 sc1\nbuffer_store_dwordx4 {vr(V+4,4)}, v2, s[32:35], s69 offen offset:1024 sc1")
    for r in range(0,16,2): A(f"v_pk_mul_f32 {vr(ACC+r,2)}, {vr(ACC+r,2)}, v[24:25]")
    for d in range(8): A(f"v_cvt_pk_bf16_f32 v{ACC+d}, v{ACC+2*d}, v{ACC+2*d+1}")
    A(f"buffer_store_dwordx4 {vr(ACC,4)}, v2, s[32:35], s70 offen sc1\nbuffer_store_dwordx4 {vr(ACC+4,4)}, v2, s[32:35], s71 offen sc1")
    st.mark(A,49)
    A("s_setprio 0\ns_branch p1_join")
    A.label("p1_help")
    A(f"v_and_b32 v22, 15, v0\nv_lshlrev_b32 v22, 7, v22\ns_lshl_b32 s56, s46, 11\ns_add_u32 s56, s56, {FL1}")
    A("s_cmp_eq_u32 s44, 7\ns_cselect_b32 s26, 0, s26\ns_cselect_b32 s30, 0, s30\ns_cselect_b32 s38, 0, s38")
    nxt=NW1
    if nxt<4:
        for l in dmaW(vmh,nxt,[0,1]): A(l)
        nxt+=1
    for d in range(8):
        st.mark(A,40+d)
        if d<7: A(f"s_waitcnt vmcnt({vmh.n_after(('W',d+1))})")
        st.mark(A,32+d)
        A("s_barrier")
        if nxt<8:
            assert nxt<=d+4
            for l in dmaW(vmh,nxt,[0,1]): A(l)
            nxt+=1
        if d==5:
            for l in dmaUW(vmh,0,0): A(l)
        if d==6:
            for l in dmaUW(vmh,0,1): A(l)
            A("buffer_load_dword v23, v22, s[32:35], s56 offen sc1"); vmh.add("f1")
    poll_check(A,"p1_c1",22,23,"s56",0,False)
    st.mark(A,48)
    for hi in range(2):
        for l in dmaUX(vmh,0,hi): A(l)
    if U1H:
        for hi in range(2):
            for l in dmaU(vmh,1,hi): A(l)
    st.mark(A,49)
    A(f"s_waitcnt vmcnt({12 if U1H else 0})")
    st.mark(A,55)
    A.label("p1_join")
    A("s_cmp_eq_u32 s44, 7\ns_cselect_b32 s26, 0, s26\ns_cselect_b32 s30, 0, s30\ns_cselect_b32 s38, 0, s38")
    for i in range(8): A(f"v_mov_b32 v{VA+i}, 0")
    A("s_mov_b32 exec_lo, 0x110000\ns_mov_b32 exec_hi, 0x110000")
    for i in range(8): A(f"v_mov_b32 v{VA+i}, 0x3f803f80")
    A("s_mov_b64 exec, -1")
    A(f"v_lshlrev_b32 v30, 7, v0\ns_lshr_b32 s56, s43, 1\ns_lshl_b32 s56, s56, 13\ns_add_u32 s56, s56, {FL2}"+ONLY7)
    st.mark(A,4)
    vm=VM(); vm.add(("U",1)); vm.add(("U",0))
    if F2G<0: vm=VM(); vm.add(("U",0)); vm.add(("U",1))
    def f2flag():
        if F2G<0: A("s_cmp_ge_u32 s40, 4\ns_cbranch_scc1 j_nw\ns_waitcnt vmcnt(0)\nj_nw:")
        else: A(f"s_waitcnt vmcnt({vm.n_after(('U',0))})")
        flag_store(A,"p1_f2",None,f"s_lshl_b32 s59, s99, 1\ns_add_u32 s59, s59, s42\ns_lshl_b32 s59, s59, 6\ns_lshl_b32 s68, s98, 1\ns_add_u32 s59, s59, s68\ns_add_u32 s59, s59, s41\ns_lshl_b32 s59, s59, 7\ns_add_u32 s59, s59, {FL2}",28,29,"s_cmp_lt_u32 s40, 4"); vm.add("fs")
        st.mark(A,57)
    if NPRE==1 or F2G<0: f2flag()
    kv=lambda t: ((t//4)%3)*KVS+(t%4)*2048
    def up_reads(g):
        n,ks=g//4,g%4; F=FR[g%2]; b=n%2
        L=[f"ds_read_b128 {vr(F+8+4*t,4)}, v{aX+4*b+ks} offset:{t*4096}" for t in range(2)]
        for jj in range(2):
            for i in range(2): L.append(f"ds_read_b64_tr_b16 {vr(F+4*jj+2*i,2)}, v{aW+2*b+jj} offset:{(16*ks+4*i)*128}")
        return L
    def up_mf(g):
        F=FR[g%2]
        return [mfma32(GACC+16*(2*t+jj),F+4*jj,F+8+4*t,(GACC+16*(2*t+jj)) if g else "0") for t in range(2) for jj in range(2)]
    def dn_reads(g):
        n,u=g//4,g%4; F=FR[g%2]; b=n%2; L=[]
        for k in range(2):
            ks=2*u+k
            L.append(f"ds_read_b128 {vr(F+8+4*k,4)}, v{aH+b} offset:{ks*1024}")
            for i in range(2): L.append(f"ds_read_b64_tr_b16 {vr(F+4*k+2*i,2)}, v{aD+b} offset:{ks*2048+i*1024}")
        return L
    def dn_mf(g):
        F=FR[g%2]
        return [mfma32(DACC,F+4*k,F+8+4*k,DACC if (g or k) else "0") for k in range(2)]
    def up_epi(ti):
        acc=GACC+16*ti; t,jj=ti//2,ti%2
        L=[f"v_max_f32 v{acc+r}, 0, v{acc+r}" for r in range(8)]+[f"v_mul_f32 v{acc+r}, v{acc+r}, v{acc+8+r}" for r in range(8)]
        L+=[f"v_cvt_pk_bf16_f32 v{acc+d}, v{acc+2*d}, v{acc+2*d+1}" for d in range(4)]
        L.append(f"buffer_store_dwordx4 {vr(acc,4)}, v2, s[36:39], s{54+t} offen offset:{1024*jj} sc1")
        return L
    for n in range(NPRE):
        if n==NPRE-1:
            if n==0: A("buffer_load_dword v31, v30, s[32:35], s56 offen sc1"); vm.add("f2")
            st.mark(A,56)
            poll_check(A,"m_c2",30,31,"s56",vm.n_after("f2"))
        A((f"s_waitcnt vmcnt({vm.n_after(('U',n))}) lgkmcnt(0)" if n else "s_waitcnt lgkmcnt(0)")+"\ns_barrier")
        if n==2: st.mark(A,7)
        st.mark(A,50+n)
        if n==NPRE-1:
            A(f"s_lshl_b32 s59, s43, 6\ns_add_u32 s59, s59, s45\ns_lshl_b32 s59, s59, 10\nbuffer_load_dwordx4 {vr(Q,4)}, v2, s[32:35], s59 offen sc1"); vm.add("q")
            for l in dmaKV(vm,0)+dmaKV(vm,1): A(l)
        dml=dmaU(vm,n+1) if (n or not U1H) else []
        for u in range(4):
            g=4*n+u
            if u>0: A("s_waitcnt lgkmcnt(0)")
            fill=up_reads(g)+dml[:3]; dml=dml[3:]
            if n==NPRE-2 and u==3: fill.append("buffer_load_dword v31, v30, s[32:35], s56 offen sc1"); vm.add("f2")
            if g>0: weave(A,up_mf(g-1),fill)
            else:
                for l in fill: A(l)
            if g==F2G and NPRE>1: f2flag()
    st.mark(A,5)
    A(f"s_waitcnt vmcnt({vm.n_after(('KV',0))})\ns_barrier")
    st.mark(A,6)
    A(f"ds_read_b128 {vr(K,4)}, v{aK}")
    A(f"s_mov_b64 exec, s[52:53]\nds_read_b128 {vr(VA,4)}, v3\ns_mov_b64 exec, -1")
    A("s_waitcnt lgkmcnt(1)")
    A(mfma32(SA,K,Q,"0"))
    for r in range(16): A(f"v_mov_b32 v{O+r}, 0")
    def max16(dst,S,first):
        if first:
            A(f"v_max3_f32 v{dst}, v{S}, v{S+1}, v{S+2}\nv_max_f32 v{dst}, v{dst}, v{S+3}")
            s0=4
        else: s0=0
        for r in range(s0,16,2): A(f"v_max3_f32 v{dst}, v{dst}, v{S+r}, v{S+r+1}")
    max16(28,SA,True)
    A(f"v_add_f32 v28, {f2u(MOFF):#x}, v28")
    A(f"v_mov_b32 v29, v28\nv_mov_b32 v{P+4}, 0\nv_mov_b32 v{P+5}, 0\nv_permlane32_swap_b32 v28, v29\nv_max_f32 v28, v28, v29")
    for r in range(16): A(f"v_sub_f32 v{C+r}, 0, v28")
    A(f"v_mov_b32 v{P+6}, 0\nv_mov_b32 v{P+7}, 0")
    A(mfma32(SA,K,Q,C))
    A(f"ds_read_b128 {vr(K,4)}, v{aK} offset:2048\ns_nop 5")
    if PRIO: A("s_setprio 1")
    UP0=-NPRE; D0=UP0+8+DGAP
    for it in range(16):
        needs=[]
        if it+1<16: needs.append(vm.n_after(("KV",it+1)))
        n=it-UP0; dn=it-D0
        if 0<=n<8: needs.append(vm.n_after(("U",n)))
        if 0<=dn<7: needs.append(vm.n_after(("D",dn)))
        if n==9: needs.append(vm.n_after("hst"))
        if dn==-1: poll_check(A,"m_c3",30,31,"s56",vm.n_after("f3"))
        A((f"s_waitcnt vmcnt({min(needs)}) lgkmcnt(0)" if needs else "s_waitcnt lgkmcnt(0)")+"\ns_barrier")
        st.mark(A,8+it)
        if PRIO: A(f"s_cmp_lt_u32 s40, 4\ns_cbranch_scc1 m_pa{it}\ns_setprio 2\nm_pa{it}:")
        if n==9:
            A(f"v_min_u32 v30, 13, v0\nv_lshlrev_b32 v30, 7, v30\ns_lshr_b32 s56, s43, 1\ns_lshl_b32 s56, s56, 11\ns_add_u32 s56, s56, {FL3}"+ONLY7)
        dml=[]
        if dn+1==0: dml+=dmaDH(vm,0)
        if 0<dn+1<7: dml+=dmaDH(vm,dn+1)+dmaDW(vm,dn+1)
        if 2<=n+1<8: dml+=dmaU(vm,n+1)
        if it+2<16: dml+=dmaKV(vm,it+2)
        if n==7: dml+=dmaDW(vm,0)
        if dn==6: dml+=dmaWO(vm)
        if n==7 and WOT: dml.append("s_lshl_b32 s59, s2, 3\ns_add_u32 s59, s59, s40\ns_lshl_b32 s59, s59, 8\nv_lshlrev_b32 v28, 7, v0\ns_mov_b64 exec, 3\nbuffer_load_dword v195, v28, s[60:63], s59 offen\ns_mov_b64 exec, -1"); vm.add("t")
        if n==9:
            for l in dml: A(l)
            dml=[]
            flag_store(A,"m_f3",0,f"s_lshl_b32 s59, s46, 11\ns_lshl_b32 s68, s47, 7\ns_add_u32 s59, s59, s68\ns_add_u32 s59, s59, {FL3}",28,29,"s_cmp_lg_u32 s44, 7"); vm.add("fs")
        for u in range(4):
            t=4*it+u
            if PRIO and u==PRIO: A(f"s_cmp_lt_u32 s40, 4\ns_cbranch_scc1 m_pb{it}\ns_setprio 0\nm_pb{it}:")
            if PROG and u!=1: A(f"s_setprio {[3,3,2,1][u]}")
            Sc,Sn=(SA,SB) if u%2==0 else (SB,SA)
            val=[f"v_exp_f32 v{Sc+r}, v{Sc+r}" for r in range(8)]+[f"v_cvt_pk_bf16_f32 v{P+d}, v{Sc+2*d}, v{Sc+2*d+1}" for d in range(4)]+[f"v_exp_f32 v{Sc+r}, v{Sc+r}" for r in range(8,16)]+[f"v_cvt_pk_bf16_f32 v{P+d}, v{Sc+2*d}, v{Sc+2*d+1}" for d in range(4,8)]
            g=4*n+u; gd=4*dn+u
            ex=[]; rds=[]
            if 0<=g-1<32: ex+=up_mf(g-1)
            if 0<=g<32: rds+=up_reads(g)
            if 0<=gd-1<28: ex+=dn_mf(gd-1)
            if 0<=gd<28: rds+=dn_reads(gd)
            extra=[]
            if n==8 and u in (1,2):
                for ti in ([0,1],[2,3])[u-1]: extra+=up_epi(ti); vm.add("hst")
            if dn==-2 and u==2: extra.append("buffer_load_dword v31, v30, s[32:35], s56 offen sc1"); vm.add("f3")
            k=(len(dml)+1)//2 if u==0 and n!=8 else len(dml)
            mine=dml[:k]; dml=dml[k:]
            EXm="s_mov_b64 exec, s[52:53]"; EN="s_mov_b64 exec, -1"
            qk=[mfma32(Sn,K,Q,C)]+([f"ds_read_b128 {vr(K,4)}, v{aK} offset:{kv(t+2)}"] if t+2<64 else [])
            if t==63: qk=[]
            pv1=[mfma32(O,VB,P+4,O),EXm,f"ds_read_b128 {vr(VB,4)}, v3 offset:{kv(t)+512}",EN]
            pv0=[mfma32(O,VA,P,O)]+([EXm,f"ds_read_b128 {vr(VA,4)}, v3 offset:{kv(t+1)}",EN] if t+1<64 else [])
            nx=len(ex); e=[[m] for m in ex]
            seq={0:[qk,pv1,pv0],2:[qk]+e[0:1]+[pv1,pv0]+e[1:2],4:[qk]+e[0:1]+[pv1]+e[1:3]+[pv0]+e[3:4]}[nx]
            ng=len(seq)
            for i,x in enumerate(rds): seq[min(ng-2,(i*(ng-1))//max(1,len(rds)))].append(x)
            for i,x in enumerate(mine): seq[(i*ng)//len(mine)].append(x)
            if u>0: A("s_waitcnt lgkmcnt(0)")
            val=val+extra
            cost=[8 if "exp" in x else 4 for x in val]; tot=sum(cost); acc=0; gi=0
            for i,x in enumerate(val):
                if PROG and u==3 and i==12: A("s_setprio 0")
                while gi<ng and ((acc>=tot*gi/ng and not (seq[gi] is pv0 and i<14)) or (seq[gi] is pv1 and i>=19)):
                    for y in seq[gi]: A(y)
                    gi+=1
                A(x); acc+=cost[i]
            while gi<ng:
                for y in seq[gi]: A(y)
                gi+=1
    A("s_waitcnt lgkmcnt(0)\ns_nop 0")
    A(mfma32(O,VB,P+4,O))
    if D0+7>=16:
        for m in dn_mf(4*(16-D0)-1): A(m)
    st.mark(A,24)
    A("s_lshl_b32 s57, s43, 1\ns_add_u32 s57, s57, s48\ns_lshl_b32 s57, s57, 15\ns_lshl_b32 s68, s44, 7\ns_add_u32 s57, s57, s68\ns_lshr_b32 s68, s101, 5\ns_add_u32 s57, s57, s68")
    A(f"v_and_b32 v{XR+4}, 31, v0\nv_lshlrev_b32 v{XR+4}, 10, v{XR+4}\nv_lshl_add_u32 v{XR+4}, v1, 3, v{XR+4}")
    A(f"s_lshl_b32 s59, s45, 5\ns_add_u32 s59, s59, s43\ns_lshl_b32 s59, s59, 10\ns_add_u32 s70, s59, {WS_O}")
    A(f"v_max3_f32 v28, |v{O}|, |v{O+1}|, |v{O+2}|\nv_max3_f32 v28, v28, |v{O+3}|, |v{O+4}|\nv_max3_f32 v28, v28, |v{O+5}|, |v{O+6}|")
    A(f"v_max3_f32 v28, v28, |v{O+7}|, v{O+8}")
    A(f"v_add_f32 v29, v{O}, v{O+1}")
    for r in range(2,9): A(f"v_add_f32 v29, v29, v{O+r}")
    A("v_fma_f32 v28, 0, v29, v28")
    A(f"v_cmp_ngt_f32 vcc, {f2u(2.0**120):#x}, v28")
    A("s_nop 4\ns_cbranch_vccnz m_fallback")
    A.label("m_fin")
    A(f"v_rcp_f32 v28, v{O+8}\ns_nop 0")
    for r in range(8): A(f"v_mul_f32 v{O+r}, v28, v{O+r}")
    for d in range(4): A(f"v_cvt_pk_bf16_f32 v{P+d}, v{O+2*d}, v{O+2*d+1}")
    A(f"buffer_store_dwordx4 {vr(P,4)}, v2, s[32:35], s70 offen sc1"); vm.add("ost"); vm.add("x",2)
    A(f"buffer_load_dwordx2 {vr(XR,2)}, v{XR+4}, s[16:19], s57 offen\nbuffer_load_dwordx2 {vr(XR+2,2)}, v{XR+4}, s[16:19], s57 offen offset:16")
    A(f"s_lshl_b32 s68, s41, 14\ns_lshl_b32 s69, s48, 13\ns_add_u32 s68, s68, s69\ns_lshl_b32 s69, s42, 12\ns_add_u32 s68, s68, s69\nv_add_u32 v28, s68, v{aK}")
    A(f"s_lshl_b32 s68, s48, 14\ns_lshl_b32 s69, s101, 1\ns_add_u32 s68, s68, s69\nv_add_u32 v29, s68, v{aK}")
    A(f"v_and_b32 v30, 7, v0\nv_lshlrev_b32 v30, 7, v30\ns_lshl_b32 s56, s43, 1\ns_add_u32 s56, s56, s48\ns_lshl_b32 s56, s56, 12\ns_add_u32 s56, s56, s101\ns_add_u32 s56, s56, {FL4}")
    f4=lambda: (A(f"s_waitcnt vmcnt({vm.n_after('ost')})"), flag_store(A,"m_f4",None,f"s_lshl_b32 s59, s45, 12\ns_lshl_b32 s68, s43, 7\ns_add_u32 s59, s59, s68\ns_add_u32 s59, s59, {FL4}",32,33), vm.add("fs"))
    done=False
    for dn in range(max(0,16-D0),7):
        A(f"s_waitcnt vmcnt({vm.n_after(('D',dn))})\ns_barrier")
        for l in dn_reads(4*dn): A(l)
        dml=(dmaDH(vm,dn+1)+dmaDW(vm,dn+1)) if dn<6 else dmaWO(vm)
        for u in range(4):
            A("s_waitcnt lgkmcnt(0)")
            weave(A,dn_mf(4*dn+u),(dn_reads(4*dn+u+1) if u<3 else [])+dml[2*u:2*u+2])
        if not done: f4(); done=True
    if not done: f4()
    A(f"s_waitcnt vmcnt({vm.n_after('wo')})\ns_nop 8\ns_barrier")
    st.mark(A,25)
    for q in range(4): A(f"ds_write_b128 v28, {vr(DACC+4*q,4)} offset:{q*1024}")
    A(f"s_lshl_b32 s68, s48, 14\ns_add_u32 s68, s68, 32768\ns_lshl_b32 s69, s101, 4\ns_sub_u32 s68, s69, s68\nv_add_u32 v34, s68, v{aD+1}\ns_lshl_b32 s68, s42, 6\nv_xor_b32 v34, s68, v34\nv_xor_b32 v35, 64, v34")
    A(f"s_lshl_b32 s70, s43, 1\ns_add_u32 s70, s70, s48\ns_lshl_b32 s70, s70, 15\ns_lshl_b32 s68, s101, 3\ns_add_u32 s70, s70, s68\ns_add_u32 s70, s70, {WS_O}\ns_add_u32 s71, s70, 4096")
    A("s_waitcnt lgkmcnt(0)\ns_barrier")
    A("buffer_load_dword v31, v30, s[32:35], s56 offen sc1")
    for kh in range(2):
        for q in range(2): A(f"ds_read_b128 {vr(40+8*kh+4*q,4)}, v29 offset:{kh*8192+q*1024}")
    AF=128
    A("s_waitcnt lgkmcnt(0)")
    rd=[f"ds_read_b64_tr_b16 {vr(AF+8*n+4*cb+2*i,2)}, v{34+cb} offset:{n*2048+i*1024}" for n in range(8) for cb in range(2) for i in range(2)]
    G=56
    val=[f"v_add_f32 v{G+r}, v{40+r}, v{48+r}" for r in range(8)]+[f"v_mul_f32 v{40+r}, {f2u(-LOG2E):#x}, v{G+r}" for r in range(8)]+[f"v_exp_f32 v{40+r}, v{40+r}" for r in range(8)]+[f"v_add_f32 v{40+r}, 1.0, v{40+r}" for r in range(8)]+[f"v_rcp_f32 v{40+r}, v{40+r}" for r in range(8)]+[f"v_mul_f32 v{G+r}, v{G+r}, v{40+r}" for r in range(8)]
    for i,x in enumerate(val):
        A(x)
        if i<32: A(rd[i])
    poll_check(A,"m_c4",30,31,"s56",0,False)
    st.mark(A,26)
    OF=64; ACS=96
    for i in range(8): A(f"buffer_load_dwordx4 {vr(OF+4*i,4)}, v2, s[32:35], {'s70' if i<4 else 's71'} offen offset:{1024*(i%4)} sc1")
    for d in range(4): A(f"v_lshlrev_b32 v{40+2*d}, 16, v{XR+d}\nv_and_b32 v{41+2*d}, 0xffff0000, v{XR+d}")
    A(f"s_lshl_b32 s68, s40, 13\ns_add_u32 s68, s68, {GB[0]}\nv_add_u32 v36, s68, v2")
    A(f"s_lshl_b32 s68, s48, 15\ns_lshl_b32 s69, s101, 1\ns_add_u32 s68, s68, s69\ns_add_u32 s68, s68, {GB[0]}\nv_add_u32 v37, s68, v2")
    A("s_waitcnt lgkmcnt(0)")
    for n in range(8):
        A(f"s_waitcnt vmcnt({7-n})")
        for cb in range(2): A(mfma32(ACS+16*cb,AF+8*n+4*cb,OF+4*n,(ACS+16*cb) if n else "0"))
    st.mark(A,27)
    A("s_nop 10")
    for q in range(8): A(f"ds_write_b128 v36, {vr(ACS+4*q,4)} offset:{q*1024}")
    A("s_waitcnt lgkmcnt(0)\ns_barrier")
    T=64
    for kq in range(4):
        for q in range(2): A(f"ds_read_b128 {vr(T+8*kq+4*q,4)}, v37 offset:{kq*8192+q*1024}")
    A("s_waitcnt lgkmcnt(4)")
    for r in range(8): A(f"v_add_f32 v{T+r}, v{T+r}, v{T+8+r}")
    A("s_waitcnt lgkmcnt(0)")
    for r in range(8): A(f"v_add_f32 v{T+16+r}, v{T+16+r}, v{T+24+r}")
    for r in range(8): A(f"v_add_f32 v{T+r}, v{T+r}, v{T+16+r}")
    for r in range(8): A(f"v_fma_f32 v{40+r}, v{T+r}, v{G+r}, v{40+r}")
    for d in range(4): A(f"v_cvt_pk_bf16_f32 v{48+d}, v{40+2*d}, v{41+2*d}")
    A(f"buffer_store_dwordx2 v[48:49], v{XR+4}, s[64:67], s57 offen\nbuffer_store_dwordx2 v[50:51], v{XR+4}, s[64:67], s57 offen offset:16")
    flag_store(A,"m_bump",0,f"s_mov_b32 s59, {WS_T}",32,33,"s_cmp_eq_u32 s2, 0")
    if STAMP:
        st.mark(A,28)
        A("s_waitcnt vmcnt(0)")
        st.mark(A,29)
        A("v_subrev_u32 v250, s94, v250\ns_memrealtime s[96:97]\ns_waitcnt lgkmcnt(0)\nv_writelane_b32 v250, s92, 30\nv_writelane_b32 v250, s96, 31")
        A(f"s_lshl_b32 s96, s2, 3\ns_add_u32 s96, s96, s40\ns_lshl_b32 s96, s96, 8\ns_add_u32 s96, s96, {WS_ST}\nv_lshlrev_b32 v251, 2, v0\nbuffer_store_dword v250, v251, s[32:35], s96 offen")
    if E("PAD",0):
        A.label("k_pad")
        A(f"s_memrealtime s[96:97]\ns_waitcnt lgkmcnt(0)\ns_sub_u32 s96, s96, s92\ns_cmp_lt_u32 s96, {E('PAD',0)}\ns_cbranch_scc1 k_pad")
    if E("DBG",0):
        A("s_cmp_eq_u32 s40, 0\ns_cbranch_scc0 k_end\ns_load_dwordx2 s[4:5], s[0:1], 64\ns_memrealtime s[96:97]\ns_memtime s[6:7]\ns_waitcnt vmcnt(0) lgkmcnt(0)")
        srd(A,8,4,256)
        A("s_not_b32 s92, s92\ns_sub_u32 s6, s6, s94\nv_mov_b32 v1, 0\nv_mov_b32 v2, s92\nv_mov_b32 v3, s96\nv_mov_b32 v4, s6\ns_mov_b64 exec, 1")
        A("buffer_atomic_umax v2, v1, s[8:11], 0 offen\nbuffer_atomic_umax v3, v1, s[8:11], 0 offen offset:4\nbuffer_atomic_umax v4, v1, s[8:11], 0 offen offset:8")
        if STAMP:
            for k,l in enumerate([0,1,2,3,49,50,6,8,16,24,25,26,29]):
                A(f"v_readlane_b32 s6, v250, {l}\ns_nop 3\nv_mov_b32 v4, s6\nbuffer_atomic_umax v4, v1, s[8:11], 0 offen offset:{12+4*k}")
    A.label("k_end")
    A("s_endpgm")
    for name,va,vd,so in spins:
        A.label(name+"_spin")
        A(f"s_mov_b32 s59, {SPIN}")
        A.label(name+"_l")
        A(f"s_sleep {SLEEP}\nbuffer_load_dword v{vd}, v{va}, s[32:35], {so} offen sc1\ns_waitcnt vmcnt(0)\nv_cmp_ne_u32 vcc, s58, v{vd}\ns_sub_u32 s59, s59, 1\ns_nop 3")
        A(f"s_cbranch_vccz {name}_ret\ns_cmp_lg_u32 s59, 0\ns_cbranch_scc1 {name}_l\ns_branch {name}_ret")
    A.label("m_fallback")
    A(f"s_sub_u32 s68, s49, s101\ns_mov_b32 s69, 0\nv_mov_b32 v28, 0xff800000\nv_subrev_u32 v30, {KVB}, v3")
    A.label("m_fb1")
    A(f"buffer_load_dwordx4 {vr(K,4)}, v2, s[32:35], s68 offen sc1\ns_add_u32 s68, s68, 2048\ns_waitcnt vmcnt(0)")
    A(mfma32(SA,K,Q,"0"))
    A("s_nop 15")
    max16(28,SA,False)
    A("s_add_u32 s69, s69, 1\ns_cmp_lt_u32 s69, 64\ns_cbranch_scc1 m_fb1")
    A("v_mov_b32 v29, v28\ns_nop 1\nv_permlane32_swap_b32 v28, v29\nv_max_f32 v28, v28, v29")
    for r in range(16): A(f"v_sub_f32 v{C+r}, 0, v28\nv_mov_b32 v{O+r}, 0")
    A(f"s_sub_u32 s68, s49, s101\ns_mov_b32 s69, 0")
    A.label("m_fb2")
    A(f"buffer_load_dwordx4 {vr(K,4)}, v2, s[32:35], s68 offen sc1\ns_mov_b64 exec, s[52:53]\nbuffer_load_dwordx4 {vr(VA,4)}, v30, s[32:35], s68 offen sc1\nbuffer_load_dwordx4 {vr(VB,4)}, v30, s[32:35], s68 offen offset:512 sc1\ns_mov_b64 exec, -1")
    A("s_add_u32 s68, s68, 2048\ns_waitcnt vmcnt(0)")
    A(mfma32(SA,K,Q,C))
    A("s_nop 15")
    for r in range(16): A(f"v_exp_f32 v{SA+r}, v{SA+r}")
    for d in range(8): A(f"v_cvt_pk_bf16_f32 v{P+d}, v{SA+2*d}, v{SA+2*d+1}")
    A("s_nop 1")
    A(mfma32(O,VA,P,O)); A(mfma32(O,VB,P+4,O))
    A("s_add_u32 s69, s69, 1\ns_cmp_lt_u32 s69, 64\ns_cbranch_scc1 m_fb2")
    A("s_nop 15\nk_last:\ns_branch m_fin")

def main(out):
    hdr=open("cdna_kernels/"+NAME+".s.ref").read().split("\n")
    head=[l for l in hdr if l.startswith(";") and "@launch" not in l]
    T="\n".join(head)+"\n"
    if E("LIST",0)==2: T+=f"; @launch kernel={KN} grid=(256,1,1) block=(512,1,1) lds={LDS}\n"
    if E("LIST",0): T+=f"; @launch kernel={KN} grid=(256,1,1) block=(512,1,1) lds={LDS}\n"
    else: T+=f"; @launch grid=(256,1,1) block=(512,1,1) lds={LDS}\n"
    T+='.amdgcn_target "amdgcn-amd-amdhsa--gfx950"\n.text\n'
    A=Asm(); kern(A)
    for e in hazard_check(A.text()): print(e)
    T+=f".globl {KN}\n.p2align 8\n.type {KN},@function\n"+A.text()
    T+='.section .rodata,"a"\n'+kdesc(KN,256,102)
    open(out,"w").write(T)
if __name__=="__main__":
    main(sys.argv[1] if len(sys.argv)>1 else "cdna_kernels/"+NAME+".s")
```

```python
import sys, struct, os, copy
from asmlib import *
NAME="recurrent_scan__mha_block__glu_gated_reglu__prompt"
KN=NAME+"_kernel"
WS_Q=0; WS_KV=2<<20; WS_H=6<<20; WS_O=13<<20; WS_XN=22<<20; WS_FL=21<<20; WS_T=WS_FL+98304; WS_SIZE=32<<20; WS_ST=24<<20
FL1=WS_FL; FL2=WS_FL+32768; FL3=WS_FL+65536; FL4=WS_FL+524288; FL2=WS_FL+786432
def f2u(f): return struct.unpack("<I",struct.pack("<f",f))[0]
LOG2E=1.4426950408889634
E=lambda k,d: int(os.environ.get(k,str(d)))
STAMP=E("STAMP",0); TOUCH=E("TOUCH",0); G0=E("G0",0); PRIO=E("PRIO",0); NPRE=E("NPRE",3); DGAP=E("DGAP",4)
SPIN=400000
SLEEP=E('SLEEP',2)
CODEPF=E("CODEPF",1); WTOUCH=E("WTOUCH",0); NW0=E("NW0",1); NW1=E("NW1",2); F1D=E("F1D",2); F1P=E("F1P",22); F1C=E("F1C",25); PBURST=E("PBURST",1); U1H=E("U1H",2); UWD=E("UWD",6); TLB=E("TLB",0); OE=E("OE",2); HSN=E("HSN",5); LK=E("LK",1); PG=E("PG",7); EARLY=E("EARLY",1); RSW=E("RSW",1); XBAR=E("XBAR",0); F2G=E("F2G",2); HPRIO=E("HPRIO",0); PROG=E("PROG",1); ROT=E("ROT",1); WOT=E("WOT",1); UT=E("UT",0); UTK=E("UTK",27)
MOFF=90.0
class VM:
    def __init__(s): s.ops=[]
    def add(s,tag,n=1): s.ops+= [tag]*n
    def n_after(s,tag):
        idx=max(i for i,t in enumerate(s.ops) if t==tag)
        return len(s.ops)-1-idx
def weave(A,mf,fill):
    n=len(mf); k=len(fill); j=0
    for i,m in enumerate(mf):
        A(m)
        e=(k*(i+1))//n
        while j<e: A(fill[j]); j+=1
class St:
    def __init__(s): s.pend=None
    def mark(s,A,i):
        if STAMP:
            A(f"s_memtime s[96:97]\ns_waitcnt lgkmcnt(0)\nv_writelane_b32 v250, s96, {i}")
st=St()
WB=65536; GB=[65536,0]; KVB=131072; KVS=8192; VSC=114688; LDS=163840
Q,K,VA,VB,P,C,SA,SB,O=4,8,12,16,20,32,48,64,80
FR=[96,112]; GACC=128; DACC=208
vG,vU,vD=192,193,194; aW,aH,aD=198,202,204; aK=206; XR=224; aX=232; vX=196
WS_XS=WS_FL+131072; WS_CS=WS_FL+262144
CSC=VSC+8192; SSC=VSC+12288
SLOT=[0,32768,131072,65536,98304]
spins=[]
ONLY7="\ns_cmp_eq_u32 s40, 7\ns_cselect_b32 s56, s56, 0x7ff00000"
def poll_check(A,name,vaddr,vdst,soff,wait,only7=True):
    if only7: A(f"s_cmp_eq_u32 s40, 7\ns_cbranch_scc0 {name}_ret")
    A(f"s_waitcnt vmcnt({wait})\nv_cmp_ne_u32 vcc, s58, v{vdst}\ns_nop 4\ns_cbranch_vccnz {name}_spin\n{name}_ret:")
    spins.append((name,vaddr,vdst,soff))
def flag_store(A,name,wave,soff_code,va,vb,cond=None):
    A(soff_code)
    if wave is not None: A(f"s_cmp_eq_u32 s40, {wave}\ns_cselect_b32 s59, s59, 0x7ffffff0")
    if cond: A(f"{cond}\ns_cselect_b32 s59, s59, 0x7ffffff0")
    A(f"v_mov_b32 v{va}, s58\nv_mov_b32 v{vb}, 0\ns_mov_b64 exec, 1\nbuffer_store_dword v{va}, v{vb}, s[32:35], s59 offen sc1\ns_mov_b64 exec, -1")

def kern(A):
    vm=VM()
    A.label(KN)
    A("s_cmp_ge_u32 s2, 256\ns_cbranch_scc1 k_end")
    if STAMP or E("DBG",0) or E("PAD",0): A("s_memrealtime s[92:93]\ns_memtime s[94:95]")
    A("s_load_dwordx4 s[4:7], s[0:1], 0\ns_load_dwordx2 s[14:15], s[0:1], 72\ns_load_dwordx4 s[8:11], s[0:1], 32")
    A("s_load_dwordx4 s[72:75], s[0:1], 48\ns_load_dwordx2 s[12:13], s[0:1], 16")
    if CODEPF:
        A("s_getpc_b64 s[70:71]\nk_pc:\ns_and_b32 s68, s2, 0xf8\nv_add_u32 v26, s68, v0\nv_lshlrev_b32 v26, 7, v26\nv_min_u32 v26, k_last-k_pc, v26\nv_cmp_gt_u32 vcc, 8, v0\ns_and_saveexec_b64 s[68:69], vcc\ns_cbranch_execz k_nopf\nglobal_load_dword v26, v26, s[70:71]\nk_nopf:\ns_mov_b64 exec, -1")
    A("v_lshrrev_b32 v1, 6, v0\nv_and_b32 v0, 63, v0\nv_readfirstlane_b32 s40, v1")
    A("s_and_b32 s3, s2, 7\ns_lshr_b32 s59, s2, 3\ns_and_b32 s100, s59, 7")
    A("s_and_b32 s98, s3, 3\ns_lshl_b32 s98, s98, 3\ns_add_u32 s98, s98, s100")
    A("s_lshr_b32 s99, s3, 2\ns_lshl_b32 s99, s99, 2\ns_lshr_b32 s68, s59, 3\ns_add_u32 s99, s99, s68")
    A("s_add_u32 s100, s100, s99")
    A("v_lshrrev_b32 v20, 3, v0\nv_and_b32 v21, 7, v0\nv_lshrrev_b32 v1, 5, v0\ns_and_b32 s70, s40, 3\ns_lshl_b32 s101, s70, 10")
    A(f"v_lshrrev_b32 v22, 4, v0\nv_xor_b32 v22, v22, v21\nv_lshlrev_b32 v22, 4, v22\nv_lshl_add_u32 v{vX}, v20, 10, v22\ns_lshl_b32 s68, s70, 14\nv_add_u32 v{vX}, s68, v{vX}\nv_xor_b32 v{vX+1}, 64, v{vX}\nv_add_u32 v{vX+1}, 0x2000, v{vX+1}")
    A("v_bfe_u32 v31, v0, 4, 1\nv_lshlrev_b32 v31, 2, v31\nv_xor_b32 v31, v31, v21\nv_lshlrev_b32 v31, 4, v31")
    A("s_lshl_b32 s70, s70, 3\nv_add_u32 v29, s70, v20\nv_mul_u32_u24 v30, 3072, v29\nv_add_u32 v30, v30, v31\ns_lshl_b32 s68, s99, 7\nv_add_u32 v30, s68, v30")
    A("s_and_b32 s89, s99, 1\ns_lshl_b32 s89, s89, 2\ns_xor_b32 s89, s89, s40" if RSW else "s_mov_b32 s89, s40")
    if WTOUCH: A("v_lshlrev_b32 v24, 7, v0\ns_lshl_b32 s59, s2, 3\ns_add_u32 s59, s59, s40\ns_mul_i32 s59, s59, 768")
    A("v_and_b32 v22, 31, v0\ns_lshl_b32 s68, s89, 13\nv_lshlrev_b32 v11, 4, v21\nv_lshl_add_u32 v11, v20, 10, v11\nv_add_u32 v11, s68, v11\ns_lshl_b32 s57, s98, 16")
    A("s_waitcnt lgkmcnt(0)")
    srd(A,16,4,2048*1024); srd(A,20,6,512*3072)
    if WTOUCH: A("s_mov_b64 exec, 0x3f\nbuffer_load_dword v25, v24, s[20:23], s59 offen\ns_mov_b64 exec, -1")
    if TLB:
        A("s_cmp_lt_u32 s40, 6\ns_cbranch_scc1 k_notlb\ns_cmp_eq_u32 s40, 7\ns_cbranch_scc1 k_tlb7")
        A("v_lshlrev_b32 v24, 21, v0\ns_mov_b64 exec, 0xfff\nglobal_load_dword v26, v24, s[14:15] sc1\ns_branch k_tlbd")
        A.label("k_tlb7")
        A("v_lshlrev_b32 v24, 20, v0\ns_mov_b64 exec, 3\nglobal_load_dword v26, v24, s[8:9]\nglobal_load_dword v26, v24, s[10:11]\nglobal_load_dword v26, v24, s[72:73]\nglobal_load_dword v26, v24, s[74:75]\ns_mov_b64 exec, 1\nglobal_load_dword v26, v24, s[12:13]")
        A.label("k_tlbd")
        A("s_mov_b64 exec, -1")
        A.label("k_notlb")
    X=32
    vm=VM()
    for i in range(8):
        A(f"s_add_u32 s88, s100, {i}\ns_and_b32 s88, s88, 7\ns_lshl_b32 s88, s88, 7\ns_add_u32 s88, s88, s57\nbuffer_load_dwordx4 {vr(X+4*i,4)}, v11, s[16:19], s88 offen"); vm.add(("x",i))
    if XBAR==1: A("s_barrier")
    def dmaW(vm,d,his):
        L=[]; b=WB+(d%4)*24576
        for k,hi in enumerate(his):
            for c in range(3):
                vm.add(("W",d))
                if c==0: pre=f"s_add_u32 s88, s100, {d}\ns_and_b32 s88, s88, 7\ns_mul_i32 s59, s88, {64*3072}\n"+("s_add_u32 s59, s59, s91\n" if hi is None else (f"s_add_u32 s59, s59, {32*3072}\n" if hi else ""))
                else: pre="s_add_u32 s59, s59, 1024\n"
                m=f"s80, {b+c*8192}" if hi is None else f"s101, {b+c*8192+hi*4096}"
                L.append(f"s_add_u32 m0, {m}\n"+pre+"buffer_load_dwordx4 v30, s[20:23], s59 offen lds")
        return L
    srd(A,32,14,WS_SIZE)
    A(f"s_add_u32 s70, s14, {WS_T}\ns_addc_u32 s71, s15, 0\ns_load_dword s58, s[70:71], 0")
    A("s_and_b32 s41, s40, 1\ns_bfe_u32 s42, s40, 0x10001")
    A("v_lshrrev_b32 v4, 4, v0\ns_lshl_b32 s68, s41, 2\nv_xor_b32 v4, s68, v4\nv_xor_b32 v4, v4, v21\nv_lshlrev_b32 v4, 4, v4\nv_lshl_add_u32 v4, v20, 7, v4\ns_lshl_b32 s68, s89, 10\nv_add_u32 v4, s68, v4")
    A("v_mov_b32 v12, 0\nv_mov_b32 v13, 0\nv_mov_b32 v14, 0\nv_mov_b32 v15, 0")
    A("v_lshlrev_b32 v2, 4, v0\nv_mov_b32 v19, 0x3f803f80")
    A("s_lshr_b32 s48, s40, 2")
    A("s_lshl_b32 s80, s48, 12\ns_add_u32 s80, s80, s101")
    def setup_main():
        A=Asm()
        A("v_bfe_u32 v23, v0, 1, 3\nv_xor_b32 v23, v23, v1\nv_lshlrev_b32 v23, 4, v23\nv_lshl_add_u32 v23, v22, 7, v23")
        A("v_bfe_u32 v28, v0, 2, 2\nv_lshlrev_b32 v28, 7, v28\nv_and_b32 v24, 3, v0\nv_lshl_add_u32 v28, v24, 3, v28")
        A("v_bfe_u32 v24, v0, 3, 1\nv_xor_b32 v24, s42, v24\nv_lshl_add_u32 v28, v24, 6, v28\nv_bfe_u32 v27, v0, 4, 1\nv_lshl_add_u32 v28, v27, 5, v28")
        srd(A,24,8,512*3584); srd(A,28,10,512*3584); srd(A,36,14,WS_SIZE); srd(A,76,72,1792*1024); srd(A,60,12,512*1024); srd(A,64,74,2048*1024)
        A("s_bfe_u32 s59, s2, 0x20003\ns_lshl_b32 s43, s3, 2\ns_add_u32 s43, s43, s59")
        A("s_lshr_b32 s44, s2, 5")
        A("s_lshl_b32 s45, s44, 3\ns_add_u32 s45, s45, s40")
        A("s_lshr_b32 s46, s3, 1\ns_lshl_b32 s46, s46, 2\ns_add_u32 s46, s46, s59")
        A("s_and_b32 s47, s3, 1\ns_mul_i32 s47, s47, 7\ns_add_u32 s47, s47, s44")
        A(f"s_lshl_b32 s49, s43, 17\ns_add_u32 s49, s49, s101\ns_add_u32 s49, s49, {WS_KV}")
        A(f"s_lshl_b32 s50, s46, 17\ns_add_u32 s50, s50, {WS_XN}")
        A(f"v_mul_u32_u24 v{vG}, 3584, v29\nv_add_u32 v{vG}, v{vG}, v31\ns_lshl_b32 s68, s47, 8\nv_add_u32 v{vG}, s68, v{vG}\nv_xor_b32 v{vU}, 32, v{vG}")
        A(f"s_lshr_b32 s68, s101, 5\nv_add_u32 v29, s68, v20\nv_lshl_add_u32 v{vD}, v29, 10, v31\ns_lshl_b32 s68, s44, 7\nv_add_u32 v{vD}, s68, v{vD}")
        A(f"s_mul_i32 s51, s43, {224*1024}\ns_lshl_b32 s68, s101, 2\ns_add_u32 s51, s51, s68\ns_add_u32 s51, s51, {WS_H}")
        A(f"v_and_b32 v3, 15, v0\nv_lshlrev_b32 v3, 4, v3\nv_lshl_add_u32 v3, v1, 8, v3\nv_add_u32 v3, {KVB+1024}, v3\nv_add_u32 v{aK}, {KVB}, v2")
        A("s_mov_b32 s52, 0xffff\ns_mov_b32 s53, 0xffff")
        A(f"s_lshl_b32 s68, s41, 13\nv_add_u32 v{aX+4}, s68, v23")
        for kq in range(1,4): A(f"v_xor_b32 v{aX+4+kq}, {32*kq}, v{aX+4}")
        for kq in range(4): A(f"v_add_u32 v{aX+kq}, 0x10000, v{aX+4+kq}")
        A(f"v_lshl_add_u32 v{aW+2}, v27, 13, v28\nv_lshl_add_u32 v{aW+2}, v1, 10, v{aW+2}\ns_lshl_b32 s68, s48, 14\ns_add_u32 s68, s68, 16384\nv_add_u32 v{aW+2}, s68, v{aW+2}")
        A(f"v_xor_b32 v{aW+3}, 32, v{aW+2}\nv_add_u32 v{aW}, 0x10000, v{aW+2}\nv_add_u32 v{aW+1}, 0x10000, v{aW+3}")
        A(f"s_lshl_b32 s68, s41, 14\ns_lshl_b32 s70, s48, 13\ns_add_u32 s68, s68, s70\nv_add_u32 v{aH+1}, s68, v2\nv_add_u32 v{aH}, 0x10000, v{aH+1}")
        A(f"v_lshl_add_u32 v{aD+1}, v1, 9, v28\ns_lshl_b32 s68, s48, 14\ns_add_u32 s68, s68, 32768\nv_add_u32 v{aD+1}, s68, v{aD+1}\nv_add_u32 v{aD}, 0x10000, v{aD+1}")
        A(f"s_lshl_b32 s54, s46, 2\ns_lshl_b32 s68, s41, 1\ns_add_u32 s54, s54, s68\ns_mul_i32 s54, s54, 112\ns_lshl_b32 s68, s47, 3\ns_add_u32 s54, s54, s68\ns_and_b32 s68, s40, 6\ns_add_u32 s54, s54, s68\ns_lshl_b32 s54, s54, 10\ns_add_u32 s54, s54, {WS_H}\ns_add_u32 s55, s54, {112*1024}")
        A(f"s_lshl_b32 s81, s48, 12\ns_add_u32 s81, s81, s49\ns_lshl_b32 s82, s48, 16\ns_add_u32 s82, s82, s50\ns_mul_i32 s83, s48, {32*3584}\ns_lshl_b32 s84, s48, 17\ns_mul_i32 s85, s48, {112*1024}\ns_add_u32 s85, s85, s51")
        A("s_lshr_b32 s86, s46, 1\ns_mul_i32 s68, s43, 37\ns_lshr_b32 s68, s68, 8\ns_mul_i32 s68, s68, 7\ns_sub_u32 s87, s43, s68")
        if not ROT: A("s_mov_b32 s86, 0\ns_mov_b32 s87, 0")
        return [x.strip() for x in A.lines]
    A(f"s_mul_i32 s91, s48, {32*3072}")
    for d in range(NW0):
        for l in dmaW(vm,d,[None]): A(l)
    SM=setup_main()
    for l in SM[:13]: A(l)
    SM=SM[13:]
    SM=SM[:24]+[l.replace("s59","s75").replace("s68","s74").replace("s70","s73") for l in SM[24:]]
    A(f"s_lshl_b32 s68, s41, 12\nv_add_u32 v5, s68, v23")
    for kq in range(1,4): A(f"v_xor_b32 v{5+kq}, {32*kq}, v5")
    A(f"v_lshl_add_u32 v9, v1, 10, v28\nv_add_u32 v9, {WB}, v9\nv_add_u32 v10, {2*24576}, v9")
    rotU=lambda n: f"s_add_u32 s88, s86, {n}\ns_and_b32 s88, s88, 7\n"
    rotD=lambda n: f"s_add_u32 s88, s87, {n}\ns_sub_u32 s89, s88, 7\ns_cmp_ge_u32 s88, 7\ns_cselect_b32 s88, s89, s88\n"
    def dmaKV(vm,it,hi=None):
        vm.add(("KV",it))
        if hi is None: return [f"s_add_u32 m0, s80, {KVB+(it%3)*KVS}\ns_add_u32 s59, s81, {it*8192}\nbuffer_load_dwordx4 v2, s[32:35], s59 offen sc1 lds"]
        return [f"s_add_u32 m0, s101, {KVB+(it%3)*KVS+hi*4096}\ns_add_u32 s59, s49, {it*8192+hi*4096}\nbuffer_load_dwordx4 v2, s[32:35], s59 offen sc1 lds"]
    def dmaUX(vm,n,hi=None):
        b=GB[n%2]; vm.add(("U",n),2)
        m,s,o1,o2=("s80","s82",0,0) if hi is None else ("s101","s50",hi*8192,hi*65536)
        return [f"s_lshl_b32 s59, {m}, 1\ns_add_u32 m0, s59, {b+o1}\n"+rotU(n)+f"s_lshl_b32 s59, s88, 7\ns_add_u32 s59, s59, {s}\n"+(f"s_add_u32 s59, s59, {o2}\n" if o2 else "")+f"buffer_load_dwordx4 v{vX}, s[36:39], s59 offen sc1 lds",
                f"s_add_u32 m0, m0, 1024\ns_nop 0\nbuffer_load_dwordx4 v{vX+1}, s[36:39], s59 offen sc1 lds"]
    def dmaUW(vm,n,hi=None):
        b=GB[n%2]; L=[]; vm.add(("U",n),4)
        for c in range(4):
            if c==0: so=rotU(n)+f"s_mul_i32 s59, s88, {64*3584}\n"+("s_add_u32 s59, s59, s83" if hi is None else f"s_add_u32 s59, s59, {hi*32*3584}")
            else: so="s_add_u32 s59, s59, 128" if c==2 else "s_nop 0"
            m=f"s80, {b+16384+c*8192}" if hi is None else f"s101, {b+16384+c*8192+hi*4096}"
            L.append(f"s_add_u32 m0, {m}\n{so}\nbuffer_load_dwordx4 v{vG+c%2}, s[{24+4*(c%2)}:{27+4*(c%2)}], s59 offen lds")
        return L
    def dmaU(vm,n,hi=None): return dmaUX(vm,n,hi)+dmaUW(vm,n,hi)
    def dmaRows(vm,tag,dst,pre,srdn):
        vm.add(tag,4)
        return [(f"s_lshl_b32 s90, s80, 2\n" if i==0 else "")+f"s_add_u32 m0, s90, {dst+i*1024}\n"+(pre if i==0 else "s_add_u32 s59, s59, 8192\n")+f"buffer_load_dwordx4 v{vD}, s[{srdn}:{srdn+3}], s59 offen lds" for i in range(4)]
    def dmaDW(vm,n): return dmaRows(vm,("D",n),GB[n%2]+32768,rotD(n)+"s_lshl_b32 s59, s88, 18\ns_add_u32 s59, s59, s84\n",76)
    def dmaWO(vm): return dmaRows(vm,"wo",GB[1],"s_mov_b32 s59, s84\n",60)+dmaRows(vm,"wo",GB[1]+32768,f"s_add_u32 s59, s84, {256*1024}\n",60)
    def dmaDH(vm,n):
        b=GB[n%2]; vm.add(("D",n),4)
        return [(f"s_lshl_b32 s59, s80, 2\ns_add_u32 m0, s59, {b}\n"+rotD(n)+"s_lshl_b32 s59, s88, 14\ns_add_u32 s59, s59, s85\n" if i==0 else "")+f"buffer_load_dwordx4 v2, s[32:35], s59 offen offset:{1024*i} sc1 lds" for i in range(4)]
    st.mark(A,0)
    for i in range(8):
        if i%2==0: A(f"s_waitcnt vmcnt({vm.n_after(('x',i+1))})")
        for d in range(4): A(f"v_dot2c_f32_bf16 v{12+d%2}, v{X+4*i+d}, v19\nv_dot2c_f32_bf16 v{14+d%2}, v{X+4*i+d}, v{X+4*i+d}")
    st.mark(A,1)
    later=[]
    for d in range(NW0,NW1): later+=dmaW(vm,d,[None])
    A("s_nop 2\nv_add_f32 v12, v12, v13\nv_add_f32 v13, v14, v15\ns_nop 1")
    for mod in ("quad_perm:[1,0,3,2]","quad_perm:[2,3,0,1]","row_half_mirror"):
        A(f"v_add_f32_dpp v12, v12, v12 {mod} row_mask:0xf bank_mask:0xf\nv_add_f32_dpp v13, v13, v13 {mod} row_mask:0xf bank_mask:0xf\ns_nop 0")
    A(f"v_mul_f32 v12, {f2u(1/512):#x}, v12\nv_mul_f32 v13, {f2u(1/512):#x}, v13")
    A("v_fma_f32 v13, -v12, v12, v13\nv_max_f32 v13, 0, v13")
    A("v_cvt_pk_bf16_f32 v13, v13, v13\nv_and_b32 v13, 0xffff0000, v13")
    A(f"v_add_f32 v13, {f2u(1e-5):#x}, v13")
    A("v_cvt_pk_bf16_f32 v13, v13, v13\nv_and_b32 v13, 0xffff0000, v13\nv_sqrt_f32 v13, v13")
    A("v_cvt_pk_bf16_f32 v12, v12, v12\nv_cvt_pk_bf16_f32 v13, v13, v13\nv_and_b32 v13, 0xffff0000, v13\nv_rcp_f32 v14, v13\nv_and_b32 v12, 0xffff0000, v12")
    A("v_mov_b32 v15, v14\nv_mul_f32 v16, -v12, v14\nv_mov_b32 v17, v16")
    for i in range(8):
        for d in range(0,4,2):
            r=X+4*i+d
            A(f"v_lshlrev_b32 v68, 16, v{r}\nv_and_b32 v69, 0xffff0000, v{r}\nv_lshlrev_b32 v70, 16, v{r+1}\nv_and_b32 v71, 0xffff0000, v{r+1}")
            A(f"v_pk_fma_f32 v[68:69], v[68:69], v[14:15], v[16:17]\nv_pk_fma_f32 v[70:71], v[70:71], v[14:15], v[16:17]\nv_cvt_pk_bf16_f32 v{r}, v68, v69\nv_cvt_pk_bf16_f32 v{r+1}, v70, v71")
        A(f"ds_write_b128 v4, {vr(X+4*i,4)} offset:{8192*i}")
    for l in later: A(l)
    A(f"s_waitcnt vmcnt({vm.n_after(('W',0))})\ns_cmp_ge_u32 s40, 4\ns_cbranch_scc1 p1_nop")
    A(f"v_mov_b32 v64, -1\nv_mov_b32 v65, -1\nv_mov_b32 v66, -1\nv_mov_b32 v67, -1\ns_lshl_b32 s68, s98, 1\ns_add_u32 s68, s68, s41\ns_lshl_b32 s59, s99, 1\ns_add_u32 s59, s59, s42\ns_lshl_b32 s69, s68, 4\ns_add_u32 s69, s69, s59\ns_lshl_b32 s69, s69, 11\ns_add_u32 s69, s69, {WS_O}")
    A("buffer_store_dwordx4 v[64:67], v2, s[32:35], s69 offen sc1\nbuffer_store_dwordx4 v[64:67], v2, s[32:35], s69 offen offset:1024 sc1")
    A.label("p1_nop")
    A(f"s_waitcnt lgkmcnt(0)\ns_barrier\ns_add_u32 s58, s58, 1")
    st.mark(A,2)
    vmh=copy.deepcopy(vm); vmc=vm; vmc.add("xst",2)
    A("s_cmp_ge_u32 s40, 4\ns_cbranch_scc1 p1_help\ns_setprio 1")
    FS=[64,80,32]; ACC=96
    def reads(F,kp):
        d=kp//4; ks=kp%4; sl=d%4
        r=[f"ds_read_b128 {vr(F,4)}, v{5+ks} offset:{d*8192}"]
        for c in range(3):
            for i in range(2): r.append(f"ds_read_b64_tr_b16 {vr(F+4+4*c+2*i,2)}, v{9+sl//2} offset:{(sl%2)*24576+c*8192+(16*ks+4*i)*128}")
        return r
    A("s_lshl_b32 s68, s101, 1\nv_add_u32 v18, s68, v2\nds_read_b128 v[48:51], v18\nds_read_b128 v[52:55], v18 offset:1024")
    for l in reads(FS[0],0)+reads(FS[1],1): A(l)
    A(f"s_and_b32 s59, s100, 7\ns_lshl_b32 s59, s59, 7\ns_add_u32 s59, s59, s57\ns_add_u32 s59, s59, {WS_XN}")
    pre=[f"buffer_store_dwordx4 v[48:51], v{vX}, s[32:35], s59 offen sc1",
         f"buffer_store_dwordx4 v[52:55], v{vX+1}, s[32:35], s59 offen sc1",
         "s_lshl_b32 s68, s98, 1\ns_add_u32 s68, s68, s41\ns_lshl_b32 s59, s99, 1\ns_add_u32 s59, s59, s42\ns_lshl_b32 s59, s59, 7\ns_add_u32 s59, s59, s68",
         f"s_lshl_b32 s70, s59, 10\ns_add_u32 s71, s70, {64*1024}\ns_lshl_b32 s68, s59, 11\ns_add_u32 s68, s68, {WS_KV}\ns_add_u32 s69, s68, {64*2048}",
         f"v_and_b32 v20, 31, v0\nv_lshlrev_b32 v20, 6, v20\nv_lshl_add_u32 v20, v1, 3, v20\ns_lshl_b32 s72, s40, 11\ns_add_u32 s72, s72, {VSC}\nv_add_u32 v20, s72, v20",
         "v_lshlrev_b32 v22, 10, v1\nv_lshl_add_u32 v22, v27, 8, v22\nv_bfe_u32 v23, v0, 2, 2\nv_lshl_add_u32 v22, v23, 6, v22",
         f"v_and_b32 v23, 3, v0\nv_lshl_add_u32 v22, v23, 3, v22\nv_add_u32 v22, s72, v22\nv_mov_b32 v24, {f2u(0.25*LOG2E):#x}\nv_mov_b32 v25, v24"]
    pre=pre[:2]+["\n".join(SM[i:i+5]) for i in range(0,len(SM),5)]+pre[2:]
    assert len(pre)<=31, len(pre)
    for kp in range(32):
        F=FS[kp%3]; d=kp//4
        fill=[]
        if kp==4*F1D+2:
            A(f"s_waitcnt vmcnt(0) lgkmcnt({7 if (LK and NW1<=2 and d<5) else 0})\ns_barrier")
            fill.append("FLAG")
        elif kp%4==2 and (U1H==1 or kp<30):
            w=f"vmcnt({vmc.n_after(('W',d+1))}) " if ('W',d+1) in vmc.ops else ""
            A(f"s_waitcnt {w}lgkmcnt({7 if (LK and NW1<=2 and d<5) else 0})\ns_barrier")
        else: A(f"s_waitcnt lgkmcnt({7 if kp<31 else 0})")
        if kp%4==2: st.mark(A,32+d)
        fl="FLAG" in fill; fill=[]
        if kp<30: fill+=reads(FS[(kp+2)%3],kp+2)
        if pre:
            fill.append(pre.pop(0))
            if kp<2: vmc.add("xst")
        weave(A,[mfma32(ACC+16*c,F+4+4*c,F,(ACC+16*c) if kp else "0") for c in (2,1,0)],fill)
        if fl: flag_store(A,"p1_f1",0,f"s_lshl_b32 s59, s98, 10\ns_lshl_b32 s88, s99, 7\ns_add_u32 s59, s59, s88\ns_add_u32 s59, s59, {FL1}",60,61)
    st.mark(A,3)
    V=ACC+32; Kk=ACC+16
    A("s_nop 9")
    for d in range(8): A(f"v_cvt_pk_bf16_f32 v{V+d}, v{V+2*d}, v{V+2*d+1}")
    for q in range(4): A(f"ds_write_b64 v20, {vr(V+2*q,2)} offset:{16*q}")
    for d in range(8): A(f"v_cvt_pk_bf16_f32 v{Kk+d}, v{Kk+2*d}, v{Kk+2*d+1}")
    A("s_waitcnt lgkmcnt(0)")
    for hh in range(2):
        for ii in range(2): A(f"ds_read_b64_tr_b16 {vr(V+4*hh+2*ii,2)}, v22 offset:{32*hh+512*ii}")
    A(f"buffer_store_dwordx4 {vr(Kk,4)}, v2, s[32:35], s68 offen sc1\nbuffer_store_dwordx4 {vr(Kk+4,4)}, v2, s[32:35], s69 offen sc1")
    A("s_waitcnt lgkmcnt(0)")
    A(f"buffer_store_dwordx4 {vr(V,4)}, v2, s[32:35], s68 offen offset:1024 sc1\nbuffer_store_dwordx4 {vr(V+4,4)}, v2, s[32:35], s69 offen offset:1024 sc1")
    for r in range(0,16,2): A(f"v_pk_mul_f32 {vr(ACC+r,2)}, {vr(ACC+r,2)}, v[24:25]")
    for d in range(8): A(f"v_cvt_pk_bf16_f32 v{ACC+d}, v{ACC+2*d}, v{ACC+2*d+1}")
    A(f"buffer_store_dwordx4 {vr(ACC,4)}, v2, s[32:35], s70 offen sc1\nbuffer_store_dwordx4 {vr(ACC+4,4)}, v2, s[32:35], s71 offen sc1")
    st.mark(A,49)
    A("s_setprio 0\ns_branch p1_join")
    A.label("p1_help")
    hs=list(SM); hper=(len(hs)+HSN-1)//HSN
    nxt=NW1
    if nxt<4:
        for l in dmaW(vmh,nxt,[0,1]): A(l)
        nxt+=1
    for d in range(8 if U1H==1 else 7):
        for l in hs[:hper]: A(l)
        hs=hs[hper:]
        if d==HSN-1:
            A(f"v_and_b32 v22, 15, v0\nv_lshlrev_b32 v22, 7, v22\ns_lshl_b32 s56, s46, 11\ns_add_u32 s56, s56, {FL1}")
            A("s_cmp_eq_u32 s44, 7\ns_cselect_b32 s26, 0, s26\ns_cselect_b32 s30, 0, s30\ns_cselect_b32 s38, 0, s38")
        st.mark(A,40+d)
        if d<7: A(f"s_waitcnt vmcnt({vmh.n_after(('W',d+1))})")
        st.mark(A,32+d)
        A("s_barrier")
        if nxt<8:
            assert nxt<=d+4
            for l in dmaW(vmh,nxt,[0,1]): A(l)
            nxt+=1
        if EARLY:
            if d==4: A("buffer_load_dword v23, v22, s[32:35], s56 offen sc1"); vmh.add("f1")
            if d==5:
                for l in dmaUW(vmh,0,0)+dmaUW(vmh,0,1): A(l)
            if d==6:
                poll_check(A,"p1_c1",22,23,"s56",8,False)
                for hi in range(2):
                    for l in dmaUX(vmh,0,hi): A(l)
        else:
            if d==5:
                for l in dmaUW(vmh,0,0): A(l)
            if d==6:
                for l in dmaUW(vmh,0,1): A(l)
                A("buffer_load_dword v23, v22, s[32:35], s56 offen sc1"); vmh.add("f1")
    if not EARLY:
        poll_check(A,"p1_c1",22,23,"s56",0,False)
        st.mark(A,48)
        for hi in range(2):
            for l in dmaUX(vmh,0,hi): A(l)
    if U1H:
        for hi in range(2):
            for l in dmaU(vmh,1,hi): A(l)
    st.mark(A,49)
    A(f"s_waitcnt vmcnt({12 if U1H else 0})")
    st.mark(A,55)
    A.label("p1_join")
    A("s_cmp_eq_u32 s44, 7\ns_cselect_b32 s26, 0, s26\ns_cselect_b32 s30, 0, s30\ns_cselect_b32 s38, 0, s38")
    for i in range(8): A(f"v_mov_b32 v{VA+i}, 0")
    A("s_mov_b32 exec_lo, 0x110000\ns_mov_b32 exec_hi, 0x110000")
    for i in range(8): A(f"v_mov_b32 v{VA+i}, 0x3f803f80")
    A("s_mov_b64 exec, -1")
    A(f"v_lshlrev_b32 v30, 7, v0\ns_lshr_b32 s56, s43, 1\ns_lshl_b32 s56, s56, 13\ns_add_u32 s56, s56, {FL2}"+ONLY7)
    st.mark(A,4)
    vm=VM(); vm.add(("U",1)); vm.add(("U",0))
    if F2G<0: vm=VM(); vm.add(("U",0)); vm.add(("U",1))
    def f2flag():
        if F2G<0: A("s_cmp_ge_u32 s40, 4\ns_cbranch_scc1 j_nw\ns_waitcnt vmcnt(0)\nj_nw:")
        else: A(f"s_waitcnt vmcnt({vm.n_after(('U',0))})")
        flag_store(A,"p1_f2",None,f"s_lshl_b32 s59, s99, 1\ns_add_u32 s59, s59, s42\ns_lshl_b32 s59, s59, 6\ns_lshl_b32 s68, s98, 1\ns_add_u32 s59, s59, s68\ns_add_u32 s59, s59, s41\ns_lshl_b32 s59, s59, 7\ns_add_u32 s59, s59, {FL2}",28,29,"s_cmp_lt_u32 s40, 4"); vm.add("fs")
        st.mark(A,57)
    if NPRE==1 or F2G<0: f2flag()
    kv=lambda t: ((t//4)%3)*KVS+(t%4)*2048
    def up_reads(g):
        n,ks=g//4,g%4; F=FR[g%2]; b=n%2
        L=[f"ds_read_b128 {vr(F+8+4*t,4)}, v{aX+4*b+ks} offset:{t*4096}" for t in range(2)]
        for jj in range(2):
            for i in range(2): L.append(f"ds_read_b64_tr_b16 {vr(F+4*jj+2*i,2)}, v{aW+2*b+jj} offset:{(16*ks+4*i)*128}")
        return L
    def up_mf(g):
        F=FR[g%2]
        return [mfma32(GACC+16*(2*t+jj),F+4*jj,F+8+4*t,(GACC+16*(2*t+jj)) if g else "0") for t in range(2) for jj in range(2)]
    def dn_reads(g):
        n,u=g//4,g%4; F=FR[g%2]; b=n%2; L=[]
        for k in range(2):
            ks=2*u+k
            L.append(f"ds_read_b128 {vr(F+8+4*k,4)}, v{aH+b} offset:{ks*1024}")
            for i in range(2): L.append(f"ds_read_b64_tr_b16 {vr(F+4*k+2*i,2)}, v{aD+b} offset:{ks*2048+i*1024}")
        return L
    def dn_mf(g):
        F=FR[g%2]
        return [mfma32(DACC,F+4*k,F+8+4*k,DACC if (g or k) else "0") for k in range(2)]
    def up_epi(ti):
        acc=GACC+16*ti; t,jj=ti//2,ti%2
        L=[f"v_max_f32 v{acc+r}, 0, v{acc+r}" for r in range(8)]+[f"v_mul_f32 v{acc+r}, v{acc+r}, v{acc+8+r}" for r in range(8)]
        L+=[f"v_cvt_pk_bf16_f32 v{acc+d}, v{acc+2*d}, v{acc+2*d+1}" for d in range(4)]
        L.append(f"buffer_store_dwordx4 {vr(acc,4)}, v2, s[36:39], s{54+t} offen offset:{1024*jj} sc1")
        return L
    for n in range(NPRE):
        if n==NPRE-1:
            if n==0: A("buffer_load_dword v31, v30, s[32:35], s56 offen sc1"); vm.add("f2")
            st.mark(A,56)
            poll_check(A,"m_c2",30,31,"s56",vm.n_after("f2"))
        A((f"s_waitcnt vmcnt({vm.n_after(('U',n))}) lgkmcnt(0)" if n else "s_waitcnt lgkmcnt(0)")+"\ns_barrier")
        if n==2: st.mark(A,7)
        st.mark(A,50+n)
        if n==NPRE-1:
            A(f"s_lshl_b32 s59, s43, 6\ns_add_u32 s59, s59, s45\ns_lshl_b32 s59, s59, 10\nbuffer_load_dwordx4 {vr(Q,4)}, v2, s[32:35], s59 offen sc1"); vm.add("q")
            for l in dmaKV(vm,0)+dmaKV(vm,1): A(l)
        dml=dmaU(VM(),n+1) if (n or not U1H) else []
        for u in range(4):
            g=4*n+u
            if u>0: A("s_waitcnt lgkmcnt(0)")
            fill=up_reads(g)
            if g==PG and NPRE>1: fill.append("buffer_load_dword v31, v30, s[32:35], s56 offen sc1"); vm.add("f2")
            fill+=dml[:3]; vm.add(("U",n+1),len(dml[:3])); dml=dml[3:]
            if g>0: weave(A,up_mf(g-1),fill)
            else:
                for l in fill: A(l)
            if g==F2G and NPRE>1: f2flag()
    st.mark(A,5)
    A(f"s_waitcnt vmcnt({vm.n_after(('KV',0))})\ns_barrier")
    st.mark(A,6)
    A(f"ds_read_b128 {vr(K,4)}, v{aK}")
    A(f"s_mov_b64 exec, s[52:53]\nds_read_b128 {vr(VA,4)}, v3\ns_mov_b64 exec, -1")
    A("s_waitcnt lgkmcnt(1)")
    A(mfma32(SA,K,Q,"0"))
    for r in range(16): A(f"v_mov_b32 v{O+r}, 0")
    def max16(dst,S,first):
        if first:
            A(f"v_max3_f32 v{dst}, v{S}, v{S+1}, v{S+2}\nv_max_f32 v{dst}, v{dst}, v{S+3}")
            s0=4
        else: s0=0
        for r in range(s0,16,2): A(f"v_max3_f32 v{dst}, v{dst}, v{S+r}, v{S+r+1}")
    max16(28,SA,True)
    A(f"v_add_f32 v28, {f2u(MOFF):#x}, v28")
    A(f"v_mov_b32 v29, v28\nv_mov_b32 v{P+4}, 0\nv_mov_b32 v{P+5}, 0\nv_permlane32_swap_b32 v28, v29\nv_max_f32 v28, v28, v29")
    for r in range(16): A(f"v_sub_f32 v{C+r}, 0, v28")
    A(f"v_mov_b32 v{P+6}, 0\nv_mov_b32 v{P+7}, 0")
    A(mfma32(SA,K,Q,C))
    A(f"ds_read_b128 {vr(K,4)}, v{aK} offset:2048\ns_nop 5")
    if PRIO: A("s_setprio 1")
    UP0=-NPRE; D0=UP0+8+DGAP
    for it in range(16):
        needs=[]
        if it+1<16: needs.append(vm.n_after(("KV",it+1)))
        n=it-UP0; dn=it-D0
        if 0<=n<8: needs.append(vm.n_after(("U",n)))
        if 0<=dn<7: needs.append(vm.n_after(("D",dn)))
        if n==9: needs.append(vm.n_after("hst"))
        if dn==-1: poll_check(A,"m_c3",30,31,"s56",vm.n_after("f3"))
        A((f"s_waitcnt vmcnt({min(needs)}) lgkmcnt(0)" if needs else "s_waitcnt lgkmcnt(0)")+"\ns_barrier")
        st.mark(A,8+it)
        if PRIO: A(f"s_cmp_lt_u32 s40, 4\ns_cbranch_scc1 m_pa{it}\ns_setprio 2\nm_pa{it}:")
        if n==9:
            A(f"v_min_u32 v30, 13, v0\ns_lshr_b32 s56, s43, 1\ns_lshl_b32 s56, s56, 4\ns_add_u32 s56, s56, {(FL3-FL1)//128}\nv_add_u32 v30, s56, v30\nv_and_b32 v31, 7, v0\ns_lshl_b32 s56, s43, 3\nv_add_u32 v31, s56, v31\nv_cmp_lt_u32 vcc, 15, v0")
            A(f"s_mov_b32 s56, {FL1}"+ONLY7+"\nv_cndmask_b32 v30, v30, v31, vcc\nv_lshlrev_b32 v30, 7, v30")
        dml=[]
        if dn+1==0: dml+=dmaDH(vm,0)
        if 0<dn+1<7: dml+=dmaDH(vm,dn+1)+dmaDW(vm,dn+1)
        if 2<=n+1<8: dml+=dmaU(vm,n+1)
        if it+2<16: dml+=dmaKV(vm,it+2)
        if n==7: dml+=dmaDW(vm,0)
        if dn==6: dml+=dmaWO(vm)
        if n==7 and WOT: dml.append("s_lshl_b32 s59, s2, 3\ns_add_u32 s59, s59, s40\ns_lshl_b32 s59, s59, 8\nv_lshlrev_b32 v28, 7, v0\ns_mov_b64 exec, 3\nbuffer_load_dword v195, v28, s[60:63], s59 offen\ns_mov_b64 exec, -1"); vm.add("t")
        if it==14:
            dml.append(f"s_lshl_b32 s57, s43, 16\ns_lshl_b32 s68, s40, 13\ns_add_u32 s57, s57, s68\ns_lshl_b32 s68, s44, 7\ns_add_u32 s57, s57, s68\nv_lshrrev_b32 v{XR+4}, 3, v0\nv_lshlrev_b32 v{XR+4}, 10, v{XR+4}\nv_and_b32 v{XR+5}, 7, v0\nv_lshl_add_u32 v{XR+4}, v{XR+5}, 4, v{XR+4}\n"+
                       f"buffer_load_dwordx4 {vr(XR,4)}, v{XR+4}, s[16:19], s57 offen"); vm.add("x")
        if n==9:
            for l in dml: A(l)
            dml=[]
            flag_store(A,"m_f3",0,f"s_lshl_b32 s59, s46, 11\ns_lshl_b32 s68, s47, 7\ns_add_u32 s59, s59, s68\ns_add_u32 s59, s59, {FL3}",28,29,"s_cmp_lg_u32 s44, 7"); vm.add("fs")
        for u in range(4):
            t=4*it+u
            if PRIO and u==PRIO: A(f"s_cmp_lt_u32 s40, 4\ns_cbranch_scc1 m_pb{it}\ns_setprio 0\nm_pb{it}:")
            if PROG and u!=1: A(f"s_setprio {[3,3,2,1][u]}")
            Sc,Sn=(SA,SB) if u%2==0 else (SB,SA)
            val=[f"v_exp_f32 v{Sc+r}, v{Sc+r}" for r in range(8)]+[f"v_cvt_pk_bf16_f32 v{P+d}, v{Sc+2*d}, v{Sc+2*d+1}" for d in range(4)]+[f"v_exp_f32 v{Sc+r}, v{Sc+r}" for r in range(8,16)]+[f"v_cvt_pk_bf16_f32 v{P+d}, v{Sc+2*d}, v{Sc+2*d+1}" for d in range(4,8)]
            g=4*n+u; gd=4*dn+u
            ex=[]; rds=[]
            if 0<=g-1<32: ex+=up_mf(g-1)
            if 0<=g<32: rds+=up_reads(g)
            if 0<=gd-1<28: ex+=dn_mf(gd-1)
            if 0<=gd<28: rds+=dn_reads(gd)
            extra=[]
            if n==8 and u in (1,2):
                for ti in ([0,1],[2,3])[u-1]: extra+=up_epi(ti); vm.add("hst")
            if dn==-2 and u==2: extra.append("buffer_load_dword v31, v30, s[32:35], s56 offen sc1"); vm.add("f3")
            k=(len(dml)+1)//2 if u==0 and n!=8 else len(dml)
            mine=dml[:k]; dml=dml[k:]
            EXm="s_mov_b64 exec, s[52:53]"; EN="s_mov_b64 exec, -1"
            qk=[mfma32(Sn,K,Q,C)]+([f"ds_read_b128 {vr(K,4)}, v{aK} offset:{kv(t+2)}"] if t+2<64 else [])
            if t==63: qk=[]
            pv1=[mfma32(O,VB,P+4,O),EXm,f"ds_read_b128 {vr(VB,4)}, v3 offset:{kv(t)+512}",EN]
            pv0=[mfma32(O,VA,P,O)]+([EXm,f"ds_read_b128 {vr(VA,4)}, v3 offset:{kv(t+1)}",EN] if t+1<64 else [])
            nx=len(ex); e=[[m] for m in ex]
            seq={0:[qk,pv1,pv0],2:[qk]+e[0:1]+[pv1,pv0]+e[1:2],4:[qk]+e[0:1]+[pv1]+e[1:3]+[pv0]+e[3:4]}[nx]
            ng=len(seq)
            for i,x in enumerate(rds): seq[min(ng-2,(i*(ng-1))//max(1,len(rds)))].append(x)
            for i,x in enumerate(mine): seq[(i*ng)//len(mine)].append(x)
            if u>0: A("s_waitcnt lgkmcnt(0)")
            val=val+extra
            cost=[8 if "exp" in x else 4 for x in val]; tot=sum(cost); acc=0; gi=0
            for i,x in enumerate(val):
                if PROG and u==3 and i==12: A("s_setprio 0")
                while gi<ng and ((acc>=tot*gi/ng and not (seq[gi] is pv0 and i<14)) or (seq[gi] is pv1 and i>=19)):
                    for y in seq[gi]: A(y)
                    gi+=1
                A(x); acc+=cost[i]
            while gi<ng:
                for y in seq[gi]: A(y)
                gi+=1
    A("s_waitcnt lgkmcnt(0)\ns_nop 0")
    A(mfma32(O,VB,P+4,O))
    if D0+7>=16:
        for m in dn_mf(4*(16-D0)-1): A(m)
    st.mark(A,24)
    A(f"s_lshl_b32 s59, s45, 5\ns_add_u32 s59, s59, s43\ns_lshl_b32 s59, s59, 10\ns_add_u32 s70, s59, {WS_O}\ns_nop 7")
    A(f"v_max3_f32 v28, |v{O}|, |v{O+1}|, |v{O+2}|\nv_max3_f32 v28, v28, |v{O+3}|, |v{O+4}|\nv_max3_f32 v28, v28, |v{O+5}|, |v{O+6}|")
    A(f"v_max3_f32 v28, v28, |v{O+7}|, v{O+8}")
    A(f"v_add_f32 v29, v{O}, v{O+1}")
    for r in range(2,9): A(f"v_add_f32 v29, v29, v{O+r}")
    A("v_fma_f32 v28, 0, v29, v28")
    A(f"v_cmp_ngt_f32 vcc, {f2u(2.0**120):#x}, v28")
    A("s_nop 4\ns_cbranch_vccnz m_fallback")
    A.label("m_fin")
    A(f"v_rcp_f32 v28, v{O+8}\ns_nop 0")
    for r in range(8): A(f"v_mul_f32 v{O+r}, v28, v{O+r}")
    for d in range(4): A(f"v_cvt_pk_bf16_f32 v{P+d}, v{O+2*d}, v{O+2*d+1}")
    for d in range(4): A(f"v_min_u32 v{P+d}, -2, v{P+d}")
    A(f"buffer_store_dwordx4 {vr(P,4)}, v2, s[32:35], s70 offen sc1"); vm.add("ost")
    QS=1056; PS=8*QS
    A(f"s_lshl_b32 s68, s41, 1\ns_add_u32 s68, s68, s48\ns_mul_i32 s68, s68, {PS}\ns_mul_i32 s69, s42, {4*QS}\ns_add_u32 s68, s68, s69\ns_add_u32 s68, s68, {GB[0]}\nv_add_u32 v28, s68, v2")
    A(f"v_mul_u32_u24 v29, {QS}, v{XR+5}\nv_lshrrev_b32 v30, 3, v0\nv_lshl_add_u32 v29, v30, 4, v29\ns_lshr_b32 s68, s101, 3\ns_add_u32 s68, s68, {GB[0]}\nv_add_u32 v29, s68, v29")
    A(f"s_mul_i32 s68, s48, {4*PS}\nv_add_u32 v37, s68, v29\ns_mul_i32 s68, s48, {2*PS}\nv_add_u32 v29, s68, v29\ns_mul_i32 s68, s40, {PS}\ns_add_u32 s68, s68, {GB[0]}\nv_add_u32 v36, s68, v2")
    for dn in range(max(0,16-D0),7):
        A(f"s_waitcnt vmcnt({vm.n_after(('D',dn))})\ns_barrier")
        for l in dn_reads(4*dn): A(l)
        dml=(dmaDH(vm,dn+1)+dmaDW(vm,dn+1)) if dn<6 else dmaWO(vm)
        for u in range(4):
            A("s_waitcnt lgkmcnt(0)")
            weave(A,dn_mf(4*dn+u),(dn_reads(4*dn+u+1) if u<3 else [])+dml[2*u:2*u+2])
    A(f"s_lshl_b32 s68, s48, 14\ns_add_u32 s68, s68, 32768\ns_lshl_b32 s69, s101, 4\ns_sub_u32 s68, s69, s68\nv_add_u32 v34, s68, v{aD+1}\ns_lshl_b32 s68, s42, 6\nv_xor_b32 v34, s68, v34\nv_xor_b32 v35, 64, v34")
    A(f"s_lshl_b32 s70, s43, 1\ns_add_u32 s70, s70, s48\ns_lshl_b32 s70, s70, 15\ns_lshl_b32 s68, s101, 3\ns_add_u32 s70, s70, s68\ns_add_u32 s70, s70, {WS_O}\ns_add_u32 s71, s70, 4096")
    A(f"s_waitcnt vmcnt({vm.n_after('wo')})\ns_barrier")
    st.mark(A,25)
    for q in range(4): A(f"ds_write_b128 v28, {vr(DACC+4*q,4)} offset:{q*QS}")
    AF=128; OF=64; ACS=96; G=56
    rd=[f"ds_read_b64_tr_b16 {vr(AF+8*n+4*cb+2*i,2)}, v{34+cb} offset:{n*2048+i*1024}" for n in range(8) for cb in range(2) for i in range(2)]
    ol=[f"buffer_load_dwordx4 {vr(OF+4*i,4)}, v2, s[32:35], {'s70' if i<4 else 's71'} offen offset:{1024*(i%4)} sc1" for i in range(8)]
    A(f"s_mov_b32 s59, {SPIN//8}")
    for l in ol[:OE]: A(l)
    A("s_waitcnt lgkmcnt(0)\ns_barrier")
    for kh in range(2):
        for hh in range(2): A(f"ds_read_b128 {vr(40+8*kh+4*hh,4)}, v29 offset:{kh*PS+hh*512}")
    for l in rd[:8]: A(l)
    A("s_waitcnt lgkmcnt(8)")
    val=[f"v_add_f32 v{G+r}, v{40+r}, v{48+r}" for r in range(8)]+[f"v_mul_f32 v{40+r}, {f2u(-LOG2E):#x}, v{G+r}" for r in range(8)]+[f"v_exp_f32 v{40+r}, v{40+r}" for r in range(8)]+[f"v_add_f32 v{40+r}, 1.0, v{40+r}" for r in range(8)]+[f"v_rcp_f32 v{40+r}, v{40+r}" for r in range(8)]+[f"v_mul_f32 v{G+r}, v{G+r}, v{40+r}" for r in range(8)]
    for i,x in enumerate(val):
        A(x)
        if i<24: A(rd[8+i])
        if OE and i%6==5 and OE+i//6<8: A(ol[OE+i//6])
    for d in range(4): A(f"v_lshlrev_b32 v{40+2*d}, 16, v{XR+d}\nv_and_b32 v{41+2*d}, 0xffff0000, v{XR+d}")
    A("s_waitcnt lgkmcnt(0)\ns_barrier")
    st.mark(A,26)
    if OE: A("s_branch m_ochk")
    A.label("m_oretry")
    for l in ol: A(l)
    A.label("m_ochk")
    A("v_mov_b32 v38, 0")
    for n in range(8):
        A(f"s_waitcnt vmcnt({7-n})")
        A(mfma32(ACS,AF+8*n,OF+4*n,ACS if n else "0"))
        A(f"v_max3_u32 v38, v38, v{OF+4*n}, v{OF+4*n+1}\nv_max3_u32 v38, v38, v{OF+4*n+2}, v{OF+4*n+3}")
        A(mfma32(ACS+16,AF+8*n+4,OF+4*n,(ACS+16) if n else "0"))
    A("v_cmp_eq_u32 vcc, -1, v38\ns_sub_u32 s59, s59, 1\ns_cselect_b64 s[68:69], 0, -1\ns_nop 2\ns_and_b64 vcc, vcc, s[68:69]\ns_cbranch_vccnz m_oretry")
    st.mark(A,27)
    A("s_nop 5")
    for q in range(8): A(f"ds_write_b128 v36, {vr(ACS+4*q,4)} offset:{q*QS}")
    A("s_waitcnt lgkmcnt(0)\ns_barrier")
    T=64
    for kq in range(4):
        for hh in range(2): A(f"ds_read_b128 {vr(T+8*kq+4*hh,4)}, v37 offset:{kq*PS+hh*512}")
    A("s_waitcnt lgkmcnt(4)")
    for r in range(8): A(f"v_add_f32 v{T+r}, v{T+r}, v{T+8+r}")
    A("s_waitcnt lgkmcnt(0)")
    for r in range(8): A(f"v_add_f32 v{T+16+r}, v{T+16+r}, v{T+24+r}")
    for r in range(8): A(f"v_add_f32 v{T+r}, v{T+r}, v{T+16+r}")
    for r in range(8): A(f"v_fma_f32 v{40+r}, v{T+r}, v{G+r}, v{40+r}")
    for d in range(4): A(f"v_cvt_pk_bf16_f32 v{48+d}, v{40+2*d}, v{41+2*d}")
    A(f"buffer_store_dwordx4 v[48:51], v{XR+4}, s[64:67], s57 offen")
    flag_store(A,"m_bump",0,f"s_mov_b32 s59, {WS_T}",32,33,"s_cmp_eq_u32 s2, 0")
    if STAMP:
        st.mark(A,28)
        A("s_waitcnt vmcnt(0)")
        st.mark(A,29)
        A("v_subrev_u32 v250, s94, v250\ns_memrealtime s[96:97]\ns_waitcnt lgkmcnt(0)\nv_writelane_b32 v250, s92, 30\nv_writelane_b32 v250, s96, 31")
        A(f"s_lshl_b32 s96, s2, 3\ns_add_u32 s96, s96, s40\ns_lshl_b32 s96, s96, 8\ns_add_u32 s96, s96, {WS_ST}\nv_lshlrev_b32 v251, 2, v0\nbuffer_store_dword v250, v251, s[32:35], s96 offen")
    if E("PAD",0):
        A.label("k_pad")
        A(f"s_memrealtime s[96:97]\ns_waitcnt lgkmcnt(0)\ns_sub_u32 s96, s96, s92\ns_cmp_lt_u32 s96, {E('PAD',0)}\ns_cbranch_scc1 k_pad")
    if E("DBG",0):
        A("s_cmp_eq_u32 s40, 0\ns_cbranch_scc0 k_end\ns_load_dwordx2 s[4:5], s[0:1], 64\ns_memrealtime s[96:97]\ns_memtime s[6:7]\ns_waitcnt vmcnt(0) lgkmcnt(0)")
        srd(A,8,4,256)
        A("s_not_b32 s92, s92\ns_sub_u32 s6, s6, s94\nv_mov_b32 v1, 0\nv_mov_b32 v2, s92\nv_mov_b32 v3, s96\nv_mov_b32 v4, s6\ns_mov_b64 exec, 1")
        A("buffer_atomic_umax v2, v1, s[8:11], 0 offen\nbuffer_atomic_umax v3, v1, s[8:11], 0 offen offset:4\nbuffer_atomic_umax v4, v1, s[8:11], 0 offen offset:8")
        if STAMP:
            for k,l in enumerate([0,1,2,3,49,50,6,8,16,24,25,26,29]):
                A(f"v_readlane_b32 s6, v250, {l}\ns_nop 3\nv_mov_b32 v4, s6\nbuffer_atomic_umax v4, v1, s[8:11], 0 offen offset:{12+4*k}")
    A.label("k_end")
    A("s_endpgm")
    for name,va,vd,so in spins:
        A.label(name+"_spin")
        A(f"s_mov_b32 s59, {SPIN}")
        A.label(name+"_l")
        A(f"s_sleep {SLEEP}\nbuffer_load_dword v{vd}, v{va}, s[32:35], {so} offen sc1\ns_waitcnt vmcnt(0)\nv_cmp_ne_u32 vcc, s58, v{vd}\ns_sub_u32 s59, s59, 1\ns_nop 3")
        A(f"s_cbranch_vccz {name}_ret\ns_cmp_lg_u32 s59, 0\ns_cbranch_scc1 {name}_l\ns_branch {name}_ret")
    A.label("m_fallback")
    A(f"s_sub_u32 s68, s49, s101\ns_mov_b32 s69, 0\nv_mov_b32 v28, 0xff800000\nv_subrev_u32 v30, {KVB}, v3")
    A.label("m_fb1")
    A(f"buffer_load_dwordx4 {vr(K,4)}, v2, s[32:35], s68 offen sc1\ns_add_u32 s68, s68, 2048\ns_waitcnt vmcnt(0)")
    A(mfma32(SA,K,Q,"0"))
    A("s_nop 15")
    max16(28,SA,False)
    A("s_add_u32 s69, s69, 1\ns_cmp_lt_u32 s69, 64\ns_cbranch_scc1 m_fb1")
    A("v_mov_b32 v29, v28\ns_nop 1\nv_permlane32_swap_b32 v28, v29\nv_max_f32 v28, v28, v29")
    for r in range(16): A(f"v_sub_f32 v{C+r}, 0, v28\nv_mov_b32 v{O+r}, 0")
    A(f"s_sub_u32 s68, s49, s101\ns_mov_b32 s69, 0")
    A.label("m_fb2")
    A(f"buffer_load_dwordx4 {vr(K,4)}, v2, s[32:35], s68 offen sc1\ns_mov_b64 exec, s[52:53]\nbuffer_load_dwordx4 {vr(VA,4)}, v30, s[32:35], s68 offen sc1\nbuffer_load_dwordx4 {vr(VB,4)}, v30, s[32:35], s68 offen offset:512 sc1\ns_mov_b64 exec, -1")
    A("s_add_u32 s68, s68, 2048\ns_waitcnt vmcnt(0)")
    A(mfma32(SA,K,Q,C))
    A("s_nop 15")
    for r in range(16): A(f"v_exp_f32 v{SA+r}, v{SA+r}")
    for d in range(8): A(f"v_cvt_pk_bf16_f32 v{P+d}, v{SA+2*d}, v{SA+2*d+1}")
    A("s_nop 1")
    A(mfma32(O,VA,P,O)); A(mfma32(O,VB,P+4,O))
    A("s_add_u32 s69, s69, 1\ns_cmp_lt_u32 s69, 64\ns_cbranch_scc1 m_fb2")
    A("s_nop 15\nk_last:\ns_branch m_fin")

def main(out):
    hdr=open("cdna_kernels/"+NAME+".s.ref").read().split("\n")
    head=[l for l in hdr if l.startswith(";") and "@launch" not in l]
    T="\n".join(head)+"\n"
    if E("LIST",0)==2: T+=f"; @launch kernel={KN} grid=(256,1,1) block=(512,1,1) lds={LDS}\n"
    if E("LIST",0): T+=f"; @launch kernel={KN} grid=(256,1,1) block=(512,1,1) lds={LDS}\n"
    else: T+=f"; @launch grid=(256,1,1) block=(512,1,1) lds={LDS}\n"
    T+='.amdgcn_target "amdgcn-amd-amdhsa--gfx950"\n.text\n'
    A=Asm(); kern(A)
    for e in hazard_check(A.text()): print(e)
    T+=f".globl {KN}\n.p2align 8\n.type {KN},@function\n"+A.text()
    T+='.section .rodata,"a"\n'+kdesc(KN,256,102)
    open(out,"w").write(T)
if __name__=="__main__":
    main(sys.argv[1] if len(sys.argv)>1 else "cdna_kernels/"+NAME+".s")
```

```python
import sys, struct, os, copy
from asmlib import *
NAME="recurrent_scan__mha_block__glu_gated_reglu__prompt"
KN=NAME+"_kernel"
WS_Q=0; WS_KV=2<<20; WS_H=6<<20; WS_O=13<<20; WS_XN=22<<20; WS_FL=21<<20; WS_T=WS_FL+98304; WS_SIZE=32<<20; WS_ST=24<<20
FL1=WS_FL; FL2=WS_FL+32768; FL3=WS_FL+524288; FL2=WS_FL+786432
def f2u(f): return struct.unpack("<I",struct.pack("<f",f))[0]
LOG2E=1.4426950408889634
E=lambda k,d: int(os.environ.get(k,str(d)))
STAMP=E("STAMP",0); TOUCH=E("TOUCH",0); G0=E("G0",0); PRIO=E("PRIO",0); NPRE=E("NPRE",4); DGAP=E("DGAP",5)
SPIN=400000
SLEEP=E('SLEEP',2)
CODEPF=E("CODEPF",1); WTOUCH=E("WTOUCH",0); NW0=E("NW0",1); NW1=E("NW1",2); F1D=E("F1D",2); F1P=E("F1P",22); F1C=E("F1C",25); PBURST=E("PBURST",1); U1H=E("U1H",2); UWD=E("UWD",6); TLB=E("TLB",0); OE=E("OE",2); HSN=E("HSN",5); LK=E("LK",1); PG=E("PG",10); EARLY=E("EARLY",1); F3U=E("F3U",1); F3G=E("F3G",36); RSW=E("RSW",1); XBAR=E("XBAR",0); F2G=E("F2G",2); HPRIO=E("HPRIO",0); PROG=E("PROG",1); ROT=E("ROT",1); WOT=E("WOT",1); UT=E("UT",0); UTK=E("UTK",27)
MOFF=float(E("MOFF",100))
class VM:
    def __init__(s): s.ops=[]
    def add(s,tag,n=1): s.ops+= [tag]*n
    def n_after(s,tag):
        idx=max(i for i,t in enumerate(s.ops) if t==tag)
        return len(s.ops)-1-idx
def weave(A,mf,fill):
    n=len(mf); k=len(fill); j=0
    for i,m in enumerate(mf):
        A(m)
        e=(k*(i+1))//n
        while j<e: A(fill[j]); j+=1
class St:
    def __init__(s): s.pend=None
    def mark(s,A,i):
        if STAMP:
            A(f"{'s_memrealtime' if STAMP==2 else 's_memtime'} s[96:97]\ns_waitcnt lgkmcnt(0)\nv_writelane_b32 v250, s96, {i}")
st=St()
WB=65536; GB=[65536,0]; KVB=131072; KVS=8192; VSC=114688; LDS=163840
Q,K,VA,VB,P,C,SA,SB,O=4,8,12,16,20,32,48,64,80
FR=[96,112]; GACC=128; DACC=208
vG,vU,vD=192,193,194; aW,aH,aD=198,202,204; aK=206; XR=224; aX=232; vX=196
WS_XS=WS_FL+131072; WS_CS=WS_FL+262144
CSC=VSC+8192; SSC=VSC+12288
TB=E('TB',1); B3=114688; a3=240
def ub(n):
    if TB and n<2: return 1-n
    if TB and n==2: return 2
    return n%2
UB=[65536,0,B3]
SLOT=[0,32768,131072,65536,98304]
spins=[]
ONLY7="\ns_cmp_eq_u32 s40, 7\ns_cselect_b32 s56, s56, 0x7ff00000"
def poll_check(A,name,vaddr,vdst,soff,wait,only7=True):
    if only7: A(f"s_cmp_eq_u32 s40, 7\ns_cbranch_scc0 {name}_ret")
    A(f"s_waitcnt vmcnt({wait})\nv_cmp_ne_u32 vcc, s58, v{vdst}\ns_nop 4\ns_cbranch_vccnz {name}_spin\n{name}_ret:")
    spins.append((name,vaddr,vdst,soff))
def flag_store(A,name,wave,soff_code,va,vb,cond=None):
    A(soff_code)
    if wave is not None: A(f"s_cmp_eq_u32 s40, {wave}\ns_cselect_b32 s59, s59, 0x7ffffff0")
    if cond: A(f"{cond}\ns_cselect_b32 s59, s59, 0x7ffffff0")
    A(f"v_mov_b32 v{va}, s58\nv_mov_b32 v{vb}, 0\ns_mov_b64 exec, 1\nbuffer_store_dword v{va}, v{vb}, s[32:35], s59 offen sc1\ns_mov_b64 exec, -1")

def kern(A):
    vm=VM()
    A.label(KN)
    A("s_cmp_ge_u32 s2, 256\ns_cbranch_scc1 k_end")
    if STAMP or E("DBG",0) or E("PAD",0): A("s_memrealtime s[92:93]\ns_memtime s[94:95]")
    A("s_load_dwordx4 s[4:7], s[0:1], 0\ns_load_dwordx2 s[14:15], s[0:1], 72\ns_load_dwordx4 s[8:11], s[0:1], 32")
    A("s_load_dwordx4 s[72:75], s[0:1], 48\ns_load_dwordx2 s[12:13], s[0:1], 16")
    if CODEPF:
        A("s_getpc_b64 s[70:71]\nk_pc:\ns_and_b32 s68, s2, 0xf8\nv_add_u32 v26, s68, v0\nv_lshlrev_b32 v26, 7, v26\nv_min_u32 v26, k_last-k_pc, v26\nv_cmp_gt_u32 vcc, 8, v0\ns_and_saveexec_b64 s[68:69], vcc\ns_cbranch_execz k_nopf\nglobal_load_dword v26, v26, s[70:71]\nk_nopf:\ns_mov_b64 exec, -1")
    A("v_lshrrev_b32 v1, 6, v0\nv_and_b32 v0, 63, v0\nv_readfirstlane_b32 s40, v1")
    A("s_and_b32 s3, s2, 7\ns_lshr_b32 s59, s2, 3\ns_and_b32 s100, s59, 7")
    A("s_and_b32 s98, s3, 3\ns_lshl_b32 s98, s98, 3\ns_add_u32 s98, s98, s100")
    A("s_lshr_b32 s99, s3, 2\ns_lshl_b32 s99, s99, 2\ns_lshr_b32 s68, s59, 3\ns_add_u32 s99, s99, s68")
    A("s_add_u32 s100, s100, s99")
    A("v_lshrrev_b32 v20, 3, v0\nv_and_b32 v21, 7, v0\nv_lshrrev_b32 v1, 5, v0\ns_and_b32 s70, s40, 3\ns_lshl_b32 s101, s70, 10")
    A(f"v_lshrrev_b32 v22, 4, v0\nv_xor_b32 v22, v22, v21\nv_lshlrev_b32 v22, 4, v22\nv_lshl_add_u32 v{vX}, v20, 10, v22\ns_lshl_b32 s68, s70, 14\nv_add_u32 v{vX}, s68, v{vX}\nv_xor_b32 v{vX+1}, 64, v{vX}\nv_add_u32 v{vX+1}, 0x2000, v{vX+1}")
    A("v_bfe_u32 v31, v0, 4, 1\nv_lshlrev_b32 v31, 2, v31\nv_xor_b32 v31, v31, v21\nv_lshlrev_b32 v31, 4, v31")
    A("s_lshl_b32 s70, s70, 3\nv_add_u32 v29, s70, v20\nv_mul_u32_u24 v30, 3072, v29\nv_add_u32 v30, v30, v31\ns_lshl_b32 s68, s99, 7\nv_add_u32 v30, s68, v30")
    A("s_and_b32 s89, s99, 1\ns_lshl_b32 s89, s89, 2\ns_xor_b32 s89, s89, s40" if RSW else "s_mov_b32 s89, s40")
    if WTOUCH: A("v_lshlrev_b32 v24, 7, v0\ns_lshl_b32 s59, s2, 3\ns_add_u32 s59, s59, s40\ns_mul_i32 s59, s59, 768")
    A("v_and_b32 v22, 31, v0\ns_lshl_b32 s68, s89, 13\nv_lshlrev_b32 v11, 4, v21\nv_lshl_add_u32 v11, v20, 10, v11\nv_add_u32 v11, s68, v11\ns_lshl_b32 s57, s98, 16")
    A("s_waitcnt lgkmcnt(0)")
    srd(A,16,4,2048*1024); srd(A,20,6,512*3072)
    if WTOUCH: A("s_mov_b64 exec, 0x3f\nbuffer_load_dword v25, v24, s[20:23], s59 offen\ns_mov_b64 exec, -1")
    if TLB:
        A("s_cmp_lt_u32 s40, 6\ns_cbranch_scc1 k_notlb\ns_cmp_eq_u32 s40, 7\ns_cbranch_scc1 k_tlb7")
        A("v_lshlrev_b32 v24, 21, v0\ns_mov_b64 exec, 0xfff\nglobal_load_dword v26, v24, s[14:15] sc1\ns_branch k_tlbd")
        A.label("k_tlb7")
        A("v_lshlrev_b32 v24, 20, v0\ns_mov_b64 exec, 3\nglobal_load_dword v26, v24, s[8:9]\nglobal_load_dword v26, v24, s[10:11]\nglobal_load_dword v26, v24, s[72:73]\nglobal_load_dword v26, v24, s[74:75]\ns_mov_b64 exec, 1\nglobal_load_dword v26, v24, s[12:13]")
        A.label("k_tlbd")
        A("s_mov_b64 exec, -1")
        A.label("k_notlb")
    X=32
    vm=VM()
    for i in range(8):
        A(f"s_add_u32 s88, s100, {i}\ns_and_b32 s88, s88, 7\ns_lshl_b32 s88, s88, 7\ns_add_u32 s88, s88, s57\nbuffer_load_dwordx4 {vr(X+4*i,4)}, v11, s[16:19], s88 offen"); vm.add(("x",i))
    if XBAR==1: A("s_barrier")
    def dmaW(vm,d,his):
        L=[]; b=WB+(d%4)*24576
        for k,hi in enumerate(his):
            for c in range(3):
                vm.add(("W",d))
                if c==0: pre=f"s_add_u32 s88, s100, {d}\ns_and_b32 s88, s88, 7\ns_mul_i32 s59, s88, {64*3072}\n"+("s_add_u32 s59, s59, s91\n" if hi is None else (f"s_add_u32 s59, s59, {32*3072}\n" if hi else ""))
                else: pre="s_add_u32 s59, s59, 1024\n"
                m=f"s80, {b+c*8192}" if hi is None else f"s101, {b+c*8192+hi*4096}"
                L.append(f"s_add_u32 m0, {m}\n"+pre+"buffer_load_dwordx4 v30, s[20:23], s59 offen lds")
        return L
    srd(A,32,14,WS_SIZE)
    A(f"s_add_u32 s70, s14, {WS_T}\ns_addc_u32 s71, s15, 0\ns_load_dword s58, s[70:71], 0")
    A("s_and_b32 s41, s40, 1\ns_bfe_u32 s42, s40, 0x10001")
    A("v_lshrrev_b32 v4, 4, v0\ns_lshl_b32 s68, s41, 2\nv_xor_b32 v4, s68, v4\nv_xor_b32 v4, v4, v21\nv_lshlrev_b32 v4, 4, v4\nv_lshl_add_u32 v4, v20, 7, v4\ns_lshl_b32 s68, s89, 10\nv_add_u32 v4, s68, v4")
    A("v_mov_b32 v12, 0\nv_mov_b32 v13, 0\nv_mov_b32 v14, 0\nv_mov_b32 v15, 0")
    A("v_lshlrev_b32 v2, 4, v0\nv_mov_b32 v19, 0x3f803f80")
    A("s_lshr_b32 s48, s40, 2")
    A("s_lshl_b32 s80, s48, 12\ns_add_u32 s80, s80, s101")
    def setup_main():
        A=Asm()
        A("v_bfe_u32 v23, v0, 1, 3\nv_xor_b32 v23, v23, v1\nv_lshlrev_b32 v23, 4, v23\nv_lshl_add_u32 v23, v22, 7, v23")
        A("v_bfe_u32 v28, v0, 2, 2\nv_lshlrev_b32 v28, 7, v28\nv_and_b32 v24, 3, v0\nv_lshl_add_u32 v28, v24, 3, v28")
        A("v_bfe_u32 v24, v0, 3, 1\nv_xor_b32 v24, s42, v24\nv_lshl_add_u32 v28, v24, 6, v28\nv_bfe_u32 v27, v0, 4, 1\nv_lshl_add_u32 v28, v27, 5, v28")
        srd(A,24,8,512*3584); srd(A,28,10,512*3584); srd(A,36,14,WS_SIZE); srd(A,76,72,1792*1024); srd(A,60,12,512*1024); srd(A,64,74,2048*1024)
        A("s_bfe_u32 s59, s2, 0x20003\ns_lshl_b32 s43, s3, 2\ns_add_u32 s43, s43, s59")
        A("s_lshr_b32 s44, s2, 5")
        A("s_lshl_b32 s45, s44, 3\ns_add_u32 s45, s45, s40")
        A("s_lshr_b32 s46, s3, 1\ns_lshl_b32 s46, s46, 2\ns_add_u32 s46, s46, s59")
        A("s_and_b32 s47, s3, 1\ns_mul_i32 s47, s47, 7\ns_add_u32 s47, s47, s44")
        A(f"s_lshl_b32 s49, s43, 17\ns_add_u32 s49, s49, s101\ns_add_u32 s49, s49, {WS_KV}")
        A(f"s_lshl_b32 s50, s46, 17\ns_add_u32 s50, s50, {WS_XN}")
        A(f"v_mul_u32_u24 v{vG}, 3584, v29\nv_add_u32 v{vG}, v{vG}, v31\ns_lshl_b32 s68, s47, 8\nv_add_u32 v{vG}, s68, v{vG}\nv_xor_b32 v{vU}, 32, v{vG}")
        A(f"s_lshr_b32 s68, s101, 5\nv_add_u32 v29, s68, v20\nv_lshl_add_u32 v{vD}, v29, 10, v31\ns_lshl_b32 s68, s44, 7\nv_add_u32 v{vD}, s68, v{vD}")
        A(f"s_mul_i32 s51, s43, {224*1024}\ns_lshl_b32 s68, s101, 2\ns_add_u32 s51, s51, s68\ns_add_u32 s51, s51, {WS_H}")
        A(f"v_and_b32 v3, 15, v0\nv_lshlrev_b32 v3, 4, v3\nv_lshl_add_u32 v3, v1, 8, v3\nv_add_u32 v3, {KVB+1024}, v3\nv_add_u32 v{aK}, {KVB}, v2")
        A("s_mov_b32 s52, 0xffff\ns_mov_b32 s53, 0xffff")
        A(f"s_lshl_b32 s68, s41, 13\nv_add_u32 v{aX+4}, s68, v23")
        for kq in range(1,4): A(f"v_xor_b32 v{aX+4+kq}, {32*kq}, v{aX+4}")
        for kq in range(4): A(f"v_add_u32 v{aX+kq}, 0x10000, v{aX+4+kq}")
        A(f"v_lshl_add_u32 v{aW+2}, v27, 13, v28\nv_lshl_add_u32 v{aW+2}, v1, 10, v{aW+2}\ns_lshl_b32 s68, s48, 14\ns_add_u32 s68, s68, 16384\nv_add_u32 v{aW+2}, s68, v{aW+2}")
        A(f"v_xor_b32 v{aW+3}, 32, v{aW+2}\nv_add_u32 v{aW}, 0x10000, v{aW+2}\nv_add_u32 v{aW+1}, 0x10000, v{aW+3}")
        A(f"s_lshl_b32 s68, s41, 14\ns_lshl_b32 s70, s48, 13\ns_add_u32 s68, s68, s70\nv_add_u32 v{aH+1}, s68, v2\nv_add_u32 v{aH}, 0x10000, v{aH+1}")
        A(f"v_lshl_add_u32 v{aD+1}, v1, 9, v28\ns_lshl_b32 s68, s48, 14\ns_add_u32 s68, s68, 32768\nv_add_u32 v{aD+1}, s68, v{aD+1}\nv_add_u32 v{aD}, 0x10000, v{aD+1}")
        A(f"s_lshl_b32 s54, s46, 2\ns_lshl_b32 s68, s41, 1\ns_add_u32 s54, s54, s68\ns_mul_i32 s54, s54, 112\ns_lshl_b32 s68, s47, 3\ns_add_u32 s54, s54, s68\ns_and_b32 s68, s40, 6\ns_add_u32 s54, s54, s68\ns_lshl_b32 s54, s54, 10\ns_add_u32 s54, s54, {WS_H}\ns_add_u32 s55, s54, {112*1024}")
        A(f"s_lshl_b32 s81, s48, 12\ns_add_u32 s81, s81, s49\ns_lshl_b32 s82, s48, 16\ns_add_u32 s82, s82, s50\ns_mul_i32 s83, s48, {32*3584}\ns_lshl_b32 s84, s48, 17\ns_mul_i32 s85, s48, {112*1024}\ns_add_u32 s85, s85, s51")
        A("s_lshr_b32 s86, s46, 1\ns_mul_i32 s68, s43, 37\ns_lshr_b32 s68, s68, 8\ns_mul_i32 s68, s68, 7\ns_sub_u32 s87, s43, s68")
        if not ROT: A("s_mov_b32 s86, 0\ns_mov_b32 s87, 0")
        return [x.strip() for x in A.lines]
    A(f"s_mul_i32 s91, s48, {32*3072}")
    for d in range(NW0):
        for l in dmaW(vm,d,[None]): A(l)
    SM=setup_main()
    for l in SM[:13]: A(l)
    SM=SM[13:]
    SM=SM[:24]+[l.replace("s59","s75").replace("s68","s74").replace("s70","s73") for l in SM[24:]]
    A(f"s_lshl_b32 s68, s41, 12\nv_add_u32 v5, s68, v23")
    for kq in range(1,4): A(f"v_xor_b32 v{5+kq}, {32*kq}, v5")
    A(f"v_lshl_add_u32 v9, v1, 10, v28\nv_add_u32 v9, {WB}, v9\nv_add_u32 v10, {2*24576}, v9")
    rotU=lambda n: f"s_add_u32 s88, s86, {n}\ns_and_b32 s88, s88, 7\n"
    rotD=lambda n: f"s_add_u32 s88, s87, {n}\ns_sub_u32 s89, s88, 7\ns_cmp_ge_u32 s88, 7\ns_cselect_b32 s88, s89, s88\n"
    def dmaKV(vm,it,hi=None):
        vm.add(("KV",it))
        if hi is None: return [f"s_add_u32 m0, s80, {KVB+(it%3)*KVS}\ns_add_u32 s59, s81, {it*8192}\nbuffer_load_dwordx4 v2, s[32:35], s59 offen sc1 lds"]
        return [f"s_add_u32 m0, s101, {KVB+(it%3)*KVS+hi*4096}\ns_add_u32 s59, s49, {it*8192+hi*4096}\nbuffer_load_dwordx4 v2, s[32:35], s59 offen sc1 lds"]
    def dmaUX(vm,n,hi=None):
        b=UB[ub(n)]; vm.add(("U",n),2)
        m,s,o1,o2=("s80","s82",0,0) if hi is None else ("s101","s50",hi*8192,hi*65536)
        return [f"s_lshl_b32 s59, {m}, 1\ns_add_u32 m0, s59, {b+o1}\n"+rotU(n)+f"s_lshl_b32 s59, s88, 7\ns_add_u32 s59, s59, {s}\n"+(f"s_add_u32 s59, s59, {o2}\n" if o2 else "")+f"buffer_load_dwordx4 v{vX}, s[36:39], s59 offen sc1 lds",
                f"s_add_u32 m0, m0, 1024\ns_nop 0\nbuffer_load_dwordx4 v{vX+1}, s[36:39], s59 offen sc1 lds"]
    def dmaUW(vm,n,hi=None):
        b=UB[ub(n)]; L=[]; vm.add(("U",n),4)
        for c in range(4):
            if c==0: so=rotU(n)+f"s_mul_i32 s59, s88, {64*3584}\n"+("s_add_u32 s59, s59, s83" if hi is None else f"s_add_u32 s59, s59, {hi*32*3584}")
            else: so="s_add_u32 s59, s59, 128" if c==2 else "s_nop 0"
            m=f"s80, {b+16384+c*8192}" if hi is None else f"s101, {b+16384+c*8192+hi*4096}"
            L.append(f"s_add_u32 m0, {m}\n{so}\nbuffer_load_dwordx4 v{vG+c%2}, s[{24+4*(c%2)}:{27+4*(c%2)}], s59 offen lds")
        return L
    def dmaU(vm,n,hi=None): return dmaUX(vm,n,hi)+dmaUW(vm,n,hi)
    def dmaRows(vm,tag,dst,pre,srdn):
        vm.add(tag,4)
        return [(f"s_lshl_b32 s90, s80, 2\n" if i==0 else "")+f"s_add_u32 m0, s90, {dst+i*1024}\n"+(pre if i==0 else "s_add_u32 s59, s59, 8192\n")+f"buffer_load_dwordx4 v{vD}, s[{srdn}:{srdn+3}], s59 offen lds" for i in range(4)]
    def dmaDW(vm,n): return dmaRows(vm,("D",n),GB[n%2]+32768,rotD(n)+"s_lshl_b32 s59, s88, 18\ns_add_u32 s59, s59, s84\n",76)
    def dmaWO(vm): return dmaRows(vm,"wo",GB[1],"s_mov_b32 s59, s84\n",60)+dmaRows(vm,"wo",GB[1]+32768,f"s_add_u32 s59, s84, {256*1024}\n",60)
    def dmaDH(vm,n):
        b=GB[n%2]; vm.add(("D",n),4)
        return [(f"s_lshl_b32 s59, s80, 2\ns_add_u32 m0, s59, {b}\n"+rotD(n)+"s_lshl_b32 s59, s88, 14\ns_add_u32 s59, s59, s85\n" if i==0 else "")+f"buffer_load_dwordx4 v2, s[32:35], s59 offen offset:{1024*i} sc1 lds" for i in range(4)]
    st.mark(A,0)
    for i in range(8):
        if i%2==0: A(f"s_waitcnt vmcnt({vm.n_after(('x',i+1))})")
        for d in range(4): A(f"v_dot2c_f32_bf16 v{12+d%2}, v{X+4*i+d}, v19\nv_dot2c_f32_bf16 v{14+d%2}, v{X+4*i+d}, v{X+4*i+d}")
    st.mark(A,1)
    later=[]
    for d in range(NW0,NW1): later+=dmaW(vm,d,[None])
    A("s_nop 2\nv_add_f32 v12, v12, v13\nv_add_f32 v13, v14, v15\ns_nop 1")
    for mod in ("quad_perm:[1,0,3,2]","quad_perm:[2,3,0,1]","row_half_mirror"):
        A(f"v_add_f32_dpp v12, v12, v12 {mod} row_mask:0xf bank_mask:0xf\nv_add_f32_dpp v13, v13, v13 {mod} row_mask:0xf bank_mask:0xf\ns_nop 0")
    A(f"v_mul_f32 v12, {f2u(1/512):#x}, v12\nv_mul_f32 v13, {f2u(1/512):#x}, v13")
    A("v_fma_f32 v13, -v12, v12, v13\nv_max_f32 v13, 0, v13")
    A("v_cvt_pk_bf16_f32 v13, v13, v13\nv_and_b32 v13, 0xffff0000, v13")
    A(f"v_add_f32 v13, {f2u(1e-5):#x}, v13")
    A("v_cvt_pk_bf16_f32 v13, v13, v13\nv_and_b32 v13, 0xffff0000, v13\nv_sqrt_f32 v13, v13")
    A("v_cvt_pk_bf16_f32 v12, v12, v12\nv_cvt_pk_bf16_f32 v13, v13, v13\nv_and_b32 v13, 0xffff0000, v13\nv_rcp_f32 v14, v13\nv_and_b32 v12, 0xffff0000, v12")
    A("v_mov_b32 v15, v14\nv_mul_f32 v16, -v12, v14\nv_mov_b32 v17, v16")
    for i in range(8):
        for d in range(0,4,2):
            r=X+4*i+d
            A(f"v_lshlrev_b32 v68, 16, v{r}\nv_and_b32 v69, 0xffff0000, v{r}\nv_lshlrev_b32 v70, 16, v{r+1}\nv_and_b32 v71, 0xffff0000, v{r+1}")
            A(f"v_pk_fma_f32 v[68:69], v[68:69], v[14:15], v[16:17]\nv_pk_fma_f32 v[70:71], v[70:71], v[14:15], v[16:17]\nv_cvt_pk_bf16_f32 v{r}, v68, v69\nv_cvt_pk_bf16_f32 v{r+1}, v70, v71")
        A(f"ds_write_b128 v4, {vr(X+4*i,4)} offset:{8192*i}")
    for l in later: A(l)
    A(f"s_waitcnt vmcnt({vm.n_after(('W',0))})\ns_cmp_ge_u32 s40, 4\ns_cbranch_scc1 p1_nop")
    A(f"v_mov_b32 v64, -1\nv_mov_b32 v65, -1\nv_mov_b32 v66, -1\nv_mov_b32 v67, -1\ns_lshl_b32 s68, s98, 1\ns_add_u32 s68, s68, s41\ns_lshl_b32 s59, s99, 1\ns_add_u32 s59, s59, s42\ns_lshl_b32 s69, s68, 4\ns_add_u32 s69, s69, s59\ns_lshl_b32 s69, s69, 11\ns_add_u32 s69, s69, {WS_O}")
    A("buffer_store_dwordx4 v[64:67], v2, s[32:35], s69 offen sc1\nbuffer_store_dwordx4 v[64:67], v2, s[32:35], s69 offen offset:1024 sc1")
    A.label("p1_nop")
    A(f"s_waitcnt lgkmcnt(0)\ns_barrier\ns_add_u32 s58, s58, 1")
    st.mark(A,2)
    vmh=copy.deepcopy(vm); vmc=vm; vmc.add("xst",2)
    A("s_cmp_ge_u32 s40, 4\ns_cbranch_scc1 p1_help\ns_setprio 1")
    FS=[64,80,32]; ACC=96
    def reads(F,kp):
        d=kp//4; ks=kp%4; sl=d%4
        r=[f"ds_read_b128 {vr(F,4)}, v{5+ks} offset:{d*8192}"]
        for c in range(3):
            for i in range(2): r.append(f"ds_read_b64_tr_b16 {vr(F+4+4*c+2*i,2)}, v{9+sl//2} offset:{(sl%2)*24576+c*8192+(16*ks+4*i)*128}")
        return r
    A("s_lshl_b32 s68, s101, 1\nv_add_u32 v18, s68, v2\nds_read_b128 v[48:51], v18\nds_read_b128 v[52:55], v18 offset:1024")
    for l in reads(FS[0],0)+reads(FS[1],1): A(l)
    A(f"s_and_b32 s59, s100, 7\ns_lshl_b32 s59, s59, 7\ns_add_u32 s59, s59, s57\ns_add_u32 s59, s59, {WS_XN}")
    pre=[f"buffer_store_dwordx4 v[48:51], v{vX}, s[32:35], s59 offen sc1",
         f"buffer_store_dwordx4 v[52:55], v{vX+1}, s[32:35], s59 offen sc1",
         "s_lshl_b32 s68, s98, 1\ns_add_u32 s68, s68, s41\ns_lshl_b32 s59, s99, 1\ns_add_u32 s59, s59, s42\ns_lshl_b32 s59, s59, 7\ns_add_u32 s59, s59, s68",
         f"s_lshl_b32 s70, s59, 10\ns_add_u32 s71, s70, {64*1024}\ns_lshl_b32 s68, s59, 11\ns_add_u32 s68, s68, {WS_KV}\ns_add_u32 s69, s68, {64*2048}",
         f"v_and_b32 v20, 31, v0\nv_lshlrev_b32 v20, 6, v20\nv_lshl_add_u32 v20, v1, 3, v20\ns_lshl_b32 s72, s40, 11\ns_add_u32 s72, s72, {VSC}\nv_add_u32 v20, s72, v20",
         "v_lshlrev_b32 v22, 10, v1\nv_lshl_add_u32 v22, v27, 8, v22\nv_bfe_u32 v23, v0, 2, 2\nv_lshl_add_u32 v22, v23, 6, v22",
         f"v_and_b32 v23, 3, v0\nv_lshl_add_u32 v22, v23, 3, v22\nv_add_u32 v22, s72, v22\nv_mov_b32 v24, {f2u(0.25*LOG2E):#x}\nv_mov_b32 v25, v24"]
    pre=pre[:2]+["\n".join(SM[i:i+5]) for i in range(0,len(SM),5)]+pre[2:]
    assert len(pre)<=31, len(pre)
    for kp in range(32):
        F=FS[kp%3]; d=kp//4
        fill=[]
        if kp==4*F1D+2:
            A(f"s_waitcnt vmcnt(0) lgkmcnt({7 if (LK and NW1<=2 and d<5) else 0})\ns_barrier")
            fill.append("FLAG")
        elif kp%4==2 and (U1H==1 or kp<30):
            w=f"vmcnt({vmc.n_after(('W',d+1))}) " if ('W',d+1) in vmc.ops else ""
            A(f"s_waitcnt {w}lgkmcnt({7 if (LK and NW1<=2 and d<5) else 0})\ns_barrier")
        else: A(f"s_waitcnt lgkmcnt({7 if kp<31 else 0})")
        if kp%4==2: st.mark(A,32+d)
        fl="FLAG" in fill; fill=[]
        if kp<30: fill+=reads(FS[(kp+2)%3],kp+2)
        if pre:
            fill.append(pre.pop(0))
            if kp<2: vmc.add("xst")
        weave(A,[mfma32(ACC+16*c,F+4+4*c,F,(ACC+16*c) if kp else "0") for c in (2,1,0)],fill)
        if fl: flag_store(A,"p1_f1",0,f"s_lshl_b32 s59, s98, 10\ns_lshl_b32 s88, s99, 7\ns_add_u32 s59, s59, s88\ns_add_u32 s59, s59, {FL1}",60,61)
    st.mark(A,3)
    V=ACC+32; Kk=ACC+16
    A("s_nop 9")
    for d in range(8): A(f"v_cvt_pk_bf16_f32 v{V+d}, v{V+2*d}, v{V+2*d+1}")
    for q in range(4): A(f"ds_write_b64 v20, {vr(V+2*q,2)} offset:{16*q}")
    for d in range(8): A(f"v_cvt_pk_bf16_f32 v{Kk+d}, v{Kk+2*d}, v{Kk+2*d+1}")
    A("s_waitcnt lgkmcnt(0)")
    for hh in range(2):
        for ii in range(2): A(f"ds_read_b64_tr_b16 {vr(V+4*hh+2*ii,2)}, v22 offset:{32*hh+512*ii}")
    A(f"buffer_store_dwordx4 {vr(Kk,4)}, v2, s[32:35], s68 offen sc1\nbuffer_store_dwordx4 {vr(Kk+4,4)}, v2, s[32:35], s69 offen sc1")
    A("s_waitcnt lgkmcnt(0)")
    A(f"buffer_store_dwordx4 {vr(V,4)}, v2, s[32:35], s68 offen offset:1024 sc1\nbuffer_store_dwordx4 {vr(V+4,4)}, v2, s[32:35], s69 offen offset:1024 sc1")
    for r in range(0,16,2): A(f"v_pk_mul_f32 {vr(ACC+r,2)}, {vr(ACC+r,2)}, v[24:25]")
    for d in range(8): A(f"v_cvt_pk_bf16_f32 v{ACC+d}, v{ACC+2*d}, v{ACC+2*d+1}")
    A(f"buffer_store_dwordx4 {vr(ACC,4)}, v2, s[32:35], s70 offen sc1\nbuffer_store_dwordx4 {vr(ACC+4,4)}, v2, s[32:35], s71 offen sc1")
    st.mark(A,49)
    A("s_setprio 0\ns_branch p1_join")
    A.label("p1_help")
    hs=list(SM); hper=(len(hs)+HSN-1)//HSN
    nxt=NW1
    if nxt<4:
        for l in dmaW(vmh,nxt,[0,1]): A(l)
        nxt+=1
    for d in range(8 if U1H==1 else 7):
        for l in hs[:hper]: A(l)
        hs=hs[hper:]
        if d==HSN-1:
            A(f"v_and_b32 v22, 15, v0\nv_lshlrev_b32 v22, 7, v22\ns_lshl_b32 s56, s46, 11\ns_add_u32 s56, s56, {FL1}")
            A("s_cmp_eq_u32 s44, 7\ns_cselect_b32 s26, 0, s26\ns_cselect_b32 s30, 0, s30\ns_cselect_b32 s38, 0, s38")
        st.mark(A,40+d)
        if d<7: A(f"s_waitcnt vmcnt({vmh.n_after(('W',d+1))})")
        st.mark(A,32+d)
        A("s_barrier")
        if nxt<8:
            assert nxt<=d+4
            for l in dmaW(vmh,nxt,[0,1]): A(l)
            nxt+=1
        if EARLY:
            if d==4: A("buffer_load_dword v23, v22, s[32:35], s56 offen sc1"); vmh.add("f1")
            if d==5:
                for l in dmaUW(vmh,0,0)+dmaUW(vmh,0,1): A(l)
            if d==6:
                poll_check(A,"p1_c1",22,23,"s56",8,False)
                for hi in range(2):
                    for l in dmaUX(vmh,0,hi): A(l)
        else:
            if d==5:
                for l in dmaUW(vmh,0,0): A(l)
            if d==6:
                for l in dmaUW(vmh,0,1): A(l)
                A("buffer_load_dword v23, v22, s[32:35], s56 offen sc1"); vmh.add("f1")
    if not EARLY:
        poll_check(A,"p1_c1",22,23,"s56",0,False)
        st.mark(A,48)
        for hi in range(2):
            for l in dmaUX(vmh,0,hi): A(l)
    if U1H:
        for hi in range(2):
            for l in dmaU(vmh,1,hi): A(l)
    st.mark(A,49)
    A(f"s_waitcnt vmcnt({12 if U1H else 0})")
    st.mark(A,55)
    A.label("p1_join")
    A("s_cmp_eq_u32 s44, 7\ns_cselect_b32 s26, 0, s26\ns_cselect_b32 s30, 0, s30\ns_cselect_b32 s38, 0, s38")
    for i in range(8): A(f"v_mov_b32 v{VA+i}, 0")
    A("s_mov_b32 exec_lo, 0x110000\ns_mov_b32 exec_hi, 0x110000")
    for i in range(8): A(f"v_mov_b32 v{VA+i}, 0x3f803f80")
    A("s_mov_b64 exec, -1")
    A(f"v_lshrrev_b32 v30, 1, v0\nv_lshlrev_b32 v30, 7, v30\nv_and_b32 v31, 1, v0\nv_lshl_add_u32 v30, v31, 2, v30\ns_lshr_b32 s56, s43, 1\ns_lshl_b32 s56, s56, 12\ns_add_u32 s56, s56, {FL2}"+ONLY7)
    if TB:
        for k_ in range(4): A(f"v_add_u32 v{a3+k_}, {B3}, v{aX+4+k_}")
        for k_ in range(2): A(f"v_add_u32 v{a3+4+k_}, {B3}, v{aW+2+k_}")
    st.mark(A,4)
    vm=VM(); vm.add(("U",1)); vm.add(("U",0))
    if F2G<0: vm=VM(); vm.add(("U",0)); vm.add(("U",1))
    def f2flag():
        if F2G<0: A("s_cmp_ge_u32 s40, 4\ns_cbranch_scc1 j_nw\ns_waitcnt vmcnt(0)\nj_nw:")
        else: A(f"s_waitcnt vmcnt({vm.n_after(('U',0))})")
        flag_store(A,"p1_f2",None,f"s_lshl_b32 s59, s99, 1\ns_add_u32 s59, s59, s42\ns_lshl_b32 s59, s59, 5\ns_add_u32 s59, s59, s98\ns_lshl_b32 s59, s59, 5\ns_add_u32 s59, s59, s41\ns_lshl_b32 s59, s59, 2\ns_add_u32 s59, s59, {FL2}",28,29,"s_cmp_lt_u32 s40, 4"); vm.add("fs")
        st.mark(A,57)
    if NPRE==1 or F2G<0: f2flag()
    kv=lambda t: ((t//4)%3)*KVS+(t%4)*2048
    def up_reads(g):
        n,ks=g//4,g%4; F=FR[g%2]; b=ub(n)
        L=[f"ds_read_b128 {vr(F+8+4*t,4)}, v{aX+4*b+ks} offset:{t*4096}" for t in range(2)]
        for jj in range(2):
            for i in range(2): L.append(f"ds_read_b64_tr_b16 {vr(F+4*jj+2*i,2)}, v{(aW+2*b+jj) if b<2 else (a3+4+jj)} offset:{(16*ks+4*i)*128}")
        return L
    def up_mf(g):
        F=FR[g%2]
        return [mfma32(GACC+16*(2*t+jj),F+4*jj,F+8+4*t,(GACC+16*(2*t+jj)) if g else "0") for t in range(2) for jj in range(2)]
    def dn_reads(g):
        n,u=g//4,g%4; F=FR[g%2]; b=n%2; L=[]
        for k in range(2):
            ks=2*u+k
            L.append(f"ds_read_b128 {vr(F+8+4*k,4)}, v{aH+b} offset:{ks*1024}")
            for i in range(2): L.append(f"ds_read_b64_tr_b16 {vr(F+4*k+2*i,2)}, v{aD+b} offset:{ks*2048+i*1024}")
        return L
    def dn_mf(g):
        F=FR[g%2]
        return [mfma32(DACC,F+4*k,F+8+4*k,DACC if (g or k) else "0") for k in range(2)]
    def up_epi(ti):
        acc=GACC+16*ti; t,jj=ti//2,ti%2
        L=[f"v_max_f32 v{acc+r}, 0, v{acc+r}" for r in range(8)]+[f"v_mul_f32 v{acc+r}, v{acc+r}, v{acc+8+r}" for r in range(8)]
        L+=[f"v_cvt_pk_bf16_f32 v{acc+d}, v{acc+2*d}, v{acc+2*d+1}" for d in range(4)]
        L.append(f"buffer_store_dwordx4 {vr(acc,4)}, v2, s[36:39], s{54+t} offen offset:{1024*jj} sc1")
        return L
    for n in range(NPRE):
        if n==NPRE-1:
            if n==0: A("buffer_load_dword v31, v30, s[32:35], s56 offen sc1"); vm.add("f2")
            st.mark(A,56)
            poll_check(A,"m_c2",30,31,"s56",vm.n_after("f2"))
        A((f"s_waitcnt vmcnt({vm.n_after(('U',n))}) lgkmcnt(0)" if n else "s_waitcnt lgkmcnt(0)")+"\ns_barrier")
        if n==2: st.mark(A,7)
        st.mark(A,50+n)
        if n==NPRE-1:
            A(f"s_lshl_b32 s59, s43, 6\ns_add_u32 s59, s59, s45\ns_lshl_b32 s59, s59, 10\nbuffer_load_dwordx4 {vr(Q,4)}, v2, s[32:35], s59 offen sc1"); vm.add("q")
            for l in dmaKV(vm,0)+dmaKV(vm,1): A(l)
        nn=n+1
        if TB: nn={0:2,1:3,2:4}.get(n,None)
        dml=dmaU(VM(),nn) if (nn is not None and (TB or n or not U1H)) else []
        for u in range(4):
            g=4*n+u
            if u>0: A("s_waitcnt lgkmcnt(0)")
            fill=up_reads(g)
            if g==PG and NPRE>1: fill.append("buffer_load_dword v31, v30, s[32:35], s56 offen sc1"); vm.add("f2")
            kk=2 if TB else 3
            fill+=dml[:kk]; vm.add(("U",nn),len(dml[:kk])); dml=dml[kk:]
            if g>0: weave(A,up_mf(g-1),fill)
            else:
                for l in fill: A(l)
            if g==F2G and NPRE>1: f2flag()
    st.mark(A,5)
    A(f"s_waitcnt vmcnt({vm.n_after(('KV',0))})\ns_barrier")
    st.mark(A,6)
    A(f"ds_read_b128 {vr(K,4)}, v{aK}")
    A(f"s_mov_b64 exec, s[52:53]\nds_read_b128 {vr(VA,4)}, v3\ns_mov_b64 exec, -1")
    A("s_waitcnt lgkmcnt(1)")
    A(mfma32(SA,K,Q,"0"))
    for r in range(16): A(f"v_mov_b32 v{O+r}, 0")
    def max16(dst,S,first):
        if first:
            A(f"v_max3_f32 v{dst}, v{S}, v{S+1}, v{S+2}\nv_max_f32 v{dst}, v{dst}, v{S+3}")
            s0=4
        else: s0=0
        for r in range(s0,16,2): A(f"v_max3_f32 v{dst}, v{dst}, v{S+r}, v{S+r+1}")
    max16(28,SA,True)
    A(f"v_add_f32 v28, {f2u(MOFF):#x}, v28")
    A(f"v_mov_b32 v29, v28\nv_mov_b32 v{P+4}, 0\nv_mov_b32 v{P+5}, 0\nv_permlane32_swap_b32 v28, v29\nv_max_f32 v28, v28, v29")
    for r in range(16): A(f"v_sub_f32 v{C+r}, 0, v28")
    A(f"v_mov_b32 v{P+6}, 0\nv_mov_b32 v{P+7}, 0")
    A(mfma32(SA,K,Q,C))
    A(f"ds_read_b128 {vr(K,4)}, v{aK} offset:2048\ns_nop 5")
    if PRIO: A("s_setprio 1")
    UP0=-NPRE; D0=UP0+8+DGAP
    for it in range(16):
        needs=[]
        if it+1<16: needs.append(vm.n_after(("KV",it+1)))
        n=it-UP0; dn=it-D0
        if 0<=n<8: needs.append(vm.n_after(("U",n)))
        if 0<=dn<7 and not E("X_NOWAIT",0): needs.append(vm.n_after(("D",dn)))
        if dn==-1: poll_check(A,"m_c3",30,31,"s56",vm.n_after("f3"))
        A((f"s_waitcnt vmcnt({min(needs)}) lgkmcnt(0)" if needs else "s_waitcnt lgkmcnt(0)")+"\ns_barrier")
        st.mark(A,8+it)
        if PRIO: A(f"s_cmp_lt_u32 s40, 4\ns_cbranch_scc1 m_pa{it}\ns_setprio 2\nm_pa{it}:")
        if n==9:
            A(f"s_lshl_b32 s56, s43, 4\ns_add_u32 s56, s56, {(FL3-FL1)//128}\nv_lshrrev_b32 v30, 2, v0\nv_add_u32 v30, s56, v30\nv_lshlrev_b32 v30, 7, v30\nv_and_b32 v31, 3, v0\nv_lshl_add_u32 v30, v31, 2, v30\nv_and_b32 v31, 7, v0\ns_lshl_b32 s56, s43, 3\nv_add_u32 v31, s56, v31\nv_lshlrev_b32 v31, 7, v31\nv_cmp_lt_u32 vcc, 55, v0")
            A(f"s_mov_b32 s56, {FL1}"+ONLY7+"\nv_cndmask_b32 v30, v30, v31, vcc")
        dml=[]
        if dn+1==0: dml+=dmaDH(vm,0)
        if it+2<16 and E("KVF",0): dml+=dmaKV(vm,it+2)
        if 0<dn+1<7: dml+=dmaDH(vm,dn+1)+dmaDW(vm,dn+1)
        if 2<=n+1<8: dml+=dmaU(vm,n+1)
        if it+2<16 and not E("KVF",0): dml+=dmaKV(vm,it+2)
        if n==7: dml+=dmaDW(vm,0)
        if dn==6: dml+=dmaWO(vm)
        if n==7 and WOT: dml.append("s_lshl_b32 s59, s2, 3\ns_add_u32 s59, s59, s40\ns_lshl_b32 s59, s59, 8\nv_lshlrev_b32 v28, 7, v0\ns_mov_b64 exec, 3\nbuffer_load_dword v195, v28, s[60:63], s59 offen\ns_mov_b64 exec, -1"); vm.add("t")
        if it==14:
            dml.append(f"s_lshl_b32 s57, s43, 16\ns_lshl_b32 s68, s40, 13\ns_add_u32 s57, s57, s68\ns_lshl_b32 s68, s44, 7\ns_add_u32 s57, s57, s68\nv_lshrrev_b32 v{XR+4}, 3, v0\nv_lshlrev_b32 v{XR+4}, 10, v{XR+4}\nv_and_b32 v{XR+5}, 7, v0\nv_lshl_add_u32 v{XR+4}, v{XR+5}, 4, v{XR+4}\n"+
                       f"buffer_load_dwordx4 {vr(XR,4)}, v{XR+4}, s[16:19], s57 offen"); vm.add("x")
        for u in range(4):
            t=4*it+u
            if PRIO and u==PRIO: A(f"s_cmp_lt_u32 s40, 4\ns_cbranch_scc1 m_pb{it}\ns_setprio 0\nm_pb{it}:")
            if PROG and u!=1: A(f"s_setprio {[3,3,2,1][u]}")
            Sc,Sn=(SA,SB) if u%2==0 else (SB,SA)
            val=[f"v_exp_f32 v{Sc+r}, v{Sc+r}" for r in range(8)]+[f"v_cvt_pk_bf16_f32 v{P+d}, v{Sc+2*d}, v{Sc+2*d+1}" for d in range(4)]+[f"v_exp_f32 v{Sc+r}, v{Sc+r}" for r in range(8,16)]+[f"v_cvt_pk_bf16_f32 v{P+d}, v{Sc+2*d}, v{Sc+2*d+1}" for d in range(4,8)]
            g=4*n+u; gd=4*dn+u
            ex=[]; rds=[]
            if 0<=g-1<32: ex+=up_mf(g-1)
            if 0<=g<32: rds+=up_reads(g)
            if 0<=gd-1<28: ex+=dn_mf(gd-1)
            if 0<=gd<28: rds+=dn_reads(gd)
            extra=[]; post=''
            if n==8 and u in (1,2):
                for ti in ([0,1],[2,3])[u-1]: extra+=up_epi(ti); vm.add("hst")
            if 4*n+u==F3G:
                B=Asm(); flag_store(B,"m_f3",None,f"s_lshl_b32 s59, s46, 1\ns_add_u32 s59, s59, s41\ns_lshl_b32 s59, s59, 4\ns_add_u32 s59, s59, s47\ns_lshl_b32 s59, s59, 5\ns_lshr_b32 s68, s40, 1\ns_add_u32 s59, s59, s68\ns_lshl_b32 s59, s59, 2\ns_add_u32 s59, s59, {FL3}",28,29,"s_cmp_lg_u32 s44, 7")
                post=f"s_waitcnt vmcnt({vm.n_after('hst')})\n"+B.text(); vm.add("fs")
            if dn==-2 and u==F3U: extra.append("buffer_load_dword v31, v30, s[32:35], s56 offen sc1"); vm.add("f3")
            SPR=E("SPR",3)
            k=len(dml) if (n in (8,9) or u>=SPR-1) else (len(dml)+SPR-u-1)//(SPR-u)
            if E("X_NODMA",0) and dn>=0: dml=[x for x in dml if "s81" in x]; k=len(dml)
            mine=dml[:k]; dml=dml[k:]
            EXm="s_mov_b64 exec, s[52:53]"; EN="s_mov_b64 exec, -1"
            qk=[mfma32(Sn,K,Q,C)]+([f"ds_read_b128 {vr(K,4)}, v{aK} offset:{kv(t+2)}"] if t+2<64 else [])
            if t==63: qk=[]
            pv1=[mfma32(O,VB,P+4,O),EXm,f"ds_read_b128 {vr(VB,4)}, v3 offset:{kv(t)+512}",EN]
            pv0=[mfma32(O,VA,P,O)]+([EXm,f"ds_read_b128 {vr(VA,4)}, v3 offset:{kv(t+1)}",EN] if t+1<64 else [])
            nx=len(ex); e=[[m] for m in ex]
            seq={0:[qk,pv1,pv0],2:[qk]+e[0:1]+[pv1,pv0]+e[1:2],4:[qk]+e[0:1]+[pv1]+e[1:3]+[pv0]+e[3:4]}[nx]
            ng=len(seq)
            for i,x in enumerate(rds): seq[min(ng-2,(i*(ng-1))//max(1,len(rds)))].append(x)
            for i,x in enumerate(mine): seq[(i*ng)//len(mine)].append(x)
            if u>0: A("s_waitcnt lgkmcnt(0)")
            val=val+extra
            cost=[8 if "exp" in x else 4 for x in val]; tot=sum(cost); acc=0; gi=0
            for i,x in enumerate(val):
                if PROG and u==3 and i==12: A("s_setprio 0")
                while gi<ng and ((acc>=tot*gi/ng and not (seq[gi] is pv0 and i<14)) or (seq[gi] is pv1 and i>=19)):
                    for y in seq[gi]: A(y)
                    gi+=1
                A(x); acc+=cost[i]
            while gi<ng:
                for y in seq[gi]: A(y)
                gi+=1
            if post: A(post)
    A("s_waitcnt lgkmcnt(0)\ns_nop 0")
    A(mfma32(O,VB,P+4,O))
    if D0+7>=16:
        for m in dn_mf(4*(16-D0)-1): A(m)
    st.mark(A,24)
    A(f"s_lshl_b32 s59, s45, 5\ns_add_u32 s59, s59, s43\ns_lshl_b32 s59, s59, 10\ns_add_u32 s70, s59, {WS_O}\ns_nop 7")
    A(f"v_max3_f32 v28, |v{O}|, |v{O+1}|, |v{O+2}|\nv_max3_f32 v28, v28, |v{O+3}|, |v{O+4}|\nv_max3_f32 v28, v28, |v{O+5}|, |v{O+6}|")
    A(f"v_max3_f32 v28, v28, |v{O+7}|, v{O+8}")
    A(f"v_add_f32 v29, v{O}, v{O+1}")
    for r in range(2,9): A(f"v_add_f32 v29, v29, v{O+r}")
    A("v_fma_f32 v28, 0, v29, v28")
    A(f"v_cmp_ngt_f32 vcc, {f2u(2.0**125):#x}, v28")
    A("s_nop 4\ns_cbranch_vccnz m_fallback")
    A.label("m_fin")
    A(f"v_rcp_f32 v28, v{O+8}\ns_nop 0")
    for r in range(8): A(f"v_mul_f32 v{O+r}, v28, v{O+r}")
    for d in range(4): A(f"v_cvt_pk_bf16_f32 v{P+d}, v{O+2*d}, v{O+2*d+1}")
    for d in range(4): A(f"v_min_u32 v{P+d}, -2, v{P+d}")
    A(f"buffer_store_dwordx4 {vr(P,4)}, v2, s[32:35], s70 offen sc1"); vm.add("ost")
    QS=1056; PS=8*QS
    A(f"s_lshl_b32 s68, s41, 1\ns_add_u32 s68, s68, s48\ns_mul_i32 s68, s68, {PS}\ns_mul_i32 s69, s42, {4*QS}\ns_add_u32 s68, s68, s69\ns_add_u32 s68, s68, {GB[0]}\nv_add_u32 v28, s68, v2")
    A(f"v_mul_u32_u24 v29, {QS}, v{XR+5}\nv_lshrrev_b32 v30, 3, v0\nv_lshl_add_u32 v29, v30, 4, v29\ns_lshr_b32 s68, s101, 3\ns_add_u32 s68, s68, {GB[0]}\nv_add_u32 v29, s68, v29")
    A(f"s_mul_i32 s68, s48, {4*PS}\nv_add_u32 v37, s68, v29\ns_mul_i32 s68, s48, {2*PS}\nv_add_u32 v29, s68, v29\ns_mul_i32 s68, s40, {PS}\ns_add_u32 s68, s68, {GB[0]}\nv_add_u32 v36, s68, v2")
    for dn in range(max(0,16-D0),7):
        A(f"s_waitcnt vmcnt({vm.n_after(('D',dn))})\ns_barrier")
        for l in dn_reads(4*dn): A(l)
        dml=(dmaDH(vm,dn+1)+dmaDW(vm,dn+1)) if dn<6 else dmaWO(vm)
        for u in range(4):
            A("s_waitcnt lgkmcnt(0)")
            weave(A,dn_mf(4*dn+u),(dn_reads(4*dn+u+1) if u<3 else [])+dml[2*u:2*u+2])
    A(f"s_lshl_b32 s68, s48, 14\ns_add_u32 s68, s68, 32768\ns_lshl_b32 s69, s101, 4\ns_sub_u32 s68, s69, s68\nv_add_u32 v34, s68, v{aD+1}\ns_lshl_b32 s68, s42, 6\nv_xor_b32 v34, s68, v34\nv_xor_b32 v35, 64, v34")
    A(f"s_lshl_b32 s70, s43, 1\ns_add_u32 s70, s70, s48\ns_lshl_b32 s70, s70, 15\ns_lshl_b32 s68, s101, 3\ns_add_u32 s70, s70, s68\ns_add_u32 s70, s70, {WS_O}\ns_add_u32 s71, s70, 4096")
    A(f"s_waitcnt vmcnt({vm.n_after('wo')})\ns_barrier")
    st.mark(A,25)
    for q in range(4): A(f"ds_write_b128 v28, {vr(DACC+4*q,4)} offset:{q*QS}")
    AF=128; OF=64; ACS=96; G=56
    rd=[f"ds_read_b64_tr_b16 {vr(AF+8*n+4*cb+2*i,2)}, v{34+cb} offset:{n*2048+i*1024}" for n in range(8) for cb in range(2) for i in range(2)]
    ol=[f"buffer_load_dwordx4 {vr(OF+4*i,4)}, v2, s[32:35], {'s70' if i<4 else 's71'} offen offset:{1024*(i%4)} sc1" for i in range(8)]
    A(f"s_mov_b32 s59, {SPIN//8}")
    for l in ol[:OE]: A(l)
    A("s_waitcnt lgkmcnt(0)\ns_barrier")
    for kh in range(2):
        for hh in range(2): A(f"ds_read_b128 {vr(40+8*kh+4*hh,4)}, v29 offset:{kh*PS+hh*512}")
    for l in rd[:8]: A(l)
    A("s_waitcnt lgkmcnt(8)")
    val=[f"v_add_f32 v{G+r}, v{40+r}, v{48+r}" for r in range(8)]+[f"v_mul_f32 v{40+r}, {f2u(-LOG2E):#x}, v{G+r}" for r in range(8)]+[f"v_exp_f32 v{40+r}, v{40+r}" for r in range(8)]+[f"v_add_f32 v{40+r}, 1.0, v{40+r}" for r in range(8)]+[f"v_rcp_f32 v{40+r}, v{40+r}" for r in range(8)]+[f"v_mul_f32 v{G+r}, v{G+r}, v{40+r}" for r in range(8)]
    for i,x in enumerate(val):
        A(x)
        if i<24: A(rd[8+i])
        if OE and i%6==5 and OE+i//6<8: A(ol[OE+i//6])
    for d in range(4): A(f"v_lshlrev_b32 v{40+2*d}, 16, v{XR+d}\nv_and_b32 v{41+2*d}, 0xffff0000, v{XR+d}")
    A("s_waitcnt lgkmcnt(0)\ns_barrier")
    st.mark(A,26)
    if OE: A("s_branch m_ochk")
    A.label("m_oretry")
    for l in ol: A(l)
    A.label("m_ochk")
    A("v_mov_b32 v38, 0")
    for n in range(8):
        A(f"s_waitcnt vmcnt({7-n})")
        A(mfma32(ACS,AF+8*n,OF+4*n,ACS if n else "0"))
        A(f"v_max3_u32 v38, v38, v{OF+4*n}, v{OF+4*n+1}\nv_max3_u32 v38, v38, v{OF+4*n+2}, v{OF+4*n+3}")
        A(mfma32(ACS+16,AF+8*n+4,OF+4*n,(ACS+16) if n else "0"))
    A("v_cmp_eq_u32 vcc, -1, v38\ns_sub_u32 s59, s59, 1\ns_cselect_b64 s[68:69], 0, -1\ns_nop 2\ns_and_b64 vcc, vcc, s[68:69]\ns_cbranch_vccnz m_oretry")
    st.mark(A,27)
    A("s_nop 5")
    for q in range(8): A(f"ds_write_b128 v36, {vr(ACS+4*q,4)} offset:{q*QS}")
    A("s_waitcnt lgkmcnt(0)\ns_barrier")
    T=64
    for kq in range(4):
        for hh in range(2): A(f"ds_read_b128 {vr(T+8*kq+4*hh,4)}, v37 offset:{kq*PS+hh*512}")
    A("s_waitcnt lgkmcnt(4)")
    for r in range(8): A(f"v_add_f32 v{T+r}, v{T+r}, v{T+8+r}")
    A("s_waitcnt lgkmcnt(0)")
    for r in range(8): A(f"v_add_f32 v{T+16+r}, v{T+16+r}, v{T+24+r}")
    for r in range(8): A(f"v_add_f32 v{T+r}, v{T+r}, v{T+16+r}")
    for r in range(8): A(f"v_fma_f32 v{40+r}, v{T+r}, v{G+r}, v{40+r}")
    for d in range(4): A(f"v_cvt_pk_bf16_f32 v{48+d}, v{40+2*d}, v{41+2*d}")
    A(f"buffer_store_dwordx4 v[48:51], v{XR+4}, s[64:67], s57 offen"+os.environ.get("OF",""))
    flag_store(A,"m_bump",0,f"s_mov_b32 s59, {WS_T}",32,33,"s_cmp_eq_u32 s2, 0")
    if STAMP:
        st.mark(A,28)
        A("s_waitcnt vmcnt(0)")
        st.mark(A,29)
        A(f"v_subrev_u32 v250, {'s92' if STAMP==2 else 's94'}, v250\ns_memrealtime s[96:97]\ns_waitcnt lgkmcnt(0)\nv_writelane_b32 v250, s92, 30\nv_writelane_b32 v250, s96, 31")
        A(f"s_lshl_b32 s96, s2, 3\ns_add_u32 s96, s96, s40\ns_lshl_b32 s96, s96, 8\ns_add_u32 s96, s96, {WS_ST}\nv_lshlrev_b32 v251, 2, v0\nbuffer_store_dword v250, v251, s[32:35], s96 offen")
    if E("PAD",0):
        A.label("k_pad")
        A(f"s_memrealtime s[96:97]\ns_waitcnt lgkmcnt(0)\ns_sub_u32 s96, s96, s92\ns_cmp_lt_u32 s96, {E('PAD',0)}\ns_cbranch_scc1 k_pad")
    if E("DBG",0):
        A("s_cmp_eq_u32 s40, 0\ns_cbranch_scc0 k_end\ns_load_dwordx2 s[4:5], s[0:1], 64\ns_memrealtime s[96:97]\ns_memtime s[6:7]\ns_waitcnt vmcnt(0) lgkmcnt(0)")
        srd(A,8,4,256)
        A("s_not_b32 s92, s92\ns_sub_u32 s6, s6, s94\nv_mov_b32 v1, 0\nv_mov_b32 v2, s92\nv_mov_b32 v3, s96\nv_mov_b32 v4, s6\ns_mov_b64 exec, 1")
        A("buffer_atomic_umax v2, v1, s[8:11], 0 offen\nbuffer_atomic_umax v3, v1, s[8:11], 0 offen offset:4\nbuffer_atomic_umax v4, v1, s[8:11], 0 offen offset:8")
        if STAMP:
            for k,l in enumerate([0,1,2,3,49,50,6,8,16,24,25,26,29]):
                A(f"v_readlane_b32 s6, v250, {l}\ns_nop 3\nv_mov_b32 v4, s6\nbuffer_atomic_umax v4, v1, s[8:11], 0 offen offset:{12+4*k}")
    A.label("k_end")
    A("s_endpgm")
    for name,va,vd,so in spins:
        A.label(name+"_spin")
        A(f"s_mov_b32 s59, {SPIN}")
        A.label(name+"_l")
        A(f"s_sleep {SLEEP}\nbuffer_load_dword v{vd}, v{va}, s[32:35], {so} offen sc1\ns_waitcnt vmcnt(0)\nv_cmp_ne_u32 vcc, s58, v{vd}\ns_sub_u32 s59, s59, 1\ns_nop 3")
        A(f"s_cbranch_vccz {name}_ret\ns_cmp_lg_u32 s59, 0\ns_cbranch_scc1 {name}_l\ns_branch {name}_ret")
    A.label("m_fallback")
    A(f"s_sub_u32 s68, s49, s101\ns_mov_b32 s69, 0\nv_mov_b32 v28, 0xff800000\nv_subrev_u32 v30, {KVB}, v3")
    A.label("m_fb1")
    A(f"buffer_load_dwordx4 {vr(K,4)}, v2, s[32:35], s68 offen sc1\ns_add_u32 s68, s68, 2048\ns_waitcnt vmcnt(0)")
    A(mfma32(SA,K,Q,"0"))
    A("s_nop 15")
    max16(28,SA,False)
    A("s_add_u32 s69, s69, 1\ns_cmp_lt_u32 s69, 64\ns_cbranch_scc1 m_fb1")
    A("v_mov_b32 v29, v28\ns_nop 1\nv_permlane32_swap_b32 v28, v29\nv_max_f32 v28, v28, v29")
    for r in range(16): A(f"v_sub_f32 v{C+r}, 0, v28\nv_mov_b32 v{O+r}, 0")
    A(f"s_sub_u32 s68, s49, s101\ns_mov_b32 s69, 0")
    A.label("m_fb2")
    A(f"buffer_load_dwordx4 {vr(K,4)}, v2, s[32:35], s68 offen sc1\ns_mov_b64 exec, s[52:53]\nbuffer_load_dwordx4 {vr(VA,4)}, v30, s[32:35], s68 offen sc1\nbuffer_load_dwordx4 {vr(VB,4)}, v30, s[32:35], s68 offen offset:512 sc1\ns_mov_b64 exec, -1")
    A("s_add_u32 s68, s68, 2048\ns_waitcnt vmcnt(0)")
    A(mfma32(SA,K,Q,C))
    A("s_nop 15")
    for r in range(16): A(f"v_exp_f32 v{SA+r}, v{SA+r}")
    for d in range(8): A(f"v_cvt_pk_bf16_f32 v{P+d}, v{SA+2*d}, v{SA+2*d+1}")
    A("s_nop 1")
    A(mfma32(O,VA,P,O)); A(mfma32(O,VB,P+4,O))
    A("s_add_u32 s69, s69, 1\ns_cmp_lt_u32 s69, 64\ns_cbranch_scc1 m_fb2")
    A("s_nop 15\nk_last:\ns_branch m_fin")

def main(out):
    hdr=open("cdna_kernels/"+NAME+".s.ref").read().split("\n")
    head=[l for l in hdr if l.startswith(";") and "@launch" not in l]
    T="\n".join(head)+"\n"
    if E("LIST",0)==2: T+=f"; @launch kernel={KN} grid=(256,1,1) block=(512,1,1) lds={LDS}\n"
    if E("LIST",0): T+=f"; @launch kernel={KN} grid=(256,1,1) block=(512,1,1) lds={LDS}\n"
    else: T+=f"; @launch grid=(256,1,1) block=(512,1,1) lds={LDS}\n"
    T+='.amdgcn_target "amdgcn-amd-amdhsa--gfx950"\n.text\n'
    A=Asm(); kern(A)
    for e in hazard_check(A.text()): print(e)
    T+=f".globl {KN}\n.p2align 8\n.type {KN},@function\n"+A.text()
    T+='.section .rodata,"a"\n'+kdesc(KN,256,102)
    open(out,"w").write(T)
if __name__=="__main__":
    main(sys.argv[1] if len(sys.argv)>1 else "cdna_kernels/"+NAME+".s")
```

```python
import sys, struct, os, copy
from asmlib import *
NAME="recurrent_scan__mha_block__glu_gated_reglu__prompt"
KN=NAME+"_kernel"
WS_Q=0; WS_KV=2<<20; WS_H=6<<20; WS_O=13<<20; WS_XN=22<<20; WS_FL=21<<20; WS_T=WS_FL+98304; WS_SIZE=32<<20; WS_ST=24<<20
FL1=WS_FL; FL2=WS_FL+32768; FL3=WS_FL+524288; FL2=WS_FL+786432
def f2u(f): return struct.unpack("<I",struct.pack("<f",f))[0]
LOG2E=1.4426950408889634
E=lambda k,d: int(os.environ.get(k,str(d)))
STAMP=E("STAMP",0); TOUCH=E("TOUCH",0); G0=E("G0",0); PRIO=E("PRIO",0); NPRE=E("NPRE",4); DGAP=E("DGAP",5)
SPIN=400000
SLEEP=E('SLEEP',2)
CODEPF=E("CODEPF",1); WTOUCH=E("WTOUCH",0); NW0=E("NW0",1); NW1=E("NW1",2); F1D=E("F1D",2); F1P=E("F1P",22); F1C=E("F1C",25); PBURST=E("PBURST",1); U1H=E("U1H",2); UWD=E("UWD",6); TLB=E("TLB",0); OE=E("OE",2); HSN=E("HSN",5); LK=E("LK",1); PG=E("PG",10); EARLY=E("EARLY",1); F3U=E("F3U",1); F3G=E("F3G",36); W0L=E("W0L",0); RSW=E("RSW",1); XBAR=E("XBAR",0); F2G=E("F2G",2); HPRIO=E("HPRIO",0); PROG=E("PROG",1); ROT=E("ROT",1); WOT=E("WOT",1); UT=E("UT",0); UTK=E("UTK",27)
MOFF=float(E("MOFF",100))
class VM:
    def __init__(s): s.ops=[]
    def add(s,tag,n=1): s.ops+= [tag]*n
    def n_after(s,tag):
        idx=max(i for i,t in enumerate(s.ops) if t==tag)
        return len(s.ops)-1-idx
def weave(A,mf,fill):
    n=len(mf); k=len(fill); j=0
    for i,m in enumerate(mf):
        A(m)
        e=(k*(i+1))//n
        while j<e: A(fill[j]); j+=1
class St:
    def __init__(s): s.pend=None
    def mark(s,A,i):
        if STAMP:
            A(f"{'s_memrealtime' if STAMP==2 else 's_memtime'} s[96:97]\ns_waitcnt lgkmcnt(0)\nv_writelane_b32 v250, s96, {i}")
st=St()
WB=65536; GB=[65536,0]; KVB=131072; KVS=8192; VSC=114688; LDS=163840
Q,K,VA,VB,P,C,SA,SB,O=4,8,12,16,20,32,48,64,80
LA=16; LACC=246; IX1=3; IX2=207
sm32=f"v_smfmac_f32_32x32x32_bf16 {vr(O,16)}, {vr(VA,4)}, {vr(P,8)}, v{IX1}"
sm16=f"v_smfmac_f32_16x16x64_bf16 {vr(LACC,4)}, {vr(LA,4)}, {vr(P,8)}, v{IX2}"
FR=[96,112]; GACC=128; DACC=208
vG,vU,vD=192,193,194; aW,aH,aD=198,202,204; aK=206; XR=224; aX=232; vX=196
WS_XS=WS_FL+131072; WS_CS=WS_FL+262144
CSC=VSC+8192; SSC=VSC+12288
TB=E('TB',1); B3=114688; a3=240
def ub(n):
    if TB and n<2: return 1-n
    if TB and n==2: return 2
    return n%2
UB=[65536,0,B3]
SLOT=[0,32768,131072,65536,98304]
spins=[]
ONLY7="\ns_cmp_eq_u32 s40, 7\ns_cselect_b32 s56, s56, 0x7ff00000"
def poll_check(A,name,vaddr,vdst,soff,wait,only7=True):
    if only7: A(f"s_cmp_eq_u32 s40, 7\ns_cbranch_scc0 {name}_ret")
    A(f"s_waitcnt vmcnt({wait})\nv_cmp_ne_u32 vcc, s58, v{vdst}\ns_nop 4\ns_cbranch_vccnz {name}_spin\n{name}_ret:")
    spins.append((name,vaddr,vdst,soff))
def flag_store(A,name,wave,soff_code,va,vb,cond=None):
    A(soff_code)
    if wave is not None: A(f"s_cmp_eq_u32 s40, {wave}\ns_cselect_b32 s59, s59, 0x7ffffff0")
    if cond: A(f"{cond}\ns_cselect_b32 s59, s59, 0x7ffffff0")
    A(f"v_mov_b32 v{va}, s58\nv_mov_b32 v{vb}, 0\ns_mov_b64 exec, 1\nbuffer_store_dword v{va}, v{vb}, s[32:35], s59 offen sc1\ns_mov_b64 exec, -1")

def kern(A):
    vm=VM()
    A.label(KN)
    A("s_cmp_ge_u32 s2, 256\ns_cbranch_scc1 k_end")
    if STAMP or E("DBG",0) or E("PAD",0): A("s_memrealtime s[92:93]\ns_memtime s[94:95]")
    A("s_load_dwordx4 s[4:7], s[0:1], 0\ns_load_dwordx2 s[14:15], s[0:1], 72\ns_load_dwordx4 s[8:11], s[0:1], 32")
    A("s_load_dwordx4 s[72:75], s[0:1], 48\ns_load_dwordx2 s[12:13], s[0:1], 16")
    if CODEPF:
        A("s_getpc_b64 s[70:71]\nk_pc:\ns_and_b32 s68, s2, 0xf8\nv_add_u32 v26, s68, v0\nv_lshlrev_b32 v26, 7, v26\nv_min_u32 v26, k_last-k_pc, v26\nv_cmp_gt_u32 vcc, 8, v0\ns_and_saveexec_b64 s[68:69], vcc\ns_cbranch_execz k_nopf\nglobal_load_dword v26, v26, s[70:71]\nk_nopf:\ns_mov_b64 exec, -1")
    A("v_lshrrev_b32 v1, 6, v0\nv_and_b32 v0, 63, v0\nv_readfirstlane_b32 s40, v1")
    A("s_and_b32 s3, s2, 7\ns_lshr_b32 s59, s2, 3\ns_and_b32 s100, s59, 7")
    A("s_and_b32 s98, s3, 3\ns_lshl_b32 s98, s98, 3\ns_add_u32 s98, s98, s100")
    A("s_lshr_b32 s99, s3, 2\ns_lshl_b32 s99, s99, 2\ns_lshr_b32 s68, s59, 3\ns_add_u32 s99, s99, s68")
    A("s_add_u32 s100, s100, s99")
    A("v_lshrrev_b32 v20, 3, v0\nv_and_b32 v21, 7, v0\nv_lshrrev_b32 v1, 5, v0\ns_and_b32 s70, s40, 3\ns_lshl_b32 s101, s70, 10")
    A(f"v_lshrrev_b32 v22, 4, v0\nv_xor_b32 v22, v22, v21\nv_lshlrev_b32 v22, 4, v22\nv_lshl_add_u32 v{vX}, v20, 10, v22\ns_lshl_b32 s68, s70, 14\nv_add_u32 v{vX}, s68, v{vX}\nv_xor_b32 v{vX+1}, 64, v{vX}\nv_add_u32 v{vX+1}, 0x2000, v{vX+1}")
    A("v_bfe_u32 v31, v0, 4, 1\nv_lshlrev_b32 v31, 2, v31\nv_xor_b32 v31, v31, v21\nv_lshlrev_b32 v31, 4, v31")
    A("s_lshl_b32 s70, s70, 3\nv_add_u32 v29, s70, v20\nv_mul_u32_u24 v30, 3072, v29\nv_add_u32 v30, v30, v31\ns_lshl_b32 s68, s99, 7\nv_add_u32 v30, s68, v30")
    A("s_and_b32 s89, s99, 1\ns_lshl_b32 s89, s89, 2\ns_xor_b32 s89, s89, s40" if RSW else "s_mov_b32 s89, s40")
    if WTOUCH: A("v_lshlrev_b32 v24, 7, v0\ns_lshl_b32 s59, s2, 3\ns_add_u32 s59, s59, s40\ns_mul_i32 s59, s59, 768")
    A("v_and_b32 v22, 31, v0\ns_lshl_b32 s68, s89, 13\nv_lshlrev_b32 v11, 4, v21\nv_lshl_add_u32 v11, v20, 10, v11\nv_add_u32 v11, s68, v11\ns_lshl_b32 s57, s98, 16")
    A("s_waitcnt lgkmcnt(0)")
    srd(A,16,4,2048*1024); srd(A,20,6,512*3072)
    if WTOUCH: A("s_mov_b64 exec, 0x3f\nbuffer_load_dword v25, v24, s[20:23], s59 offen\ns_mov_b64 exec, -1")
    if TLB:
        A("s_cmp_lt_u32 s40, 6\ns_cbranch_scc1 k_notlb\ns_cmp_eq_u32 s40, 7\ns_cbranch_scc1 k_tlb7")
        A("v_lshlrev_b32 v24, 21, v0\ns_mov_b64 exec, 0xfff\nglobal_load_dword v26, v24, s[14:15] sc1\ns_branch k_tlbd")
        A.label("k_tlb7")
        A("v_lshlrev_b32 v24, 20, v0\ns_mov_b64 exec, 3\nglobal_load_dword v26, v24, s[8:9]\nglobal_load_dword v26, v24, s[10:11]\nglobal_load_dword v26, v24, s[72:73]\nglobal_load_dword v26, v24, s[74:75]\ns_mov_b64 exec, 1\nglobal_load_dword v26, v24, s[12:13]")
        A.label("k_tlbd")
        A("s_mov_b64 exec, -1")
        A.label("k_notlb")
    X=32
    vm=VM()
    for i in range(8):
        A(f"s_add_u32 s88, s100, {i}\ns_and_b32 s88, s88, 7\ns_lshl_b32 s88, s88, 7\ns_add_u32 s88, s88, s57\nbuffer_load_dwordx4 {vr(X+4*i,4)}, v11, s[16:19], s88 offen"); vm.add(("x",i))
    if XBAR==1: A("s_barrier")
    def dmaW(vm,d,his):
        L=[]; b=WB+(d%4)*24576
        for k,hi in enumerate(his):
            for c in range(3):
                vm.add(("W",d))
                if c==0: pre=f"s_add_u32 s88, s100, {d}\ns_and_b32 s88, s88, 7\ns_mul_i32 s59, s88, {64*3072}\n"+("s_add_u32 s59, s59, s91\n" if hi is None else (f"s_add_u32 s59, s59, {32*3072}\n" if hi else ""))
                else: pre="s_add_u32 s59, s59, 1024\n"
                m=f"s80, {b+c*8192}" if hi is None else f"s101, {b+c*8192+hi*4096}"
                L.append(f"s_add_u32 m0, {m}\n"+pre+"buffer_load_dwordx4 v30, s[20:23], s59 offen lds")
        return L
    srd(A,32,14,WS_SIZE)
    A(f"s_add_u32 s70, s14, {WS_T}\ns_addc_u32 s71, s15, 0\ns_load_dword s58, s[70:71], 0")
    A("s_and_b32 s41, s40, 1\ns_bfe_u32 s42, s40, 0x10001")
    A("v_lshrrev_b32 v4, 4, v0\ns_lshl_b32 s68, s41, 2\nv_xor_b32 v4, s68, v4\nv_xor_b32 v4, v4, v21\nv_lshlrev_b32 v4, 4, v4\nv_lshl_add_u32 v4, v20, 7, v4\ns_lshl_b32 s68, s89, 10\nv_add_u32 v4, s68, v4")
    A("v_mov_b32 v12, 0\nv_mov_b32 v13, 0\nv_mov_b32 v14, 0\nv_mov_b32 v15, 0")
    A("v_lshlrev_b32 v2, 4, v0\nv_mov_b32 v19, 0x3f803f80")
    A("s_lshr_b32 s48, s40, 2")
    A("s_lshl_b32 s80, s48, 12\ns_add_u32 s80, s80, s101")
    def setup_main():
        A=Asm()
        A("v_bfe_u32 v23, v0, 1, 3\nv_xor_b32 v23, v23, v1\nv_lshlrev_b32 v23, 4, v23\nv_lshl_add_u32 v23, v22, 7, v23")
        A("v_bfe_u32 v28, v0, 2, 2\nv_lshlrev_b32 v28, 7, v28\nv_and_b32 v24, 3, v0\nv_lshl_add_u32 v28, v24, 3, v28")
        A("v_bfe_u32 v24, v0, 3, 1\nv_xor_b32 v24, s42, v24\nv_lshl_add_u32 v28, v24, 6, v28\nv_bfe_u32 v27, v0, 4, 1\nv_lshl_add_u32 v28, v27, 5, v28")
        srd(A,24,8,512*3584); srd(A,28,10,512*3584); srd(A,36,14,WS_SIZE); srd(A,76,72,1792*1024); srd(A,60,12,512*1024); srd(A,64,74,2048*1024)
        A("s_bfe_u32 s59, s2, 0x20003\ns_lshl_b32 s43, s3, 2\ns_add_u32 s43, s43, s59")
        A("s_lshr_b32 s44, s2, 5")
        A("s_lshl_b32 s45, s44, 3\ns_add_u32 s45, s45, s40")
        A("s_lshr_b32 s46, s3, 1\ns_lshl_b32 s46, s46, 2\ns_add_u32 s46, s46, s59")
        A("s_and_b32 s47, s3, 1\ns_mul_i32 s47, s47, 7\ns_add_u32 s47, s47, s44")
        A(f"s_lshl_b32 s49, s43, 17\ns_add_u32 s49, s49, s101\ns_add_u32 s49, s49, {WS_KV}")
        A(f"s_lshl_b32 s50, s46, 17\ns_add_u32 s50, s50, {WS_XN}")
        A(f"v_mul_u32_u24 v{vG}, 3584, v29\nv_add_u32 v{vG}, v{vG}, v31\ns_lshl_b32 s68, s47, 8\nv_add_u32 v{vG}, s68, v{vG}\nv_xor_b32 v{vU}, 32, v{vG}")
        A(f"s_lshr_b32 s68, s101, 5\nv_add_u32 v29, s68, v20\nv_lshl_add_u32 v{vD}, v29, 10, v31\ns_lshl_b32 s68, s44, 7\nv_add_u32 v{vD}, s68, v{vD}")
        A(f"s_mul_i32 s51, s43, {224*1024}\ns_lshl_b32 s68, s101, 2\ns_add_u32 s51, s51, s68\ns_add_u32 s51, s51, {WS_H}")
        A(f"v_mul_u32_u24 v{IX1}, 0xaaaa, v27\nv_add_u32 v{IX1}, 0x4444, v{IX1}\nv_and_b32 v{IX2}, 1, v0\nv_mul_u32_u24 v{IX2}, 0xaaaa, v{IX2}\nv_add_u32 v{IX2}, 0x4444, v{IX2}\nv_add_u32 v{aK}, {KVB}, v2")
        A(f"s_lshl_b32 s68, s41, 13\nv_add_u32 v{aX+4}, s68, v23")
        for kq in range(1,4): A(f"v_xor_b32 v{aX+4+kq}, {32*kq}, v{aX+4}")
        for kq in range(4): A(f"v_add_u32 v{aX+kq}, 0x10000, v{aX+4+kq}")
        A(f"v_lshl_add_u32 v{aW+2}, v27, 13, v28\nv_lshl_add_u32 v{aW+2}, v1, 10, v{aW+2}\ns_lshl_b32 s68, s48, 14\ns_add_u32 s68, s68, 16384\nv_add_u32 v{aW+2}, s68, v{aW+2}")
        A(f"v_xor_b32 v{aW+3}, 32, v{aW+2}\nv_add_u32 v{aW}, 0x10000, v{aW+2}\nv_add_u32 v{aW+1}, 0x10000, v{aW+3}")
        A(f"s_lshl_b32 s68, s41, 14\ns_lshl_b32 s70, s48, 13\ns_add_u32 s68, s68, s70\nv_add_u32 v{aH+1}, s68, v2\nv_add_u32 v{aH}, 0x10000, v{aH+1}")
        A(f"v_lshl_add_u32 v{aD+1}, v1, 9, v28\ns_lshl_b32 s68, s48, 14\ns_add_u32 s68, s68, 32768\nv_add_u32 v{aD+1}, s68, v{aD+1}\nv_add_u32 v{aD}, 0x10000, v{aD+1}")
        A(f"s_lshl_b32 s54, s46, 2\ns_lshl_b32 s68, s41, 1\ns_add_u32 s54, s54, s68\ns_mul_i32 s54, s54, 112\ns_lshl_b32 s68, s47, 3\ns_add_u32 s54, s54, s68\ns_and_b32 s68, s40, 6\ns_add_u32 s54, s54, s68\ns_lshl_b32 s54, s54, 10\ns_add_u32 s54, s54, {WS_H}\ns_add_u32 s55, s54, {112*1024}")
        A(f"s_lshl_b32 s81, s48, 12\ns_add_u32 s81, s81, s49\ns_lshl_b32 s82, s48, 16\ns_add_u32 s82, s82, s50\ns_mul_i32 s83, s48, {32*3584}\ns_lshl_b32 s84, s48, 17\ns_mul_i32 s85, s48, {112*1024}\ns_add_u32 s85, s85, s51")
        A("s_lshr_b32 s86, s46, 1\ns_mul_i32 s68, s43, 37\ns_lshr_b32 s68, s68, 8\ns_mul_i32 s68, s68, 7\ns_sub_u32 s87, s43, s68")
        if not ROT: A("s_mov_b32 s86, 0\ns_mov_b32 s87, 0")
        return [x.strip() for x in A.lines]
    A(f"s_mul_i32 s91, s48, {32*3072}")
    if not W0L:
        for d in range(NW0):
            for l in dmaW(vm,d,[None]): A(l)
    SM=setup_main()
    for l in SM[:13]: A(l)
    SM=SM[13:]
    SM=SM[:24]+[l.replace("s59","s75").replace("s68","s74").replace("s70","s73") for l in SM[24:]]
    A(f"s_lshl_b32 s68, s41, 12\nv_add_u32 v5, s68, v23")
    for kq in range(1,4): A(f"v_xor_b32 v{5+kq}, {32*kq}, v5")
    A(f"v_lshl_add_u32 v9, v1, 10, v28\nv_add_u32 v9, {WB}, v9\nv_add_u32 v10, {2*24576}, v9")
    rotU=lambda n: f"s_add_u32 s88, s86, {n}\ns_and_b32 s88, s88, 7\n"
    rotD=lambda n: f"s_add_u32 s88, s87, {n}\ns_sub_u32 s89, s88, 7\ns_cmp_ge_u32 s88, 7\ns_cselect_b32 s88, s89, s88\n"
    def dmaKV(vm,it,hi=None):
        vm.add(("KV",it))
        if hi is None: return [f"s_add_u32 m0, s80, {KVB+(it%3)*KVS}\ns_add_u32 s59, s81, {it*8192}\nbuffer_load_dwordx4 v2, s[32:35], s59 offen sc1 lds"]
        return [f"s_add_u32 m0, s101, {KVB+(it%3)*KVS+hi*4096}\ns_add_u32 s59, s49, {it*8192+hi*4096}\nbuffer_load_dwordx4 v2, s[32:35], s59 offen sc1 lds"]
    def dmaUX(vm,n,hi=None):
        b=UB[ub(n)]; vm.add(("U",n),2)
        m,s,o1,o2=("s80","s82",0,0) if hi is None else ("s101","s50",hi*8192,hi*65536)
        return [f"s_lshl_b32 s59, {m}, 1\ns_add_u32 m0, s59, {b+o1}\n"+rotU(n)+f"s_lshl_b32 s59, s88, 7\ns_add_u32 s59, s59, {s}\n"+(f"s_add_u32 s59, s59, {o2}\n" if o2 else "")+f"buffer_load_dwordx4 v{vX}, s[36:39], s59 offen sc1 lds",
                f"s_add_u32 m0, m0, 1024\ns_nop 0\nbuffer_load_dwordx4 v{vX+1}, s[36:39], s59 offen sc1 lds"]
    def dmaUW(vm,n,hi=None):
        b=UB[ub(n)]; L=[]; vm.add(("U",n),4)
        for c in range(4):
            if c==0: so=rotU(n)+f"s_mul_i32 s59, s88, {64*3584}\n"+("s_add_u32 s59, s59, s83" if hi is None else f"s_add_u32 s59, s59, {hi*32*3584}")
            else: so="s_add_u32 s59, s59, 128" if c==2 else "s_nop 0"
            m=f"s80, {b+16384+c*8192}" if hi is None else f"s101, {b+16384+c*8192+hi*4096}"
            L.append(f"s_add_u32 m0, {m}\n{so}\nbuffer_load_dwordx4 v{vG+c%2}, s[{24+4*(c%2)}:{27+4*(c%2)}], s59 offen lds")
        return L
    def dmaU(vm,n,hi=None): return dmaUX(vm,n,hi)+dmaUW(vm,n,hi)
    def dmaRows(vm,tag,dst,pre,srdn):
        vm.add(tag,4)
        return [(f"s_lshl_b32 s90, s80, 2\n" if i==0 else "")+f"s_add_u32 m0, s90, {dst+i*1024}\n"+(pre if i==0 else "s_add_u32 s59, s59, 8192\n")+f"buffer_load_dwordx4 v{vD}, s[{srdn}:{srdn+3}], s59 offen lds" for i in range(4)]
    def dmaDW(vm,n): return dmaRows(vm,("D",n),GB[n%2]+32768,rotD(n)+"s_lshl_b32 s59, s88, 18\ns_add_u32 s59, s59, s84\n",76)
    def dmaWO(vm): return dmaRows(vm,"wo",GB[1],"s_mov_b32 s59, s84\n",60)+dmaRows(vm,"wo",GB[1]+32768,f"s_add_u32 s59, s84, {256*1024}\n",60)
    def dmaDH(vm,n):
        b=GB[n%2]; vm.add(("D",n),4)
        return [(f"s_lshl_b32 s59, s80, 2\ns_add_u32 m0, s59, {b}\n"+rotD(n)+"s_lshl_b32 s59, s88, 14\ns_add_u32 s59, s59, s85\n" if i==0 else "")+f"buffer_load_dwordx4 v2, s[32:35], s59 offen offset:{1024*i} sc1 lds" for i in range(4)]
    if W0L==1:
        for d in range(NW0):
            for l in dmaW(vm,d,[None]): A(l)
    st.mark(A,0)
    for i in range(8):
        if i%2==0: A(f"s_waitcnt vmcnt({vm.n_after(('x',i+1))})")
        for d in range(4): A(f"v_dot2c_f32_bf16 v{12+d%2}, v{X+4*i+d}, v19\nv_dot2c_f32_bf16 v{14+d%2}, v{X+4*i+d}, v{X+4*i+d}")
    if W0L==2:
        for d in range(NW0):
            for l in dmaW(vm,d,[None]): A(l)
    st.mark(A,1)
    later=[]
    for d in range(NW0,NW1): later+=dmaW(vm,d,[None])
    A("s_nop 2\nv_add_f32 v12, v12, v13\nv_add_f32 v13, v14, v15\ns_nop 1")
    for mod in ("quad_perm:[1,0,3,2]","quad_perm:[2,3,0,1]","row_half_mirror"):
        A(f"v_add_f32_dpp v12, v12, v12 {mod} row_mask:0xf bank_mask:0xf\nv_add_f32_dpp v13, v13, v13 {mod} row_mask:0xf bank_mask:0xf\ns_nop 0")
    A(f"v_mul_f32 v12, {f2u(1/512):#x}, v12\nv_mul_f32 v13, {f2u(1/512):#x}, v13")
    A("v_fma_f32 v13, -v12, v12, v13\nv_max_f32 v13, 0, v13")
    A("v_cvt_pk_bf16_f32 v13, v13, v13\nv_and_b32 v13, 0xffff0000, v13")
    A(f"v_add_f32 v13, {f2u(1e-5):#x}, v13")
    A("v_cvt_pk_bf16_f32 v13, v13, v13\nv_and_b32 v13, 0xffff0000, v13\nv_sqrt_f32 v13, v13")
    A("v_cvt_pk_bf16_f32 v12, v12, v12\nv_cvt_pk_bf16_f32 v13, v13, v13\nv_and_b32 v13, 0xffff0000, v13\nv_rcp_f32 v14, v13\nv_and_b32 v12, 0xffff0000, v12")
    A("v_mov_b32 v15, v14\nv_mul_f32 v16, -v12, v14\nv_mov_b32 v17, v16")
    for i in range(8):
        for d in range(0,4,2):
            r=X+4*i+d
            A(f"v_lshlrev_b32 v68, 16, v{r}\nv_and_b32 v69, 0xffff0000, v{r}\nv_lshlrev_b32 v70, 16, v{r+1}\nv_and_b32 v71, 0xffff0000, v{r+1}")
            A(f"v_pk_fma_f32 v[68:69], v[68:69], v[14:15], v[16:17]\nv_pk_fma_f32 v[70:71], v[70:71], v[14:15], v[16:17]\nv_cvt_pk_bf16_f32 v{r}, v68, v69\nv_cvt_pk_bf16_f32 v{r+1}, v70, v71")
        A(f"ds_write_b128 v4, {vr(X+4*i,4)} offset:{8192*i}")
    for l in later: A(l)
    A(f"s_waitcnt vmcnt({vm.n_after(('W',0))})\ns_cmp_ge_u32 s40, 4\ns_cbranch_scc1 p1_nop")
    A(f"v_mov_b32 v64, -1\nv_mov_b32 v65, -1\nv_mov_b32 v66, -1\nv_mov_b32 v67, -1\ns_lshl_b32 s68, s98, 1\ns_add_u32 s68, s68, s41\ns_lshl_b32 s59, s99, 1\ns_add_u32 s59, s59, s42\ns_lshl_b32 s69, s68, 4\ns_add_u32 s69, s69, s59\ns_lshl_b32 s69, s69, 11\ns_add_u32 s69, s69, {WS_O}")
    A("buffer_store_dwordx4 v[64:67], v2, s[32:35], s69 offen sc1\nbuffer_store_dwordx4 v[64:67], v2, s[32:35], s69 offen offset:1024 sc1")
    A.label("p1_nop")
    A(f"s_waitcnt lgkmcnt(0)\ns_barrier\ns_add_u32 s58, s58, 1")
    st.mark(A,2)
    vmh=copy.deepcopy(vm); vmc=vm; vmc.add("xst",2)
    A("s_cmp_ge_u32 s40, 4\ns_cbranch_scc1 p1_help\ns_setprio 1")
    FS=[64,80,32]; ACC=96
    def reads(F,kp):
        d=kp//4; ks=kp%4; sl=d%4
        r=[f"ds_read_b128 {vr(F,4)}, v{5+ks} offset:{d*8192}"]
        for c in range(3):
            for i in range(2): r.append(f"ds_read_b64_tr_b16 {vr(F+4+4*c+2*i,2)}, v{9+sl//2} offset:{(sl%2)*24576+c*8192+(16*ks+4*i)*128}")
        return r
    A("s_lshl_b32 s68, s101, 1\nv_add_u32 v18, s68, v2\nds_read_b128 v[48:51], v18\nds_read_b128 v[52:55], v18 offset:1024")
    for l in reads(FS[0],0)+reads(FS[1],1): A(l)
    A(f"s_and_b32 s59, s100, 7\ns_lshl_b32 s59, s59, 7\ns_add_u32 s59, s59, s57\ns_add_u32 s59, s59, {WS_XN}")
    pre=[f"buffer_store_dwordx4 v[48:51], v{vX}, s[32:35], s59 offen sc1",
         f"buffer_store_dwordx4 v[52:55], v{vX+1}, s[32:35], s59 offen sc1",
         "s_lshl_b32 s68, s98, 1\ns_add_u32 s68, s68, s41\ns_lshl_b32 s59, s99, 1\ns_add_u32 s59, s59, s42\ns_lshl_b32 s59, s59, 7\ns_add_u32 s59, s59, s68",
         f"s_lshl_b32 s70, s59, 10\ns_add_u32 s71, s70, {64*1024}\ns_lshl_b32 s68, s59, 11\ns_add_u32 s68, s68, {WS_KV}\ns_add_u32 s69, s68, {64*2048}",
         f"v_and_b32 v20, 31, v0\nv_lshlrev_b32 v20, 6, v20\nv_lshl_add_u32 v20, v1, 3, v20\ns_lshl_b32 s72, s40, 11\ns_add_u32 s72, s72, {VSC}\nv_add_u32 v20, s72, v20",
         "v_lshlrev_b32 v22, 10, v1\nv_lshl_add_u32 v22, v27, 7, v22\nv_bfe_u32 v23, v0, 3, 1\nv_lshl_add_u32 v22, v23, 9, v22\nv_bfe_u32 v23, v0, 2, 1\nv_lshl_add_u32 v22, v23, 6, v22",
         f"v_and_b32 v23, 3, v0\nv_lshl_add_u32 v22, v23, 3, v22\nv_add_u32 v22, s72, v22\nv_mov_b32 v24, {f2u(0.25*LOG2E):#x}\nv_mov_b32 v25, v24"]
    pre=pre[:2]+["\n".join(SM[i:i+5]) for i in range(0,len(SM),5)]+pre[2:]
    assert len(pre)<=31, len(pre)
    for kp in range(32):
        F=FS[kp%3]; d=kp//4
        fill=[]
        if kp==4*F1D+2:
            A(f"s_waitcnt vmcnt(0) lgkmcnt({7 if (LK and NW1<=2 and d<5) else 0})\ns_barrier")
            fill.append("FLAG")
        elif kp%4==2 and (U1H==1 or kp<30):
            w=f"vmcnt({vmc.n_after(('W',d+1))}) " if ('W',d+1) in vmc.ops else ""
            A(f"s_waitcnt {w}lgkmcnt({7 if (LK and NW1<=2 and d<5) else 0})\ns_barrier")
        else: A(f"s_waitcnt lgkmcnt({7 if kp<31 else 0})")
        if kp%4==2: st.mark(A,32+d)
        fl="FLAG" in fill; fill=[]
        if kp<30: fill+=reads(FS[(kp+2)%3],kp+2)
        if pre:
            fill.append(pre.pop(0))
            if kp<2: vmc.add("xst")
        weave(A,[mfma32(ACC+16*c,F+4+4*c,F,(ACC+16*c) if kp else "0") for c in (2,1,0)],fill)
        if fl: flag_store(A,"p1_f1",0,f"s_lshl_b32 s59, s98, 10\ns_lshl_b32 s88, s99, 7\ns_add_u32 s59, s59, s88\ns_add_u32 s59, s59, {FL1}",60,61)
    st.mark(A,3)
    V=ACC+32; Kk=ACC+16
    A("s_nop 9")
    for d in range(8): A(f"v_cvt_pk_bf16_f32 v{V+d}, v{V+2*d}, v{V+2*d+1}")
    for q in range(4): A(f"ds_write_b64 v20, {vr(V+2*q,2)} offset:{16*q}")
    for d in range(8): A(f"v_cvt_pk_bf16_f32 v{Kk+d}, v{Kk+2*d}, v{Kk+2*d+1}")
    A("s_waitcnt lgkmcnt(0)")
    for hh in range(2):
        for ii in range(2): A(f"ds_read_b64_tr_b16 {vr(V+4*hh+2*ii,2)}, v22 offset:{32*hh+256*ii}")
    A(f"buffer_store_dwordx4 {vr(Kk,4)}, v2, s[32:35], s68 offen sc1\nbuffer_store_dwordx4 {vr(Kk+4,4)}, v2, s[32:35], s69 offen sc1")
    A("s_waitcnt lgkmcnt(0)")
    A(f"buffer_store_dwordx4 {vr(V,4)}, v2, s[32:35], s68 offen offset:1024 sc1\nbuffer_store_dwordx4 {vr(V+4,4)}, v2, s[32:35], s69 offen offset:1024 sc1")
    for r in range(0,16,2): A(f"v_pk_mul_f32 {vr(ACC+r,2)}, {vr(ACC+r,2)}, v[24:25]")
    for d in range(8): A(f"v_cvt_pk_bf16_f32 v{ACC+d}, v{ACC+2*d}, v{ACC+2*d+1}")
    A(f"buffer_store_dwordx4 {vr(ACC,4)}, v2, s[32:35], s70 offen sc1\nbuffer_store_dwordx4 {vr(ACC+4,4)}, v2, s[32:35], s71 offen sc1")
    st.mark(A,49)
    A("s_setprio 0\ns_branch p1_join")
    A.label("p1_help")
    hs=list(SM); hper=(len(hs)+HSN-1)//HSN
    nxt=NW1
    if nxt<4:
        for l in dmaW(vmh,nxt,[0,1]): A(l)
        nxt+=1
    for d in range(8 if U1H==1 else 7):
        for l in hs[:hper]: A(l)
        hs=hs[hper:]
        if d==HSN-1:
            A(f"v_and_b32 v22, 15, v0\nv_lshlrev_b32 v22, 7, v22\ns_lshl_b32 s56, s46, 11\ns_add_u32 s56, s56, {FL1}")
            A("s_cmp_eq_u32 s44, 7\ns_cselect_b32 s26, 0, s26\ns_cselect_b32 s30, 0, s30\ns_cselect_b32 s38, 0, s38")
        st.mark(A,40+d)
        if d<7: A(f"s_waitcnt vmcnt({vmh.n_after(('W',d+1))})")
        st.mark(A,32+d)
        A("s_barrier")
        if nxt<8:
            assert nxt<=d+4
            for l in dmaW(vmh,nxt,[0,1]): A(l)
            nxt+=1
        if EARLY:
            if d==4: A("buffer_load_dword v23, v22, s[32:35], s56 offen sc1"); vmh.add("f1")
            if d==5:
                for l in dmaUW(vmh,0,0)+dmaUW(vmh,0,1): A(l)
            if d==6:
                poll_check(A,"p1_c1",22,23,"s56",8,False)
                for hi in range(2):
                    for l in dmaUX(vmh,0,hi): A(l)
        else:
            if d==5:
                for l in dmaUW(vmh,0,0): A(l)
            if d==6:
                for l in dmaUW(vmh,0,1): A(l)
                A("buffer_load_dword v23, v22, s[32:35], s56 offen sc1"); vmh.add("f1")
    if not EARLY:
        poll_check(A,"p1_c1",22,23,"s56",0,False)
        st.mark(A,48)
        for hi in range(2):
            for l in dmaUX(vmh,0,hi): A(l)
    if U1H in (1,2):
        for hi in range(2):
            for l in dmaU(vmh,1,hi): A(l)
    st.mark(A,49)
    A(f"s_waitcnt vmcnt({12 if U1H in (1,2) else 0})")
    st.mark(A,55)
    A.label("p1_join")
    A("s_cmp_eq_u32 s44, 7\ns_cselect_b32 s26, 0, s26\ns_cselect_b32 s30, 0, s30\ns_cselect_b32 s38, 0, s38")
    for i in range(4): A(f"v_mov_b32 v{LA+i}, 0\nv_mov_b32 v{LACC+i}, 0")
    A(f"s_mov_b32 exec_lo, 0x03030303\ns_mov_b32 exec_hi, 0x03030303\nv_mov_b32 v{LA}, 0x3f803f80\nv_mov_b32 v{LA+1}, 0x3f803f80")
    A(f"s_mov_b32 exec_lo, 0x30303030\ns_mov_b32 exec_hi, 0x30303030\nv_mov_b32 v{LA+2}, 0x3f803f80\nv_mov_b32 v{LA+3}, 0x3f803f80\ns_mov_b64 exec, -1")
    A(f"v_lshrrev_b32 v30, 1, v0\nv_lshlrev_b32 v30, 7, v30\nv_and_b32 v31, 1, v0\nv_lshl_add_u32 v30, v31, 2, v30\ns_lshr_b32 s56, s43, 1\ns_lshl_b32 s56, s56, 12\ns_add_u32 s56, s56, {FL2}"+ONLY7)
    if TB:
        for k_ in range(4): A(f"v_add_u32 v{a3+k_}, {B3}, v{aX+4+k_}")
        for k_ in range(2): A(f"v_add_u32 v{a3+4+k_}, {B3}, v{aW+2+k_}")
    st.mark(A,4)
    vm=VM(); vm.add(("U",1)); vm.add(("U",0))
    if F2G<0: vm=VM(); vm.add(("U",0)); vm.add(("U",1))
    def f2flag():
        if F2G<0: A("s_cmp_ge_u32 s40, 4\ns_cbranch_scc1 j_nw\ns_waitcnt vmcnt(0)\nj_nw:")
        else: A(f"s_waitcnt vmcnt({vm.n_after(('U',0))})")
        flag_store(A,"p1_f2",None,f"s_lshl_b32 s59, s99, 1\ns_add_u32 s59, s59, s42\ns_lshl_b32 s59, s59, 5\ns_add_u32 s59, s59, s98\ns_lshl_b32 s59, s59, 5\ns_add_u32 s59, s59, s41\ns_lshl_b32 s59, s59, 2\ns_add_u32 s59, s59, {FL2}",28,29,"s_cmp_lt_u32 s40, 4"); vm.add("fs")
        st.mark(A,57)
    if NPRE==1 or F2G<0: f2flag()
    kv=lambda t: ((t//4)%3)*KVS+(t%4)*2048
    def up_reads(g):
        n,ks=g//4,g%4; F=FR[g%2]; b=ub(n)
        L=[f"ds_read_b128 {vr(F+8+4*t,4)}, v{aX+4*b+ks} offset:{t*4096}" for t in range(2)]
        for jj in range(2):
            for i in range(2): L.append(f"ds_read_b64_tr_b16 {vr(F+4*jj+2*i,2)}, v{(aW+2*b+jj) if b<2 else (a3+4+jj)} offset:{(16*ks+4*i)*128}")
        return L
    def up_mf(g):
        F=FR[g%2]
        return [mfma32(GACC+16*(2*t+jj),F+4*jj,F+8+4*t,(GACC+16*(2*t+jj)) if g else "0") for t in range(2) for jj in range(2)]
    def dn_reads(g):
        n,u=g//4,g%4; F=FR[g%2]; b=n%2; L=[]
        for k in range(2):
            ks=2*u+k
            L.append(f"ds_read_b128 {vr(F+8+4*k,4)}, v{aH+b} offset:{ks*1024}")
            for i in range(2): L.append(f"ds_read_b64_tr_b16 {vr(F+4*k+2*i,2)}, v{aD+b} offset:{ks*2048+i*1024}")
        return L
    def dn_mf(g):
        F=FR[g%2]
        return [mfma32(DACC,F+4*k,F+8+4*k,DACC if (g or k) else "0") for k in range(2)]
    def up_epi(ti):
        acc=GACC+16*ti; t,jj=ti//2,ti%2
        L=[f"v_max_f32 v{acc+r}, 0, v{acc+r}" for r in range(8)]+[f"v_mul_f32 v{acc+r}, v{acc+r}, v{acc+8+r}" for r in range(8)]
        L+=[f"v_cvt_pk_bf16_f32 v{acc+d}, v{acc+2*d}, v{acc+2*d+1}" for d in range(4)]
        L.append(f"buffer_store_dwordx4 {vr(acc,4)}, v2, s[36:39], s{54+t} offen offset:{1024*jj} sc1")
        return L
    for n in range(NPRE):
        if n==NPRE-1:
            if n==0: A("buffer_load_dword v31, v30, s[32:35], s56 offen sc1"); vm.add("f2")
            st.mark(A,56)
            poll_check(A,"m_c2",30,31,"s56",vm.n_after("f2"))
        A((f"s_waitcnt vmcnt({vm.n_after(('U',n))}) lgkmcnt(0)" if n else "s_waitcnt lgkmcnt(0)")+"\ns_barrier")
        if n==2: st.mark(A,7)
        st.mark(A,50+n)
        if n==NPRE-1:
            A(f"s_lshl_b32 s59, s43, 6\ns_add_u32 s59, s59, s45\ns_lshl_b32 s59, s59, 10\nbuffer_load_dwordx4 {vr(Q,4)}, v2, s[32:35], s59 offen sc1"); vm.add("q")
            for l in dmaKV(vm,0)+dmaKV(vm,1): A(l)
        nn=n+1
        if TB: nn={0:2,1:3,2:4}.get(n,None)
        dml=dmaU(VM(),nn) if (nn is not None and (TB or n or not U1H)) else []
        if U1H==3 and n==0:
            for l in up_reads(0): A(l)
            A("s_cmp_lt_u32 s40, 4\ns_cbranch_scc1 j_u1")
            for hi in range(2):
                for l in dmaU(VM(),1,hi): A(l)
            A.label("j_u1")
        for u in range(4):
            g=4*n+u
            if u>0: A("s_waitcnt lgkmcnt(0)")
            fill=up_reads(g) if not (U1H==3 and g==0) else []
            if g==PG and NPRE>1: fill.append("buffer_load_dword v31, v30, s[32:35], s56 offen sc1"); vm.add("f2")
            kk=2 if TB else 3
            fill+=dml[:kk]; vm.add(("U",nn),len(dml[:kk])); dml=dml[kk:]
            if g>0: weave(A,up_mf(g-1),fill)
            else:
                for l in fill: A(l)
            if g==F2G and NPRE>1: f2flag()
    st.mark(A,5)
    A(f"s_waitcnt vmcnt({vm.n_after(('KV',0))})\ns_barrier")
    st.mark(A,6)
    A(f"ds_read_b128 {vr(K,4)}, v{aK}")
    A("s_waitcnt lgkmcnt(0)")
    A(mfma32(SA,K,Q,"0"))
    for r in range(16): A(f"v_mov_b32 v{O+r}, 0")
    def max16(dst,S,first):
        if first:
            A(f"v_max3_f32 v{dst}, v{S}, v{S+1}, v{S+2}\nv_max_f32 v{dst}, v{dst}, v{S+3}")
            s0=4
        else: s0=0
        for r in range(s0,16,2): A(f"v_max3_f32 v{dst}, v{dst}, v{S+r}, v{S+r+1}")
    max16(28,SA,True)
    A(f"v_add_f32 v28, {f2u(MOFF):#x}, v28")
    A(f"v_mov_b32 v29, v28\ns_nop 1\nv_permlane32_swap_b32 v28, v29\nv_max_f32 v28, v28, v29")
    for r in range(16): A(f"v_sub_f32 v{C+r}, 0, v28")
    A("s_nop 1")
    A(mfma32(SA,K,Q,C))
    A(f"ds_read_b128 {vr(K,4)}, v{aK} offset:2048\ns_nop 5")
    if PRIO: A("s_setprio 1")
    UP0=-NPRE; D0=UP0+8+DGAP
    for it in range(16):
        needs=[]
        if it+1<16: needs.append(vm.n_after(("KV",it+1)))
        n=it-UP0; dn=it-D0
        if 0<=n<8: needs.append(vm.n_after(("U",n)))
        if 0<=dn<7 and not E("X_NOWAIT",0): needs.append(vm.n_after(("D",dn)))
        if dn==-1: poll_check(A,"m_c3",30,31,"s56",vm.n_after("f3"))
        A((f"s_waitcnt vmcnt({min(needs)}) lgkmcnt(0)" if needs else "s_waitcnt lgkmcnt(0)")+"\ns_barrier")
        st.mark(A,8+it)
        if PRIO: A(f"s_cmp_lt_u32 s40, 4\ns_cbranch_scc1 m_pa{it}\ns_setprio 2\nm_pa{it}:")
        if n==9:
            A(f"s_lshl_b32 s56, s43, 4\ns_add_u32 s56, s56, {(FL3-FL1)//128}\nv_lshrrev_b32 v30, 2, v0\nv_add_u32 v30, s56, v30\nv_lshlrev_b32 v30, 7, v30\nv_and_b32 v31, 3, v0\nv_lshl_add_u32 v30, v31, 2, v30\nv_and_b32 v31, 7, v0\ns_lshl_b32 s56, s43, 3\nv_add_u32 v31, s56, v31\nv_lshlrev_b32 v31, 7, v31\nv_cmp_lt_u32 vcc, 55, v0")
            A(f"s_mov_b32 s56, {FL1}"+ONLY7+"\nv_cndmask_b32 v30, v30, v31, vcc")
        dml=[]
        if dn+1==0: dml+=dmaDH(vm,0)
        if it+2<16 and E("KVF",0): dml+=dmaKV(vm,it+2)
        if 0<dn+1<7: dml+=dmaDH(vm,dn+1)+dmaDW(vm,dn+1)
        if 2<=n+1<8: dml+=dmaU(vm,n+1)
        if it+2<16 and not E("KVF",0): dml+=dmaKV(vm,it+2)
        if n==7: dml+=dmaDW(vm,0)
        if dn==6: dml+=dmaWO(vm)
        if n==7 and WOT: dml.append("s_lshl_b32 s59, s2, 3\ns_add_u32 s59, s59, s40\ns_lshl_b32 s59, s59, 8\nv_lshlrev_b32 v28, 7, v0\ns_mov_b64 exec, 3\nbuffer_load_dword v195, v28, s[60:63], s59 offen\ns_mov_b64 exec, -1"); vm.add("t")
        if it==14:
            dml.append(f"s_lshl_b32 s57, s43, 16\ns_lshl_b32 s68, s40, 13\ns_add_u32 s57, s57, s68\ns_lshl_b32 s68, s44, 7\ns_add_u32 s57, s57, s68\nv_lshrrev_b32 v{XR+4}, 3, v0\nv_lshlrev_b32 v{XR+4}, 10, v{XR+4}\nv_and_b32 v{XR+5}, 7, v0\nv_lshl_add_u32 v{XR+4}, v{XR+5}, 4, v{XR+4}\n"+
                       f"buffer_load_dwordx4 {vr(XR,4)}, v{XR+4}, s[16:19], s57 offen"); vm.add("x")
        for u in range(4):
            t=4*it+u
            if PRIO and u==PRIO: A(f"s_cmp_lt_u32 s40, 4\ns_cbranch_scc1 m_pb{it}\ns_setprio 0\nm_pb{it}:")
            if PROG and u!=1: A(f"s_setprio {[3,3,2,1][u]}")
            Sc,Sn=(SA,SB) if u%2==0 else (SB,SA)
            val=[f"v_exp_f32 v{Sc+r}, v{Sc+r}" for r in range(16)]+[f"v_cvt_pk_bf16_f32 v{P+d}, v{Sc+2*d}, v{Sc+2*d+1}" for d in range(8)]
            g=4*n+u; gd=4*dn+u
            ex=[]; rds=[]
            if 0<=g-1<32: ex+=up_mf(g-1)
            if 0<=g<32: rds+=up_reads(g)
            if 0<=gd-1<28: ex+=dn_mf(gd-1)
            if 0<=gd<28: rds+=dn_reads(gd)
            extra=[]; post=''
            if n==8 and u in (1,2):
                for ti in ([0,1],[2,3])[u-1]: extra+=up_epi(ti); vm.add("hst")
            if 4*n+u==F3G:
                B=Asm(); flag_store(B,"m_f3",None,f"s_lshl_b32 s59, s46, 1\ns_add_u32 s59, s59, s41\ns_lshl_b32 s59, s59, 4\ns_add_u32 s59, s59, s47\ns_lshl_b32 s59, s59, 5\ns_lshr_b32 s68, s40, 1\ns_add_u32 s59, s59, s68\ns_lshl_b32 s59, s59, 2\ns_add_u32 s59, s59, {FL3}",28,29,"s_cmp_lg_u32 s44, 7")
                post=f"s_waitcnt vmcnt({vm.n_after('hst')})\n"+B.text(); vm.add("fs")
            if dn==-2 and u==F3U: extra.append("buffer_load_dword v31, v30, s[32:35], s56 offen sc1"); vm.add("f3")
            SPR=E("SPR",3)
            k=len(dml) if (n in (8,9) or u>=SPR-1) else (len(dml)+SPR-u-1)//(SPR-u)
            if E("X_NODMA",0) and dn>=0: dml=[x for x in dml if "s81" in x]; k=len(dml)
            mine=dml[:k]; dml=dml[k:]
            qk=[mfma32(Sn,K,Q,C)]+([f"ds_read_b128 {vr(K,4)}, v{aK} offset:{kv(t+2)}"] if t+2<64 else [])
            if t==63: qk=[]
            pv=([sm32] if t else [])+[f"ds_read_b128 {vr(VA,4)}, v{aK} offset:{kv(t)+1024}"]
            ls=[sm16] if t else []
            nx=len(ex); e=[[m] for m in ex]
            seq={0:[qk,pv,ls],2:[qk,pv]+e[0:1]+[ls]+e[1:2],4:[qk]+e[0:1]+[pv]+e[1:2]+[ls]+e[2:4]}[nx]
            ils=[i for i,x in enumerate(seq) if x is ls][0]
            ng=len(seq)
            for i,x in enumerate(rds): seq[min(ng-2,(i*(ng-1))//max(1,len(rds)))].append(x)
            for i,x in enumerate(mine): seq[(i*ng)//len(mine)].append(x)
            if u>0: A("s_waitcnt lgkmcnt(0)")
            val=val+extra
            cost=[8 if "exp" in x else 4 for x in val]; tot=sum(cost); acc=0; gi=0
            for i,x in enumerate(val):
                if PROG and u==3 and i==10: A("s_setprio 0")
                while gi<ng and (acc>=tot*gi/ng or (gi<=ils and i>=15-3*(ils-gi))):
                    for y in seq[gi]: A(y)
                    gi+=1
                A(x); acc+=cost[i]
            while gi<ng:
                for y in seq[gi]: A(y)
                gi+=1
            if post: A(post)
    A("s_waitcnt lgkmcnt(0)\ns_nop 0")
    A(sm32); A(sm16)
    if D0+7>=16:
        for m in dn_mf(4*(16-D0)-1): A(m)
    st.mark(A,24)
    A(f"s_lshl_b32 s59, s45, 5\ns_add_u32 s59, s59, s43\ns_lshl_b32 s59, s59, 10\ns_add_u32 s70, s59, {WS_O}\ns_nop 7")
    def fold():
        for r in range(8): A(f"v_add_f32 v{O+r}, v{O+r}, v{O+8+r}")
        A(f"v_add_f32 v{O+8}, v{LACC}, v{LACC+1}")
    fold()
    A(f"v_max3_f32 v28, |v{O}|, |v{O+1}|, |v{O+2}|\nv_max3_f32 v28, v28, |v{O+3}|, |v{O+4}|\nv_max3_f32 v28, v28, |v{O+5}|, |v{O+6}|")
    A(f"v_max3_f32 v28, v28, |v{O+7}|, v{O+8}")
    A(f"v_add_f32 v29, v{O}, v{O+1}")
    for r in range(2,9): A(f"v_add_f32 v29, v29, v{O+r}")
    A("v_fma_f32 v28, 0, v29, v28")
    A(f"v_cmp_ngt_f32 vcc, {f2u(2.0**125):#x}, v28")
    A("s_nop 4\ns_cbranch_vccnz m_fallback")
    A.label("m_fin")
    A(f"v_rcp_f32 v28, v{O+8}\ns_nop 0")
    for r in range(8): A(f"v_mul_f32 v{O+r}, v28, v{O+r}")
    for d in range(4): A(f"v_cvt_pk_bf16_f32 v{P+d}, v{O+2*d}, v{O+2*d+1}")
    for d in range(4): A(f"v_min_u32 v{P+d}, -2, v{P+d}")
    A(f"buffer_store_dwordx4 {vr(P,4)}, v2, s[32:35], s70 offen sc1"); vm.add("ost")
    QS=1056; PS=8*QS
    A(f"s_lshl_b32 s68, s41, 1\ns_add_u32 s68, s68, s48\ns_mul_i32 s68, s68, {PS}\ns_mul_i32 s69, s42, {4*QS}\ns_add_u32 s68, s68, s69\ns_add_u32 s68, s68, {GB[0]}\nv_add_u32 v28, s68, v2")
    A(f"v_mul_u32_u24 v29, {QS}, v{XR+5}\nv_lshrrev_b32 v30, 3, v0\nv_lshl_add_u32 v29, v30, 4, v29\ns_lshr_b32 s68, s101, 3\ns_add_u32 s68, s68, {GB[0]}\nv_add_u32 v29, s68, v29")
    A(f"s_mul_i32 s68, s48, {4*PS}\nv_add_u32 v37, s68, v29\ns_mul_i32 s68, s48, {2*PS}\nv_add_u32 v29, s68, v29\ns_mul_i32 s68, s40, {PS}\ns_add_u32 s68, s68, {GB[0]}\nv_add_u32 v36, s68, v2")
    for dn in range(max(0,16-D0),7):
        A(f"s_waitcnt vmcnt({vm.n_after(('D',dn))})\ns_barrier")
        for l in dn_reads(4*dn): A(l)
        dml=(dmaDH(vm,dn+1)+dmaDW(vm,dn+1)) if dn<6 else dmaWO(vm)
        for u in range(4):
            A("s_waitcnt lgkmcnt(0)")
            weave(A,dn_mf(4*dn+u),(dn_reads(4*dn+u+1) if u<3 else [])+dml[2*u:2*u+2])
    A(f"s_lshl_b32 s68, s48, 14\ns_add_u32 s68, s68, 32768\ns_lshl_b32 s69, s101, 4\ns_sub_u32 s68, s69, s68\nv_add_u32 v34, s68, v{aD+1}\ns_lshl_b32 s68, s42, 6\nv_xor_b32 v34, s68, v34\nv_xor_b32 v35, 64, v34")
    A(f"s_lshl_b32 s70, s43, 1\ns_add_u32 s70, s70, s48\ns_lshl_b32 s70, s70, 15\ns_lshl_b32 s68, s101, 3\ns_add_u32 s70, s70, s68\ns_add_u32 s70, s70, {WS_O}\ns_add_u32 s71, s70, 4096")
    A(f"s_waitcnt vmcnt({vm.n_after('wo')})\ns_barrier")
    st.mark(A,25)
    for q in range(4): A(f"ds_write_b128 v28, {vr(DACC+4*q,4)} offset:{q*QS}")
    AF=128; OF=64; ACS=96; G=56
    rd=[f"ds_read_b64_tr_b16 {vr(AF+8*n+4*cb+2*i,2)}, v{34+cb} offset:{n*2048+i*1024}" for n in range(8) for cb in range(2) for i in range(2)]
    ol=[f"buffer_load_dwordx4 {vr(OF+4*i,4)}, v2, s[32:35], {'s70' if i<4 else 's71'} offen offset:{1024*(i%4)} sc1" for i in range(8)]
    A(f"s_mov_b32 s59, {SPIN//8}")
    for l in ol[:OE]: A(l)
    A("s_waitcnt lgkmcnt(0)\ns_barrier")
    for kh in range(2):
        for hh in range(2): A(f"ds_read_b128 {vr(40+8*kh+4*hh,4)}, v29 offset:{kh*PS+hh*512}")
    for l in rd[:8]: A(l)
    A("s_waitcnt lgkmcnt(8)")
    val=[f"v_add_f32 v{G+r}, v{40+r}, v{48+r}" for r in range(8)]+[f"v_mul_f32 v{40+r}, {f2u(-LOG2E):#x}, v{G+r}" for r in range(8)]+[f"v_exp_f32 v{40+r}, v{40+r}" for r in range(8)]+[f"v_add_f32 v{40+r}, 1.0, v{40+r}" for r in range(8)]+[f"v_rcp_f32 v{40+r}, v{40+r}" for r in range(8)]+[f"v_mul_f32 v{G+r}, v{G+r}, v{40+r}" for r in range(8)]
    for i,x in enumerate(val):
        A(x)
        if i<24: A(rd[8+i])
        if OE and i%6==5 and OE+i//6<8: A(ol[OE+i//6])
    for d in range(4): A(f"v_lshlrev_b32 v{40+2*d}, 16, v{XR+d}\nv_and_b32 v{41+2*d}, 0xffff0000, v{XR+d}")
    A("s_waitcnt lgkmcnt(0)\ns_barrier")
    st.mark(A,26)
    if OE: A("s_branch m_ochk")
    A.label("m_oretry")
    for l in ol: A(l)
    A.label("m_ochk")
    A("v_mov_b32 v38, 0")
    for n in range(8):
        A(f"s_waitcnt vmcnt({7-n})")
        A(mfma32(ACS,AF+8*n,OF+4*n,ACS if n else "0"))
        A(f"v_max3_u32 v38, v38, v{OF+4*n}, v{OF+4*n+1}\nv_max3_u32 v38, v38, v{OF+4*n+2}, v{OF+4*n+3}")
        A(mfma32(ACS+16,AF+8*n+4,OF+4*n,(ACS+16) if n else "0"))
    A("v_cmp_eq_u32 vcc, -1, v38\ns_sub_u32 s59, s59, 1\ns_cselect_b64 s[68:69], 0, -1\ns_nop 2\ns_and_b64 vcc, vcc, s[68:69]\ns_cbranch_vccnz m_oretry")
    st.mark(A,27)
    A("s_nop 5")
    for q in range(8): A(f"ds_write_b128 v36, {vr(ACS+4*q,4)} offset:{q*QS}")
    A("s_waitcnt lgkmcnt(0)\ns_barrier")
    T=64
    for kq in range(4):
        for hh in range(2): A(f"ds_read_b128 {vr(T+8*kq+4*hh,4)}, v37 offset:{kq*PS+hh*512}")
    A("s_waitcnt lgkmcnt(4)")
    for r in range(8): A(f"v_add_f32 v{T+r}, v{T+r}, v{T+8+r}")
    A("s_waitcnt lgkmcnt(0)")
    for r in range(8): A(f"v_add_f32 v{T+16+r}, v{T+16+r}, v{T+24+r}")
    for r in range(8): A(f"v_add_f32 v{T+r}, v{T+r}, v{T+16+r}")
    for r in range(8): A(f"v_fma_f32 v{40+r}, v{T+r}, v{G+r}, v{40+r}")
    for d in range(4): A(f"v_cvt_pk_bf16_f32 v{48+d}, v{40+2*d}, v{41+2*d}")
    A(f"buffer_store_dwordx4 v[48:51], v{XR+4}, s[64:67], s57 offen"+os.environ.get("OF"," sc1"))
    flag_store(A,"m_bump",0,f"s_mov_b32 s59, {WS_T}",32,33,"s_cmp_eq_u32 s2, 0")
    if STAMP:
        st.mark(A,28)
        A("s_waitcnt vmcnt(0)")
        st.mark(A,29)
        A(f"v_subrev_u32 v250, {'s92' if STAMP==2 else 's94'}, v250\ns_memrealtime s[96:97]\ns_waitcnt lgkmcnt(0)\nv_writelane_b32 v250, s92, 30\nv_writelane_b32 v250, s96, 31")
        A(f"s_lshl_b32 s96, s2, 3\ns_add_u32 s96, s96, s40\ns_lshl_b32 s96, s96, 8\ns_add_u32 s96, s96, {WS_ST}\nv_lshlrev_b32 v251, 2, v0\nbuffer_store_dword v250, v251, s[32:35], s96 offen")
    if E("PAD",0):
        A.label("k_pad")
        A(f"s_memrealtime s[96:97]\ns_waitcnt lgkmcnt(0)\ns_sub_u32 s96, s96, s92\ns_cmp_lt_u32 s96, {E('PAD',0)}\ns_cbranch_scc1 k_pad")
    if E("DBG",0):
        A("s_cmp_eq_u32 s40, 0\ns_cbranch_scc0 k_end\ns_load_dwordx2 s[4:5], s[0:1], 64\ns_memrealtime s[96:97]\ns_memtime s[6:7]\ns_waitcnt vmcnt(0) lgkmcnt(0)")
        srd(A,8,4,256)
        A("s_not_b32 s92, s92\ns_sub_u32 s6, s6, s94\nv_mov_b32 v1, 0\nv_mov_b32 v2, s92\nv_mov_b32 v3, s96\nv_mov_b32 v4, s6\ns_mov_b64 exec, 1")
        A("buffer_atomic_umax v2, v1, s[8:11], 0 offen\nbuffer_atomic_umax v3, v1, s[8:11], 0 offen offset:4\nbuffer_atomic_umax v4, v1, s[8:11], 0 offen offset:8")
        if STAMP:
            for k,l in enumerate([0,1,2,3,49,50,6,8,16,24,25,26,29]):
                A(f"v_readlane_b32 s6, v250, {l}\ns_nop 3\nv_mov_b32 v4, s6\nbuffer_atomic_umax v4, v1, s[8:11], 0 offen offset:{12+4*k}")
    A.label("k_end")
    A("s_endpgm")
    for name,va,vd,so in spins:
        A.label(name+"_spin")
        A(f"s_mov_b32 s59, {SPIN}")
        A.label(name+"_l")
        A(f"s_sleep {SLEEP}\nbuffer_load_dword v{vd}, v{va}, s[32:35], {so} offen sc1\ns_waitcnt vmcnt(0)\nv_cmp_ne_u32 vcc, s58, v{vd}\ns_sub_u32 s59, s59, 1\ns_nop 3")
        A(f"s_cbranch_vccz {name}_ret\ns_cmp_lg_u32 s59, 0\ns_cbranch_scc1 {name}_l\ns_branch {name}_ret")
    A.label("m_fallback")
    A(f"s_sub_u32 s68, s49, s101\ns_mov_b32 s69, 0\nv_mov_b32 v28, 0xff800000")
    A.label("m_fb1")
    A(f"buffer_load_dwordx4 {vr(K,4)}, v2, s[32:35], s68 offen sc1\ns_add_u32 s68, s68, 2048\ns_waitcnt vmcnt(0)")
    A(mfma32(SA,K,Q,"0"))
    A("s_nop 15")
    max16(28,SA,False)
    A("s_add_u32 s69, s69, 1\ns_cmp_lt_u32 s69, 64\ns_cbranch_scc1 m_fb1")
    A("v_mov_b32 v29, v28\ns_nop 1\nv_permlane32_swap_b32 v28, v29\nv_max_f32 v28, v28, v29")
    for r in range(16): A(f"v_sub_f32 v{C+r}, 0, v28\nv_mov_b32 v{O+r}, 0")
    for r in range(4): A(f"v_mov_b32 v{LACC+r}, 0")
    A(f"s_sub_u32 s68, s49, s101\ns_mov_b32 s69, 0")
    A.label("m_fb2")
    A(f"buffer_load_dwordx4 {vr(K,4)}, v2, s[32:35], s68 offen sc1\nbuffer_load_dwordx4 {vr(VA,4)}, v2, s[32:35], s68 offen offset:1024 sc1")
    A("s_add_u32 s68, s68, 2048\ns_waitcnt vmcnt(0)")
    A(mfma32(SA,K,Q,C))
    A("s_nop 15")
    for r in range(16): A(f"v_exp_f32 v{SA+r}, v{SA+r}")
    for d in range(8): A(f"v_cvt_pk_bf16_f32 v{P+d}, v{SA+2*d}, v{SA+2*d+1}")
    A("s_nop 1")
    A(sm32); A(sm16)
    A("s_add_u32 s69, s69, 1\ns_cmp_lt_u32 s69, 64\ns_cbranch_scc1 m_fb2")
    A("s_nop 15")
    fold()
    A("k_last:\ns_branch m_fin")

def main(out):
    hdr=open("cdna_kernels/"+NAME+".s.ref").read().split("\n")
    head=[l for l in hdr if l.startswith(";") and "@launch" not in l]
    T="\n".join(head)+"\n"
    if E("LIST",0)==2: T+=f"; @launch kernel={KN} grid=(256,1,1) block=(512,1,1) lds={LDS}\n"
    if E("LIST",0): T+=f"; @launch kernel={KN} grid=(256,1,1) block=(512,1,1) lds={LDS}\n"
    else: T+=f"; @launch grid=(256,1,1) block=(512,1,1) lds={LDS}\n"
    T+='.amdgcn_target "amdgcn-amd-amdhsa--gfx950"\n.text\n'
    A=Asm(); kern(A)
    for e in hazard_check(A.text()): print(e)
    T+=f".globl {KN}\n.p2align 8\n.type {KN},@function\n"+A.text()
    T+='.section .rodata,"a"\n'+kdesc(KN,256,102)
    open(out,"w").write(T)
if __name__=="__main__":
    main(sys.argv[1] if len(sys.argv)>1 else "cdna_kernels/"+NAME+".s")
```

```python
import sys, struct, os, copy
from asmlib import *
NAME="recurrent_scan__mha_block__glu_gated_reglu__prompt"
KN=NAME+"_kernel"
WS_Q=0; WS_KV=2<<20; WS_H=6<<20; WS_O=13<<20; WS_XN=22<<20; WS_FL=21<<20; WS_T=WS_FL+98304; WS_SIZE=32<<20; WS_ST=24<<20
FL1=WS_FL; FL2=WS_FL+32768; FL3=WS_FL+524288; FL2=WS_FL+786432
def f2u(f): return struct.unpack("<I",struct.pack("<f",f))[0]
LOG2E=1.4426950408889634
E=lambda k,d: int(os.environ.get(k,str(d)))
STAMP=E("STAMP",0); TOUCH=E("TOUCH",0); G0=E("G0",0); PRIO=E("PRIO",0); NPRE=E("NPRE",4); DGAP=E("DGAP",4)
SPIN=400000
SLEEP=E('SLEEP',2)
CODEPF=E("CODEPF",1); WTOUCH=E("WTOUCH",0); NW0=E("NW0",1); NW1=E("NW1",2); F1D=E("F1D",2); F1P=E("F1P",22); F1C=E("F1C",25); PBURST=E("PBURST",1); U1H=E("U1H",2); UWD=E("UWD",6); TLB=E("TLB",0); OE=E("OE",2); HSN=E("HSN",5); LK=E("LK",1); PG=E("PG",10); EARLY=E("EARLY",1); F3U=E("F3U",1); F3G=E("F3G",36); W0L=E("W0L",0); EH=E("EH",0); IDLE=E("IDLE",0); RSW=E("RSW",1); XBAR=E("XBAR",0); F2G=E("F2G",2); HPRIO=E("HPRIO",0); PROG=E("PROG",1); ROT=E("ROT",1); WOT=E("WOT",1); UT=E("UT",0); UTK=E("UTK",27)
MOFF=float(E("MOFF",100))
class VM:
    def __init__(s): s.ops=[]
    def add(s,tag,n=1): s.ops+= [tag]*n
    def n_after(s,tag):
        idx=max(i for i,t in enumerate(s.ops) if t==tag)
        return len(s.ops)-1-idx
def weave(A,mf,fill):
    n=len(mf); k=len(fill); j=0
    for i,m in enumerate(mf):
        A(m)
        e=(k*(i+1))//n
        while j<e: A(fill[j]); j+=1
class St:
    def __init__(s): s.pend=None
    def mark(s,A,i):
        if E("PROBE",-1)==i:
            s.n=getattr(s,"n",0)+1
            A(f"probe{s.n}:\ns_memrealtime s[96:97]\ns_waitcnt lgkmcnt(0)\ns_sub_u32 s96, s96, s92\ns_cmp_lt_u32 s96, {E('PX',2000)}\ns_cbranch_scc1 probe{s.n}")
        if STAMP:
            A(f"{'s_memrealtime' if STAMP==2 else 's_memtime'} s[96:97]\ns_waitcnt lgkmcnt(0)\nv_writelane_b32 v250, s96, {i}")
st=St()
WB=65536; GB=[65536,0]; KVB=131072; KVS=8192; VSC=49152 if E('EH',0) else 114688; LDS=163840
Q,K,VA,VB,P,C,SA,SB,O=4,8,12,16,20,32,48,64,80
LA=16; LACC=246; IX1=3; IX2=207
sm32=f"v_smfmac_f32_32x32x32_bf16 {vr(O,16)}, {vr(VA,4)}, {vr(P,8)}, v{IX1}"
sm16=f"v_smfmac_f32_16x16x64_bf16 {vr(LACC,4)}, {vr(LA,4)}, {vr(P,8)}, v{IX2}"
FR=[96,112]; GACC=128; DACC=208
vG,vU,vD=192,193,194; aW,aH,aD=198,202,204; aK=206; XR=224; aX=232; vX=196
WS_XS=WS_FL+131072; WS_CS=WS_FL+262144
CSC=VSC+8192; SSC=VSC+12288
TB=E('TB',1); B3=114688; a3=240
def ub(n):
    if TB and n<2: return 1-n
    if TB and n==2: return 2
    return n%2
UB=[65536,0,B3]
SLOT=[0,32768,131072,65536,98304]
spins=[]
ONLY7="\ns_cmp_eq_u32 s40, 7\ns_cselect_b32 s56, s56, 0x7ff00000"
def poll_check(A,name,vaddr,vdst,soff,wait,only7=True):
    if only7: A(f"s_cmp_eq_u32 s40, 7\ns_cbranch_scc0 {name}_ret")
    A(f"s_waitcnt vmcnt({wait})\nv_cmp_ne_u32 vcc, s58, v{vdst}\ns_nop 4\ns_cbranch_vccnz {name}_spin\n{name}_ret:")
    spins.append((name,vaddr,vdst,soff))
def flag_store(A,name,wave,soff_code,va,vb,cond=None):
    A(soff_code)
    if wave is not None: A(f"s_cmp_eq_u32 s40, {wave}\ns_cselect_b32 s59, s59, 0x7ffffff0")
    if cond: A(f"{cond}\ns_cselect_b32 s59, s59, 0x7ffffff0")
    A(f"v_mov_b32 v{va}, s58\nv_mov_b32 v{vb}, 0\ns_mov_b64 exec, 1\nbuffer_store_dword v{va}, v{vb}, s[32:35], s59 offen sc1\ns_mov_b64 exec, -1")

def kern(A):
    vm=VM()
    A.label(KN)
    A("s_cmp_ge_u32 s2, 256\ns_cbranch_scc1 k_end")
    if STAMP or E("DBG",0) or E("PAD",0) or E("PROBE",-1)>=0: A("s_memrealtime s[92:93]\ns_memtime s[94:95]")
    A("s_load_dwordx4 s[4:7], s[0:1], 0\ns_load_dwordx2 s[14:15], s[0:1], 72\ns_load_dwordx4 s[8:11], s[0:1], 32")
    A("s_load_dwordx4 s[72:75], s[0:1], 48\ns_load_dwordx2 s[12:13], s[0:1], 16")
    if CODEPF:
        A("s_getpc_b64 s[70:71]\nk_pc:\ns_and_b32 s68, s2, 0xf8\nv_add_u32 v26, s68, v0\nv_lshlrev_b32 v26, 7, v26\nv_min_u32 v26, k_last-k_pc, v26\nv_cmp_gt_u32 vcc, 8, v0\ns_and_saveexec_b64 s[68:69], vcc\ns_cbranch_execz k_nopf\nglobal_load_dword v26, v26, s[70:71]\nk_nopf:\ns_mov_b64 exec, -1")
    A("v_lshrrev_b32 v1, 6, v0\nv_and_b32 v0, 63, v0\nv_readfirstlane_b32 s40, v1")
    A("s_and_b32 s3, s2, 7\ns_lshr_b32 s59, s2, 3\ns_and_b32 s100, s59, 7")
    A("s_and_b32 s98, s3, 3\ns_lshl_b32 s98, s98, 3\ns_add_u32 s98, s98, s100")
    A("s_lshr_b32 s99, s3, 2\ns_lshl_b32 s99, s99, 2\ns_lshr_b32 s68, s59, 3\ns_add_u32 s99, s99, s68")
    A("s_add_u32 s100, s100, s99")
    A("v_lshrrev_b32 v20, 3, v0\nv_and_b32 v21, 7, v0\nv_lshrrev_b32 v1, 5, v0\ns_and_b32 s70, s40, 3\ns_lshl_b32 s101, s70, 10")
    A(f"v_lshrrev_b32 v22, 4, v0\nv_xor_b32 v22, v22, v21\nv_lshlrev_b32 v22, 4, v22\nv_lshl_add_u32 v{vX}, v20, 10, v22\ns_lshl_b32 s68, s70, 14\nv_add_u32 v{vX}, s68, v{vX}\nv_xor_b32 v{vX+1}, 64, v{vX}\nv_add_u32 v{vX+1}, 0x2000, v{vX+1}")
    A("v_bfe_u32 v31, v0, 4, 1\nv_lshlrev_b32 v31, 2, v31\nv_xor_b32 v31, v31, v21\nv_lshlrev_b32 v31, 4, v31")
    A("s_lshl_b32 s70, s70, 3\nv_add_u32 v29, s70, v20\nv_mul_u32_u24 v30, 3072, v29\nv_add_u32 v30, v30, v31\ns_lshl_b32 s68, s99, 7\nv_add_u32 v30, s68, v30")
    A("s_and_b32 s89, s99, 1\ns_lshl_b32 s89, s89, 2\ns_xor_b32 s89, s89, s40" if RSW else "s_mov_b32 s89, s40")
    if WTOUCH: A("v_lshlrev_b32 v24, 7, v0\ns_lshl_b32 s59, s2, 3\ns_add_u32 s59, s59, s40\ns_mul_i32 s59, s59, 768")
    A("v_and_b32 v22, 31, v0\ns_lshl_b32 s68, s89, 13\nv_lshlrev_b32 v11, 4, v21\nv_lshl_add_u32 v11, v20, 10, v11\nv_add_u32 v11, s68, v11\ns_lshl_b32 s57, s98, 16")
    A("s_waitcnt lgkmcnt(0)")
    srd(A,16,4,2048*1024); srd(A,20,6,512*3072)
    if WTOUCH: A("s_mov_b64 exec, 0x3f\nbuffer_load_dword v25, v24, s[20:23], s59 offen\ns_mov_b64 exec, -1")
    if TLB:
        A("s_cmp_lt_u32 s40, 6\ns_cbranch_scc1 k_notlb\ns_cmp_eq_u32 s40, 7\ns_cbranch_scc1 k_tlb7")
        A("v_lshlrev_b32 v24, 21, v0\ns_mov_b64 exec, 0xfff\nglobal_load_dword v26, v24, s[14:15] sc1\ns_branch k_tlbd")
        A.label("k_tlb7")
        A("v_lshlrev_b32 v24, 20, v0\ns_mov_b64 exec, 3\nglobal_load_dword v26, v24, s[8:9]\nglobal_load_dword v26, v24, s[10:11]\nglobal_load_dword v26, v24, s[72:73]\nglobal_load_dword v26, v24, s[74:75]\ns_mov_b64 exec, 1\nglobal_load_dword v26, v24, s[12:13]")
        A.label("k_tlbd")
        A("s_mov_b64 exec, -1")
        A.label("k_notlb")
    X=32
    vm=VM()
    for i in range(8):
        A(f"s_add_u32 s88, s100, {i}\ns_and_b32 s88, s88, 7\ns_lshl_b32 s88, s88, 7\ns_add_u32 s88, s88, s57\nbuffer_load_dwordx4 {vr(X+4*i,4)}, v11, s[16:19], s88 offen"); vm.add(("x",i))
    if XBAR==1: A("s_barrier")
    def dmaW(vm,d,his):
        L=[]; b=WB+(d%4)*24576
        for k,hi in enumerate(his):
            for c in range(3):
                vm.add(("W",d))
                if c==0: pre=f"s_add_u32 s88, s100, {d}\ns_and_b32 s88, s88, 7\ns_mul_i32 s59, s88, {64*3072}\n"+("s_add_u32 s59, s59, s91\n" if hi is None else (f"s_add_u32 s59, s59, {32*3072}\n" if hi else ""))
                else: pre="s_add_u32 s59, s59, 1024\n"
                m=f"s80, {b+c*8192}" if hi is None else f"s101, {b+c*8192+hi*4096}"
                L.append(f"s_add_u32 m0, {m}\n"+pre+"buffer_load_dwordx4 v30, s[20:23], s59 offen lds")
        return L
    srd(A,32,14,WS_SIZE)
    A(f"s_add_u32 s70, s14, {WS_T}\ns_addc_u32 s71, s15, 0\ns_load_dword s58, s[70:71], 0")
    A("s_and_b32 s41, s40, 1\ns_bfe_u32 s42, s40, 0x10001")
    A("v_lshrrev_b32 v4, 4, v0\ns_lshl_b32 s68, s41, 2\nv_xor_b32 v4, s68, v4\nv_xor_b32 v4, v4, v21\nv_lshlrev_b32 v4, 4, v4\nv_lshl_add_u32 v4, v20, 7, v4\ns_lshl_b32 s68, s89, 10\nv_add_u32 v4, s68, v4")
    A("v_mov_b32 v12, 0\nv_mov_b32 v13, 0\nv_mov_b32 v14, 0\nv_mov_b32 v15, 0")
    A("v_lshlrev_b32 v2, 4, v0\nv_mov_b32 v19, 0x3f803f80")
    A("s_lshr_b32 s48, s40, 2")
    A("s_lshl_b32 s80, s48, 12\ns_add_u32 s80, s80, s101")
    def setup_main():
        A=Asm()
        A("v_bfe_u32 v23, v0, 1, 3\nv_xor_b32 v23, v23, v1\nv_lshlrev_b32 v23, 4, v23\nv_lshl_add_u32 v23, v22, 7, v23")
        A("v_bfe_u32 v28, v0, 2, 2\nv_lshlrev_b32 v28, 7, v28\nv_and_b32 v24, 3, v0\nv_lshl_add_u32 v28, v24, 3, v28")
        A("v_bfe_u32 v24, v0, 3, 1\nv_xor_b32 v24, s42, v24\nv_lshl_add_u32 v28, v24, 6, v28\nv_bfe_u32 v27, v0, 4, 1\nv_lshl_add_u32 v28, v27, 5, v28")
        srd(A,24,8,512*3584); srd(A,28,10,512*3584); srd(A,36,14,WS_SIZE); srd(A,76,72,1792*1024); srd(A,60,12,512*1024); srd(A,64,74,2048*1024)
        A("s_bfe_u32 s59, s2, 0x20003\ns_lshl_b32 s43, s3, 2\ns_add_u32 s43, s43, s59")
        A("s_lshr_b32 s44, s2, 5")
        A("s_lshl_b32 s45, s44, 3\ns_add_u32 s45, s45, s40")
        A("s_lshr_b32 s46, s3, 1\ns_lshl_b32 s46, s46, 2\ns_add_u32 s46, s46, s59")
        A("s_and_b32 s47, s3, 1\ns_mul_i32 s47, s47, 7\ns_add_u32 s47, s47, s44")
        A(f"s_lshl_b32 s49, s43, 17\ns_add_u32 s49, s49, s101\ns_add_u32 s49, s49, {WS_KV}")
        A(f"s_lshl_b32 s50, s46, 17\ns_add_u32 s50, s50, {WS_XN}")
        A(f"v_mul_u32_u24 v{vG}, 3584, v29\nv_add_u32 v{vG}, v{vG}, v31\ns_lshl_b32 s68, s47, 8\nv_add_u32 v{vG}, s68, v{vG}\nv_xor_b32 v{vU}, 32, v{vG}")
        A(f"s_lshr_b32 s68, s101, 5\nv_add_u32 v29, s68, v20\nv_lshl_add_u32 v{vD}, v29, 10, v31\ns_lshl_b32 s68, s44, 7\nv_add_u32 v{vD}, s68, v{vD}")
        A(f"s_mul_i32 s51, s43, {224*1024}\ns_lshl_b32 s68, s101, 2\ns_add_u32 s51, s51, s68\ns_add_u32 s51, s51, {WS_H}")
        A(f"v_mul_u32_u24 v{IX1}, 0xaaaa, v27\nv_add_u32 v{IX1}, 0x4444, v{IX1}\nv_and_b32 v{IX2}, 1, v0\nv_mul_u32_u24 v{IX2}, 0xaaaa, v{IX2}\nv_add_u32 v{IX2}, 0x4444, v{IX2}\nv_add_u32 v{aK}, {KVB}, v2")
        A(f"s_lshl_b32 s68, s41, 13\nv_add_u32 v{aX+4}, s68, v23")
        for kq in range(1,4): A(f"v_xor_b32 v{aX+4+kq}, {32*kq}, v{aX+4}")
        for kq in range(4): A(f"v_add_u32 v{aX+kq}, 0x10000, v{aX+4+kq}")
        A(f"v_lshl_add_u32 v{aW+2}, v27, 13, v28\nv_lshl_add_u32 v{aW+2}, v1, 10, v{aW+2}\ns_lshl_b32 s68, s48, 14\ns_add_u32 s68, s68, 16384\nv_add_u32 v{aW+2}, s68, v{aW+2}")
        A(f"v_xor_b32 v{aW+3}, 32, v{aW+2}\nv_add_u32 v{aW}, 0x10000, v{aW+2}\nv_add_u32 v{aW+1}, 0x10000, v{aW+3}")
        A(f"s_lshl_b32 s68, s41, 14\ns_lshl_b32 s70, s48, 13\ns_add_u32 s68, s68, s70\nv_add_u32 v{aH+1}, s68, v2\nv_add_u32 v{aH}, 0x10000, v{aH+1}")
        A(f"v_lshl_add_u32 v{aD+1}, v1, 9, v28\ns_lshl_b32 s68, s48, 14\ns_add_u32 s68, s68, 32768\nv_add_u32 v{aD+1}, s68, v{aD+1}\nv_add_u32 v{aD}, 0x10000, v{aD+1}")
        A(f"s_lshl_b32 s54, s46, 2\ns_lshl_b32 s68, s41, 1\ns_add_u32 s54, s54, s68\ns_mul_i32 s54, s54, 112\ns_lshl_b32 s68, s47, 3\ns_add_u32 s54, s54, s68\ns_and_b32 s68, s40, 6\ns_add_u32 s54, s54, s68\ns_lshl_b32 s54, s54, 10\ns_add_u32 s54, s54, {WS_H}\ns_add_u32 s55, s54, {112*1024}")
        A(f"s_lshl_b32 s81, s48, 12\ns_add_u32 s81, s81, s49\ns_lshl_b32 s82, s48, 16\ns_add_u32 s82, s82, s50\ns_mul_i32 s83, s48, {32*3584}\ns_lshl_b32 s84, s48, 17\ns_mul_i32 s85, s48, {112*1024}\ns_add_u32 s85, s85, s51")
        A("s_lshr_b32 s86, s46, 1\ns_mul_i32 s68, s43, 37\ns_lshr_b32 s68, s68, 8\ns_mul_i32 s68, s68, 7\ns_sub_u32 s87, s43, s68")
        if not ROT: A("s_mov_b32 s86, 0\ns_mov_b32 s87, 0")
        return [x.strip() for x in A.lines]
    A(f"s_mul_i32 s91, s48, {32*3072}")
    if not W0L:
        for d in range(NW0):
            for l in dmaW(vm,d,[None]): A(l)
    SM=setup_main()
    for l in SM[:13]: A(l)
    SM=SM[13:]
    SM=SM[:24]+[l.replace("s59","s75").replace("s68","s74").replace("s70","s73") for l in SM[24:]]
    A(f"s_lshl_b32 s68, s41, 12\nv_add_u32 v5, s68, v23")
    for kq in range(1,4): A(f"v_xor_b32 v{5+kq}, {32*kq}, v5")
    A(f"v_lshl_add_u32 v9, v1, 10, v28\nv_add_u32 v9, {WB}, v9\nv_add_u32 v10, {2*24576}, v9")
    rotU=lambda n: f"s_add_u32 s88, s86, {n}\ns_and_b32 s88, s88, 7\n"
    rotD=lambda n: f"s_add_u32 s88, s87, {n}\ns_sub_u32 s89, s88, 7\ns_cmp_ge_u32 s88, 7\ns_cselect_b32 s88, s89, s88\n"
    def dmaKV(vm,it,hi=None):
        vm.add(("KV",it))
        if hi is None: return [f"s_add_u32 m0, s80, {KVB+(it%3)*KVS}\ns_add_u32 s59, s81, {it*8192}\nbuffer_load_dwordx4 v2, s[32:35], s59 offen sc1 lds"]
        return [f"s_add_u32 m0, s101, {KVB+(it%3)*KVS+hi*4096}\ns_add_u32 s59, s49, {it*8192+hi*4096}\nbuffer_load_dwordx4 v2, s[32:35], s59 offen sc1 lds"]
    def dmaUX(vm,n,hi=None):
        b=UB[ub(n)]; vm.add(("U",n),2)
        m,s,o1,o2=("s80","s82",0,0) if hi is None else ("s101","s50",hi*8192,hi*65536)
        return [f"s_lshl_b32 s59, {m}, 1\ns_add_u32 m0, s59, {b+o1}\n"+rotU(n)+f"s_lshl_b32 s59, s88, 7\ns_add_u32 s59, s59, {s}\n"+(f"s_add_u32 s59, s59, {o2}\n" if o2 else "")+f"buffer_load_dwordx4 v{vX}, s[36:39], s59 offen sc1 lds",
                f"s_add_u32 m0, m0, 1024\ns_nop 0\nbuffer_load_dwordx4 v{vX+1}, s[36:39], s59 offen sc1 lds"]
    def dmaUW(vm,n,hi=None):
        b=UB[ub(n)]; L=[]; vm.add(("U",n),4)
        for c in range(4):
            if c==0: so=rotU(n)+f"s_mul_i32 s59, s88, {64*3584}\n"+("s_add_u32 s59, s59, s83" if hi is None else f"s_add_u32 s59, s59, {hi*32*3584}")
            else: so="s_add_u32 s59, s59, 128" if c==2 else "s_nop 0"
            m=f"s80, {b+16384+c*8192}" if hi is None else f"s101, {b+16384+c*8192+hi*4096}"
            L.append(f"s_add_u32 m0, {m}\n{so}\nbuffer_load_dwordx4 v{vG+c%2}, s[{24+4*(c%2)}:{27+4*(c%2)}], s59 offen lds")
        return L
    def dmaU(vm,n,hi=None): return dmaUX(vm,n,hi)+dmaUW(vm,n,hi)
    def dmaRows(vm,tag,dst,pre,srdn):
        vm.add(tag,4)
        return [(f"s_lshl_b32 s90, s80, 2\n" if i==0 else "")+f"s_add_u32 m0, s90, {dst+i*1024}\n"+(pre if i==0 else "s_add_u32 s59, s59, 8192\n")+f"buffer_load_dwordx4 v{vD}, s[{srdn}:{srdn+3}], s59 offen lds" for i in range(4)]
    def dmaDW(vm,n): return dmaRows(vm,("D",n),GB[n%2]+32768,rotD(n)+"s_lshl_b32 s59, s88, 18\ns_add_u32 s59, s59, s84\n",76)
    def dmaWO(vm): return dmaRows(vm,"wo",GB[1],"s_mov_b32 s59, s84\n",60)+dmaRows(vm,"wo",GB[1]+32768,f"s_add_u32 s59, s84, {256*1024}\n",60)
    def dmaDH(vm,n):
        b=GB[n%2]; vm.add(("D",n),4)
        return [(f"s_lshl_b32 s59, s80, 2\ns_add_u32 m0, s59, {b}\n"+rotD(n)+"s_lshl_b32 s59, s88, 14\ns_add_u32 s59, s59, s85\n" if i==0 else "")+f"buffer_load_dwordx4 v2, s[32:35], s59 offen offset:{1024*i} sc1 lds" for i in range(4)]
    if W0L==1:
        for d in range(NW0):
            for l in dmaW(vm,d,[None]): A(l)
    st.mark(A,0)
    for i in range(8):
        if i%2==0: A(f"s_waitcnt vmcnt({vm.n_after(('x',i+1))})")
        for d in range(4): A(f"v_dot2c_f32_bf16 v{12+d%2}, v{X+4*i+d}, v19\nv_dot2c_f32_bf16 v{14+d%2}, v{X+4*i+d}, v{X+4*i+d}")
    if W0L==2:
        for d in range(NW0):
            for l in dmaW(vm,d,[None]): A(l)
    st.mark(A,1)
    later=[]
    for d in range(NW0,NW1): later+=dmaW(vm,d,[None])
    A("s_nop 2\nv_add_f32 v12, v12, v13\nv_add_f32 v13, v14, v15\ns_nop 1")
    for mod in ("quad_perm:[1,0,3,2]","quad_perm:[2,3,0,1]","row_half_mirror"):
        A(f"v_add_f32_dpp v12, v12, v12 {mod} row_mask:0xf bank_mask:0xf\nv_add_f32_dpp v13, v13, v13 {mod} row_mask:0xf bank_mask:0xf\ns_nop 0")
    A(f"v_mul_f32 v12, {f2u(1/512):#x}, v12\nv_mul_f32 v13, {f2u(1/512):#x}, v13")
    A("v_fma_f32 v13, -v12, v12, v13\nv_max_f32 v13, 0, v13")
    A("v_cvt_pk_bf16_f32 v13, v13, v13\nv_and_b32 v13, 0xffff0000, v13")
    A(f"v_add_f32 v13, {f2u(1e-5):#x}, v13")
    A("v_cvt_pk_bf16_f32 v13, v13, v13\nv_and_b32 v13, 0xffff0000, v13\nv_sqrt_f32 v13, v13")
    A("v_cvt_pk_bf16_f32 v12, v12, v12\nv_cvt_pk_bf16_f32 v13, v13, v13\nv_and_b32 v13, 0xffff0000, v13\nv_rcp_f32 v14, v13\nv_and_b32 v12, 0xffff0000, v12")
    A("v_mov_b32 v15, v14\nv_mul_f32 v16, -v12, v14\nv_mov_b32 v17, v16")
    for i in range(8):
        for d in range(0,4,2):
            r=X+4*i+d
            A(f"v_lshlrev_b32 v68, 16, v{r}\nv_and_b32 v69, 0xffff0000, v{r}\nv_lshlrev_b32 v70, 16, v{r+1}\nv_and_b32 v71, 0xffff0000, v{r+1}")
            A(f"v_pk_fma_f32 v[68:69], v[68:69], v[14:15], v[16:17]\nv_pk_fma_f32 v[70:71], v[70:71], v[14:15], v[16:17]\nv_cvt_pk_bf16_f32 v{r}, v68, v69\nv_cvt_pk_bf16_f32 v{r+1}, v70, v71")
        A(f"ds_write_b128 v4, {vr(X+4*i,4)} offset:{8192*i}")
    for l in later: A(l)
    A(f"s_waitcnt vmcnt({vm.n_after(('W',0))})\ns_cmp_ge_u32 s40, 4\ns_cbranch_scc1 p1_nop")
    A(f"v_mov_b32 v64, -1\nv_mov_b32 v65, -1\nv_mov_b32 v66, -1\nv_mov_b32 v67, -1\ns_lshl_b32 s68, s98, 1\ns_add_u32 s68, s68, s41\ns_lshl_b32 s59, s99, 1\ns_add_u32 s59, s59, s42\ns_lshl_b32 s69, s68, 4\ns_add_u32 s69, s69, s59\ns_lshl_b32 s69, s69, 11\ns_add_u32 s69, s69, {WS_O}")
    A("buffer_store_dwordx4 v[64:67], v2, s[32:35], s69 offen sc1\nbuffer_store_dwordx4 v[64:67], v2, s[32:35], s69 offen offset:1024 sc1")
    A.label("p1_nop")
    A(f"s_waitcnt lgkmcnt(0)\ns_barrier\ns_add_u32 s58, s58, 1")
    st.mark(A,2)
    vmh=copy.deepcopy(vm); vmc=vm; vmc.add("xst",2)
    A("s_cmp_ge_u32 s40, 4\ns_cbranch_scc1 p1_help\ns_setprio 1")
    FS=[64,80,32]; ACC=96
    def reads(F,kp):
        d=kp//4; ks=kp%4; sl=d%4
        r=[f"ds_read_b128 {vr(F,4)}, v{5+ks} offset:{d*8192}"]
        for c in range(3):
            for i in range(2): r.append(f"ds_read_b64_tr_b16 {vr(F+4+4*c+2*i,2)}, v{9+sl//2} offset:{(sl%2)*24576+c*8192+(16*ks+4*i)*128}")
        return r
    A("s_lshl_b32 s68, s101, 1\nv_add_u32 v18, s68, v2\nds_read_b128 v[48:51], v18\nds_read_b128 v[52:55], v18 offset:1024")
    for l in reads(FS[0],0)+reads(FS[1],1): A(l)
    A(f"s_and_b32 s59, s100, 7\ns_lshl_b32 s59, s59, 7\ns_add_u32 s59, s59, s57\ns_add_u32 s59, s59, {WS_XN}")
    pre=[f"buffer_store_dwordx4 v[48:51], v{vX}, s[32:35], s59 offen sc1",
         f"buffer_store_dwordx4 v[52:55], v{vX+1}, s[32:35], s59 offen sc1",
         "s_lshl_b32 s68, s98, 1\ns_add_u32 s68, s68, s41\ns_lshl_b32 s59, s99, 1\ns_add_u32 s59, s59, s42\ns_lshl_b32 s59, s59, 7\ns_add_u32 s59, s59, s68",
         f"s_lshl_b32 s70, s59, 10\ns_add_u32 s71, s70, {64*1024}\ns_lshl_b32 s68, s59, 11\ns_add_u32 s68, s68, {WS_KV}\ns_add_u32 s69, s68, {64*2048}",
         f"v_and_b32 v20, 31, v0\nv_lshlrev_b32 v20, 6, v20\nv_lshl_add_u32 v20, v1, 3, v20\ns_lshl_b32 s72, s40, 11\ns_add_u32 s72, s72, {VSC}\nv_add_u32 v20, s72, v20",
         "v_lshlrev_b32 v22, 10, v1\nv_lshl_add_u32 v22, v27, 7, v22\nv_bfe_u32 v23, v0, 3, 1\nv_lshl_add_u32 v22, v23, 9, v22\nv_bfe_u32 v23, v0, 2, 1\nv_lshl_add_u32 v22, v23, 6, v22",
         f"v_and_b32 v23, 3, v0\nv_lshl_add_u32 v22, v23, 3, v22\nv_add_u32 v22, s72, v22\nv_mov_b32 v24, {f2u(0.25*LOG2E):#x}\nv_mov_b32 v25, v24"]
    pre=pre[:2]+["\n".join(SM[i:i+5]) for i in range(0,len(SM),5)]+pre[2:]
    assert len(pre)<=31, len(pre)
    for kp in range(32):
        F=FS[kp%3]; d=kp//4
        fill=[]
        if kp==4*F1D+2:
            A(f"s_waitcnt vmcnt(0) lgkmcnt({7 if (LK and NW1<=2 and d<5) else 0})\ns_barrier")
            fill.append("FLAG")
        elif kp%4==2 and (U1H==1 or kp<30):
            w=f"vmcnt({vmc.n_after(('W',d+1))}) " if ('W',d+1) in vmc.ops else ""
            A(f"s_waitcnt {w}lgkmcnt({7 if (LK and NW1<=2 and d<5) else 0})\ns_barrier")
        else: A(f"s_waitcnt lgkmcnt({7 if kp<31 else 0})")
        if EH and kp==31: A("s_barrier")
        if kp%4==2: st.mark(A,32+d)
        fl="FLAG" in fill; fill=[]
        if kp<30: fill+=reads(FS[(kp+2)%3],kp+2)
        if pre:
            fill.append(pre.pop(0))
            if kp<2: vmc.add("xst")
        weave(A,[mfma32(ACC+16*c,F+4+4*c,F,(ACC+16*c) if kp else "0") for c in (2,1,0)],fill)
        if fl: flag_store(A,"p1_f1",0,f"s_lshl_b32 s59, s98, 10\ns_lshl_b32 s88, s99, 7\ns_add_u32 s59, s59, s88\ns_add_u32 s59, s59, {FL1}",60,61)
    st.mark(A,3)
    V=ACC+32; Kk=ACC+16
    A("s_nop 9")
    for d in range(8): A(f"v_cvt_pk_bf16_f32 v{V+d}, v{V+2*d}, v{V+2*d+1}")
    for q in range(4): A(f"ds_write_b64 v20, {vr(V+2*q,2)} offset:{16*q}")
    for d in range(8): A(f"v_cvt_pk_bf16_f32 v{Kk+d}, v{Kk+2*d}, v{Kk+2*d+1}")
    A("s_waitcnt lgkmcnt(0)")
    for hh in range(2):
        for ii in range(2): A(f"ds_read_b64_tr_b16 {vr(V+4*hh+2*ii,2)}, v22 offset:{32*hh+256*ii}")
    A(f"buffer_store_dwordx4 {vr(Kk,4)}, v2, s[32:35], s68 offen sc1\nbuffer_store_dwordx4 {vr(Kk+4,4)}, v2, s[32:35], s69 offen sc1")
    A("s_waitcnt lgkmcnt(0)")
    A(f"buffer_store_dwordx4 {vr(V,4)}, v2, s[32:35], s68 offen offset:1024 sc1\nbuffer_store_dwordx4 {vr(V+4,4)}, v2, s[32:35], s69 offen offset:1024 sc1")
    for r in range(0,16,2): A(f"v_pk_mul_f32 {vr(ACC+r,2)}, {vr(ACC+r,2)}, v[24:25]")
    for d in range(8): A(f"v_cvt_pk_bf16_f32 v{ACC+d}, v{ACC+2*d}, v{ACC+2*d+1}")
    A(f"buffer_store_dwordx4 {vr(ACC,4)}, v2, s[32:35], s70 offen sc1\nbuffer_store_dwordx4 {vr(ACC+4,4)}, v2, s[32:35], s71 offen sc1")
    st.mark(A,49)
    A("s_setprio 0\ns_branch p1_join")
    A.label("p1_help")
    hs=list(SM); hper=(len(hs)+HSN-1)//HSN
    nxt=NW1
    if nxt<4:
        for l in dmaW(vmh,nxt,[0,1]): A(l)
        nxt+=1
    for d in range(8 if U1H==1 else 7):
        for l in hs[:hper]: A(l)
        hs=hs[hper:]
        if d==HSN-1:
            A(f"v_and_b32 v22, 15, v0\nv_lshlrev_b32 v22, 7, v22\ns_lshl_b32 s56, s46, 11\ns_add_u32 s56, s56, {FL1}")
            A("s_cmp_eq_u32 s44, 7\ns_cselect_b32 s26, 0, s26\ns_cselect_b32 s30, 0, s30\ns_cselect_b32 s38, 0, s38")
        st.mark(A,40+d)
        if d<7: A(f"s_waitcnt vmcnt({vmh.n_after(('W',d+1))})")
        st.mark(A,32+d)
        A("s_barrier")
        if nxt<8:
            assert nxt<=d+4
            for l in dmaW(vmh,nxt,[0,1]): A(l)
            nxt+=1
        if EARLY:
            if d==4: A("buffer_load_dword v23, v22, s[32:35], s56 offen sc1"); vmh.add("f1")
            if d==5:
                for l in dmaUW(vmh,0,0)+dmaUW(vmh,0,1): A(l)
            if d==6:
                poll_check(A,"p1_c1",22,23,"s56",8,False)
                for hi in range(2):
                    for l in dmaUX(vmh,0,hi): A(l)
        else:
            if d==5:
                for l in dmaUW(vmh,0,0): A(l)
            if d==6:
                for l in dmaUW(vmh,0,1): A(l)
                A("buffer_load_dword v23, v22, s[32:35], s56 offen sc1"); vmh.add("f1")
    if not EARLY:
        poll_check(A,"p1_c1",22,23,"s56",0,False)
        st.mark(A,48)
        for hi in range(2):
            for l in dmaUX(vmh,0,hi): A(l)
    if U1H in (1,2):
        for hi in range(2):
            for l in dmaU(vmh,1,hi): A(l)
    st.mark(A,49)
    A(f"s_waitcnt vmcnt({12 if U1H in (1,2) else 0})")
    st.mark(A,55)
    if EH: A("s_barrier")
    A.label("p1_join")
    A("s_cmp_eq_u32 s44, 7\ns_cselect_b32 s26, 0, s26\ns_cselect_b32 s30, 0, s30\ns_cselect_b32 s38, 0, s38")
    for i in range(4): A(f"v_mov_b32 v{LA+i}, 0\nv_mov_b32 v{LACC+i}, 0")
    A(f"s_mov_b32 exec_lo, 0x03030303\ns_mov_b32 exec_hi, 0x03030303\nv_mov_b32 v{LA}, 0x3f803f80\nv_mov_b32 v{LA+1}, 0x3f803f80")
    A(f"s_mov_b32 exec_lo, 0x30303030\ns_mov_b32 exec_hi, 0x30303030\nv_mov_b32 v{LA+2}, 0x3f803f80\nv_mov_b32 v{LA+3}, 0x3f803f80\ns_mov_b64 exec, -1")
    A(f"v_lshrrev_b32 v30, 1, v0\nv_lshlrev_b32 v30, 7, v30\nv_and_b32 v31, 1, v0\nv_lshl_add_u32 v30, v31, 2, v30\ns_lshr_b32 s56, s43, 1\ns_lshl_b32 s56, s56, 12\ns_add_u32 s56, s56, {FL2}"+ONLY7)
    if TB:
        for k_ in range(4): A(f"v_add_u32 v{a3+k_}, {B3}, v{aX+4+k_}")
        for k_ in range(2): A(f"v_add_u32 v{a3+4+k_}, {B3}, v{aW+2+k_}")
    st.mark(A,4)
    vm=VM(); vm.add(("U",1)); vm.add(("U",0))
    if F2G<0: vm=VM(); vm.add(("U",0)); vm.add(("U",1))
    def f2flag():
        if F2G<0: A("s_cmp_ge_u32 s40, 4\ns_cbranch_scc1 j_nw\ns_waitcnt vmcnt(0)\nj_nw:")
        else: A(f"s_waitcnt vmcnt({vm.n_after(('U',0))})")
        flag_store(A,"p1_f2",None,f"s_lshl_b32 s59, s99, 1\ns_add_u32 s59, s59, s42\ns_lshl_b32 s59, s59, 5\ns_add_u32 s59, s59, s98\ns_lshl_b32 s59, s59, 5\ns_add_u32 s59, s59, s41\ns_lshl_b32 s59, s59, 2\ns_add_u32 s59, s59, {FL2}",28,29,"s_cmp_lt_u32 s40, 4"); vm.add("fs")
        st.mark(A,57)
    if NPRE==1 or F2G<0: f2flag()
    kv=lambda t: ((t//4)%3)*KVS+(t%4)*2048
    def up_reads(g):
        n,ks=g//4,g%4; F=FR[g%2]; b=ub(n)
        L=[f"ds_read_b128 {vr(F+8+4*t,4)}, v{aX+4*b+ks} offset:{t*4096}" for t in range(2)]
        for jj in range(2):
            for i in range(2): L.append(f"ds_read_b64_tr_b16 {vr(F+4*jj+2*i,2)}, v{(aW+2*b+jj) if b<2 else (a3+4+jj)} offset:{(16*ks+4*i)*128}")
        return L
    def up_mf(g):
        F=FR[g%2]
        return [mfma32(GACC+16*(2*t+jj),F+4*jj,F+8+4*t,(GACC+16*(2*t+jj)) if g else "0") for t in range(2) for jj in range(2)]
    def dn_reads(g):
        n,u=g//4,g%4; F=FR[g%2]; b=n%2; L=[]
        for k in range(2):
            ks=2*u+k
            L.append(f"ds_read_b128 {vr(F+8+4*k,4)}, v{aH+b} offset:{ks*1024}")
            for i in range(2): L.append(f"ds_read_b64_tr_b16 {vr(F+4*k+2*i,2)}, v{aD+b} offset:{ks*2048+i*1024}")
        return L
    def dn_mf(g):
        F=FR[g%2]
        return [mfma32(DACC,F+4*k,F+8+4*k,DACC if (g or k) else "0") for k in range(2)]
    def up_epi(ti):
        acc=GACC+16*ti; t,jj=ti//2,ti%2
        L=[f"v_max_f32 v{acc+r}, 0, v{acc+r}" for r in range(8)]+[f"v_mul_f32 v{acc+r}, v{acc+r}, v{acc+8+r}" for r in range(8)]
        L+=[f"v_cvt_pk_bf16_f32 v{acc+d}, v{acc+2*d}, v{acc+2*d+1}" for d in range(4)]
        L.append(f"buffer_store_dwordx4 {vr(acc,4)}, v2, s[36:39], s{54+t} offen offset:{1024*jj} sc1")
        return L
    if IDLE: A("s_cmp_eq_u32 s44, 7\ns_cbranch_scc1 idle_path")
    sec0=len(A.lines)
    for n in range(NPRE):
        if n==NPRE-1:
            if n==0: A("buffer_load_dword v31, v30, s[32:35], s56 offen sc1"); vm.add("f2")
            st.mark(A,56)
            poll_check(A,"m_c2",30,31,"s56",vm.n_after("f2"))
        if not (EH and n==0): A((f"s_waitcnt vmcnt({vm.n_after(('U',n))}) lgkmcnt(0)" if n else "s_waitcnt lgkmcnt(0)")+"\ns_barrier")
        if n==2: st.mark(A,7)
        st.mark(A,50+n)
        if n==NPRE-1:
            A(f"s_lshl_b32 s59, s43, 6\ns_add_u32 s59, s59, s45\ns_lshl_b32 s59, s59, 10\nbuffer_load_dwordx4 {vr(Q,4)}, v2, s[32:35], s59 offen sc1"); vm.add("q")
            for l in dmaKV(vm,0)+dmaKV(vm,1): A(l)
        nn=n+1
        if TB: nn={0:2,1:3,2:4}.get(n,None)
        dml=dmaU(VM(),nn) if (nn is not None and (TB or n or not U1H)) else []
        if U1H==3 and n==0:
            for l in up_reads(0): A(l)
            A("s_cmp_lt_u32 s40, 4\ns_cbranch_scc1 j_u1")
            for hi in range(2):
                for l in dmaU(VM(),1,hi): A(l)
            A.label("j_u1")
        for u in range(4):
            g=4*n+u
            if u>0: A("s_waitcnt lgkmcnt(0)")
            fill=up_reads(g) if not (U1H==3 and g==0) else []
            if g==PG and NPRE>1: fill.append("buffer_load_dword v31, v30, s[32:35], s56 offen sc1"); vm.add("f2")
            kk=2 if TB else 3
            fill+=dml[:kk]; vm.add(("U",nn),len(dml[:kk])); dml=dml[kk:]
            if g>0: weave(A,up_mf(g-1),fill)
            else:
                for l in fill: A(l)
            if g==F2G and NPRE>1: f2flag()
    st.mark(A,5)
    A(f"s_waitcnt vmcnt({vm.n_after(('KV',0))})\ns_barrier")
    st.mark(A,6)
    A(f"ds_read_b128 {vr(K,4)}, v{aK}")
    A("s_waitcnt lgkmcnt(0)")
    A(mfma32(SA,K,Q,"0"))
    for r in range(16): A(f"v_mov_b32 v{O+r}, 0")
    def max16(dst,S,first):
        if first:
            A(f"v_max3_f32 v{dst}, v{S}, v{S+1}, v{S+2}\nv_max_f32 v{dst}, v{dst}, v{S+3}")
            s0=4
        else: s0=0
        for r in range(s0,16,2): A(f"v_max3_f32 v{dst}, v{dst}, v{S+r}, v{S+r+1}")
    max16(28,SA,True)
    A(f"v_add_f32 v28, {f2u(MOFF):#x}, v28")
    A(f"v_mov_b32 v29, v28\ns_nop 1\nv_permlane32_swap_b32 v28, v29\nv_max_f32 v28, v28, v29")
    for r in range(16): A(f"v_sub_f32 v{C+r}, 0, v28")
    A("s_nop 1")
    A(mfma32(SA,K,Q,C))
    A(f"ds_read_b128 {vr(K,4)}, v{aK} offset:2048\ns_nop 5")
    if PRIO: A("s_setprio 1")
    UP0=-NPRE; D0=UP0+8+DGAP
    for it in range(16):
        if it-UP0==9:
            sec1=len(A.lines); A.label("idle_merge")
        needs=[]
        if it+1<16: needs.append(vm.n_after(("KV",it+1)))
        n=it-UP0; dn=it-D0
        if 0<=n<8: needs.append(vm.n_after(("U",n)))
        if 0<=dn<7 and not E("X_NOWAIT",0): needs.append(vm.n_after(("D",dn)))
        if dn==-1: poll_check(A,"m_c3",30,31,"s56",vm.n_after("f3"))
        A((f"s_waitcnt vmcnt({min(needs)}) lgkmcnt(0)" if needs else "s_waitcnt lgkmcnt(0)")+"\ns_barrier")
        st.mark(A,8+it)
        if PRIO: A(f"s_cmp_lt_u32 s40, 4\ns_cbranch_scc1 m_pa{it}\ns_setprio 2\nm_pa{it}:")
        if n==9:
            A(f"s_lshl_b32 s56, s43, 4\ns_add_u32 s56, s56, {(FL3-FL1)//128}\nv_lshrrev_b32 v30, 2, v0\nv_add_u32 v30, s56, v30\nv_lshlrev_b32 v30, 7, v30\nv_and_b32 v31, 3, v0\nv_lshl_add_u32 v30, v31, 2, v30\nv_and_b32 v31, 7, v0\ns_lshl_b32 s56, s43, 3\nv_add_u32 v31, s56, v31\nv_lshlrev_b32 v31, 7, v31\nv_cmp_lt_u32 vcc, 55, v0")
            A(f"s_mov_b32 s56, {FL1}"+ONLY7+"\nv_cndmask_b32 v30, v30, v31, vcc")
        dml=[]
        if dn+1==0: dml+=dmaDH(vm,0)
        if it+2<16 and E("KVF",0): dml+=dmaKV(vm,it+2)
        if 0<dn+1<7: dml+=dmaDH(vm,dn+1)+dmaDW(vm,dn+1)
        if 2<=n+1<8: dml+=dmaU(vm,n+1)
        if it+2<16 and not E("KVF",0): dml+=dmaKV(vm,it+2)
        if n==7: dml+=dmaDW(vm,0)
        if dn==6: dml+=dmaWO(vm)
        if n==7 and WOT: dml.append("s_lshl_b32 s59, s2, 3\ns_add_u32 s59, s59, s40\ns_lshl_b32 s59, s59, 8\nv_lshlrev_b32 v28, 7, v0\ns_mov_b64 exec, 3\nbuffer_load_dword v195, v28, s[60:63], s59 offen\ns_mov_b64 exec, -1"); vm.add("t")
        if it==14:
            dml.append(f"s_lshl_b32 s57, s43, 16\ns_lshl_b32 s68, s40, 13\ns_add_u32 s57, s57, s68\ns_lshl_b32 s68, s44, 7\ns_add_u32 s57, s57, s68\nv_lshrrev_b32 v{XR+4}, 3, v0\nv_lshlrev_b32 v{XR+4}, 10, v{XR+4}\nv_and_b32 v{XR+5}, 7, v0\nv_lshl_add_u32 v{XR+4}, v{XR+5}, 4, v{XR+4}\n"+
                       f"buffer_load_dwordx4 {vr(XR,4)}, v{XR+4}, s[16:19], s57 offen"); vm.add("x")
        for u in range(4):
            t=4*it+u
            if PRIO and u==PRIO: A(f"s_cmp_lt_u32 s40, 4\ns_cbranch_scc1 m_pb{it}\ns_setprio 0\nm_pb{it}:")
            PP=eval(os.environ.get("PP","[3,3,3,3,2,2,1,0]"))
            if PROG and (u==0 or PP[2*u]!=PP[2*u-1]): A(f"s_setprio {PP[2*u]}")
            Sc,Sn=(SA,SB) if u%2==0 else (SB,SA)
            val=[f"v_exp_f32 v{Sc+r}, v{Sc+r}" for r in range(16)]+[f"v_cvt_pk_bf16_f32 v{P+d}, v{Sc+2*d}, v{Sc+2*d+1}" for d in range(8)]
            g=4*n+u; gd=4*dn+u
            ex=[]; rds=[]
            if 0<=g-1<32: ex+=up_mf(g-1)
            if 0<=g<32: rds+=up_reads(g)
            if 0<=gd-1<28: ex+=dn_mf(gd-1)
            if 0<=gd<28: rds+=dn_reads(gd)
            extra=[]; post=''
            if n==8 and u in (1,2):
                for ti in ([0,1],[2,3])[u-1]: extra+=up_epi(ti); vm.add("hst")
            if 4*n+u==F3G:
                B=Asm(); flag_store(B,"m_f3",None,f"s_lshl_b32 s59, s46, 1\ns_add_u32 s59, s59, s41\ns_lshl_b32 s59, s59, 4\ns_add_u32 s59, s59, s47\ns_lshl_b32 s59, s59, 5\ns_lshr_b32 s68, s40, 1\ns_add_u32 s59, s59, s68\ns_lshl_b32 s59, s59, 2\ns_add_u32 s59, s59, {FL3}",28,29,"s_cmp_lg_u32 s44, 7")
                post=f"s_waitcnt vmcnt({vm.n_after('hst')})\n"+B.text(); vm.add("fs")
            if dn==-2 and u==F3U: extra.append("buffer_load_dword v31, v30, s[32:35], s56 offen sc1"); vm.add("f3")
            SPR=E("SPR",3)
            k=len(dml) if (n in (8,9) or u>=SPR-1) else (len(dml)+SPR-u-1)//(SPR-u)
            if E("X_NODMA",0) and dn>=0: dml=[x for x in dml if "s81" in x]; k=len(dml)
            mine=dml[:k]; dml=dml[k:]
            qk=[mfma32(Sn,K,Q,C)]+([f"ds_read_b128 {vr(K,4)}, v{aK} offset:{kv(t+2)}"] if t+2<64 else [])
            if t==63: qk=[]
            pv=([sm32] if t else [])+[f"ds_read_b128 {vr(VA,4)}, v{aK} offset:{kv(t)+1024}"]
            ls=[sm16] if t else []
            nx=len(ex); e=[[m] for m in ex]
            seq={0:[qk,pv,ls],2:[qk,pv]+e[0:1]+[ls]+e[1:2],4:[qk]+e[0:1]+[pv]+e[1:2]+[ls]+e[2:4]}[nx]
            ils=[i for i,x in enumerate(seq) if x is ls][0]
            ng=len(seq)
            for i,x in enumerate(rds): seq[min(ng-2,(i*(ng-1))//max(1,len(rds)))].append(x)
            for i,x in enumerate(mine): seq[(i*ng)//len(mine)].append(x)
            if u>0: A("s_waitcnt lgkmcnt(0)")
            val=val+extra
            cost=[8 if "exp" in x else 4 for x in val]; tot=sum(cost); acc=0; gi=0
            for i,x in enumerate(val):
                if PROG and i==10 and PP[2*u+1]!=PP[2*u]: A(f"s_setprio {PP[2*u+1]}")
                while gi<ng and (acc>=tot*gi/ng or (gi<=ils and i>=15-3*(ils-gi))):
                    for y in seq[gi]: A(y)
                    gi+=1
                A(x); acc+=cost[i]
            while gi<ng:
                for y in seq[gi]: A(y)
                gi+=1
            if post: A(post)
    A("s_waitcnt lgkmcnt(0)\ns_nop 0")
    A(sm32); A(sm16)
    if D0+7>=16:
        for m in dn_mf(4*(16-D0)-1): A(m)
    st.mark(A,24)
    A(f"s_lshl_b32 s59, s45, 5\ns_add_u32 s59, s59, s43\ns_lshl_b32 s59, s59, 10\ns_add_u32 s70, s59, {WS_O}\ns_nop 7")
    def fold():
        for r in range(8): A(f"v_add_f32 v{O+r}, v{O+r}, v{O+8+r}")
        A(f"v_add_f32 v{O+8}, v{LACC}, v{LACC+1}")
    fold()
    A(f"v_max3_f32 v28, |v{O}|, |v{O+1}|, |v{O+2}|\nv_max3_f32 v28, v28, |v{O+3}|, |v{O+4}|\nv_max3_f32 v28, v28, |v{O+5}|, |v{O+6}|")
    A(f"v_max3_f32 v28, v28, |v{O+7}|, v{O+8}")
    A(f"v_add_f32 v29, v{O}, v{O+1}")
    for r in range(2,9): A(f"v_add_f32 v29, v29, v{O+r}")
    A("v_fma_f32 v28, 0, v29, v28")
    A(f"v_cmp_ngt_f32 vcc, {f2u(2.0**125):#x}, v28")
    A("s_nop 4\ns_cbranch_vccnz m_fallback")
    A.label("m_fin")
    A(f"v_rcp_f32 v28, v{O+8}\ns_nop 0")
    for r in range(8): A(f"v_mul_f32 v{O+r}, v28, v{O+r}")
    for d in range(4): A(f"v_cvt_pk_bf16_f32 v{P+d}, v{O+2*d}, v{O+2*d+1}")
    for d in range(4): A(f"v_min_u32 v{P+d}, -2, v{P+d}")
    A(f"buffer_store_dwordx4 {vr(P,4)}, v2, s[32:35], s70 offen sc1"); vm.add("ost")
    QS=1056; PS=8*QS
    A(f"s_lshl_b32 s68, s41, 1\ns_add_u32 s68, s68, s48\ns_mul_i32 s68, s68, {PS}\ns_mul_i32 s69, s42, {4*QS}\ns_add_u32 s68, s68, s69\ns_add_u32 s68, s68, {GB[0]}\nv_add_u32 v28, s68, v2")
    A(f"v_mul_u32_u24 v29, {QS}, v{XR+5}\nv_lshrrev_b32 v30, 3, v0\nv_lshl_add_u32 v29, v30, 4, v29\ns_lshr_b32 s68, s101, 3\ns_add_u32 s68, s68, {GB[0]}\nv_add_u32 v29, s68, v29")
    A(f"s_mul_i32 s68, s48, {4*PS}\nv_add_u32 v37, s68, v29\ns_mul_i32 s68, s48, {2*PS}\nv_add_u32 v29, s68, v29\ns_mul_i32 s68, s40, {PS}\ns_add_u32 s68, s68, {GB[0]}\nv_add_u32 v36, s68, v2")
    for dn in range(max(0,16-D0),7):
        A(f"s_waitcnt vmcnt({vm.n_after(('D',dn))})\ns_barrier")
        for l in dn_reads(4*dn): A(l)
        dml=(dmaDH(vm,dn+1)+dmaDW(vm,dn+1)) if dn<6 else dmaWO(vm)
        for u in range(4):
            A("s_waitcnt lgkmcnt(0)")
            weave(A,dn_mf(4*dn+u),(dn_reads(4*dn+u+1) if u<3 else [])+dml[2*u:2*u+2])
    A(f"s_lshl_b32 s68, s48, 14\ns_add_u32 s68, s68, 32768\ns_lshl_b32 s69, s101, 4\ns_sub_u32 s68, s69, s68\nv_add_u32 v34, s68, v{aD+1}\ns_lshl_b32 s68, s42, 6\nv_xor_b32 v34, s68, v34\nv_xor_b32 v35, 64, v34")
    A(f"s_lshl_b32 s70, s43, 1\ns_add_u32 s70, s70, s48\ns_lshl_b32 s70, s70, 15\ns_lshl_b32 s68, s101, 3\ns_add_u32 s70, s70, s68\ns_add_u32 s70, s70, {WS_O}\ns_add_u32 s71, s70, 4096")
    A(f"s_waitcnt vmcnt({vm.n_after('wo')})\ns_barrier")
    st.mark(A,25)
    for q in range(4): A(f"ds_write_b128 v28, {vr(DACC+4*q,4)} offset:{q*QS}")
    AF=128; OF=64; ACS=96; G=56
    rd=[f"ds_read_b64_tr_b16 {vr(AF+8*n+4*cb+2*i,2)}, v{34+cb} offset:{n*2048+i*1024}" for n in range(8) for cb in range(2) for i in range(2)]
    ol=[f"buffer_load_dwordx4 {vr(OF+4*i,4)}, v2, s[32:35], {'s70' if i<4 else 's71'} offen offset:{1024*(i%4)} sc1" for i in range(8)]
    A(f"s_mov_b32 s59, {SPIN//8}")
    for l in ol[:OE]: A(l)
    A("s_waitcnt lgkmcnt(0)\ns_barrier")
    for kh in range(2):
        for hh in range(2): A(f"ds_read_b128 {vr(40+8*kh+4*hh,4)}, v29 offset:{kh*PS+hh*512}")
    for l in rd[:8]: A(l)
    A("s_waitcnt lgkmcnt(8)")
    val=[f"v_add_f32 v{G+r}, v{40+r}, v{48+r}" for r in range(8)]+[f"v_mul_f32 v{40+r}, {f2u(-LOG2E):#x}, v{G+r}" for r in range(8)]+[f"v_exp_f32 v{40+r}, v{40+r}" for r in range(8)]+[f"v_add_f32 v{40+r}, 1.0, v{40+r}" for r in range(8)]+[f"v_rcp_f32 v{40+r}, v{40+r}" for r in range(8)]+[f"v_mul_f32 v{G+r}, v{G+r}, v{40+r}" for r in range(8)]
    for i,x in enumerate(val):
        A(x)
        if i<24: A(rd[8+i])
        if OE and i%6==5 and OE+i//6<8: A(ol[OE+i//6])
    for d in range(4): A(f"v_lshlrev_b32 v{40+2*d}, 16, v{XR+d}\nv_and_b32 v{41+2*d}, 0xffff0000, v{XR+d}")
    A("s_waitcnt lgkmcnt(0)\ns_barrier")
    st.mark(A,26)
    if OE: A("s_branch m_ochk")
    A.label("m_oretry")
    for l in ol: A(l)
    A.label("m_ochk")
    A("v_mov_b32 v38, 0")
    for n in range(8):
        A(f"s_waitcnt vmcnt({7-n})")
        A(mfma32(ACS,AF+8*n,OF+4*n,ACS if n else "0"))
        A(f"v_max3_u32 v38, v38, v{OF+4*n}, v{OF+4*n+1}\nv_max3_u32 v38, v38, v{OF+4*n+2}, v{OF+4*n+3}")
        A(mfma32(ACS+16,AF+8*n+4,OF+4*n,(ACS+16) if n else "0"))
    A("v_cmp_eq_u32 vcc, -1, v38\ns_sub_u32 s59, s59, 1\ns_cselect_b64 s[68:69], 0, -1\ns_nop 2\ns_and_b64 vcc, vcc, s[68:69]\ns_cbranch_vccnz m_oretry")
    st.mark(A,27)
    A("s_nop 5")
    for q in range(8): A(f"ds_write_b128 v36, {vr(ACS+4*q,4)} offset:{q*QS}")
    A("s_waitcnt lgkmcnt(0)\ns_barrier")
    T=64
    for kq in range(4):
        for hh in range(2): A(f"ds_read_b128 {vr(T+8*kq+4*hh,4)}, v37 offset:{kq*PS+hh*512}")
    A("s_waitcnt lgkmcnt(4)")
    for r in range(8): A(f"v_add_f32 v{T+r}, v{T+r}, v{T+8+r}")
    A("s_waitcnt lgkmcnt(0)")
    for r in range(8): A(f"v_add_f32 v{T+16+r}, v{T+16+r}, v{T+24+r}")
    for r in range(8): A(f"v_add_f32 v{T+r}, v{T+r}, v{T+16+r}")
    for r in range(8): A(f"v_fma_f32 v{40+r}, v{T+r}, v{G+r}, v{40+r}")
    for d in range(4): A(f"v_cvt_pk_bf16_f32 v{48+d}, v{40+2*d}, v{41+2*d}")
    A(f"buffer_store_dwordx4 v[48:51], v{XR+4}, s[64:67], s57 offen"+os.environ.get("OF"," sc1"))
    flag_store(A,"m_bump",0,f"s_mov_b32 s59, {WS_T}",32,33,"s_cmp_eq_u32 s2, 0")
    if STAMP:
        st.mark(A,28)
        A("s_waitcnt vmcnt(0)")
        st.mark(A,29)
        A(f"v_subrev_u32 v250, {'s92' if STAMP==2 else 's94'}, v250\ns_memrealtime s[96:97]\ns_waitcnt lgkmcnt(0)\nv_writelane_b32 v250, s92, 30\nv_writelane_b32 v250, s96, 31")
        A(f"s_lshl_b32 s96, s2, 3\ns_add_u32 s96, s96, s40\ns_lshl_b32 s96, s96, 8\ns_add_u32 s96, s96, {WS_ST}\nv_lshlrev_b32 v251, 2, v0\nbuffer_store_dword v250, v251, s[32:35], s96 offen")
    if E("PAD",0):
        A.label("k_pad")
        A(f"s_memrealtime s[96:97]\ns_waitcnt lgkmcnt(0)\ns_sub_u32 s96, s96, s92\ns_cmp_lt_u32 s96, {E('PAD',0)}\ns_cbranch_scc1 k_pad")
    if E("DBG",0):
        A("s_cmp_eq_u32 s40, 0\ns_cbranch_scc0 k_end\ns_load_dwordx2 s[4:5], s[0:1], 64\ns_memrealtime s[96:97]\ns_memtime s[6:7]\ns_waitcnt vmcnt(0) lgkmcnt(0)")
        srd(A,8,4,256)
        A("s_not_b32 s92, s92\ns_sub_u32 s6, s6, s94\nv_mov_b32 v1, 0\nv_mov_b32 v2, s92\nv_mov_b32 v3, s96\nv_mov_b32 v4, s6\ns_mov_b64 exec, 1")
        A("buffer_atomic_umax v2, v1, s[8:11], 0 offen\nbuffer_atomic_umax v3, v1, s[8:11], 0 offen offset:4\nbuffer_atomic_umax v4, v1, s[8:11], 0 offen offset:8")
        if STAMP:
            for k,l in enumerate([0,1,2,3,49,50,6,8,16,24,25,26,29]):
                A(f"v_readlane_b32 s6, v250, {l}\ns_nop 3\nv_mov_b32 v4, s6\nbuffer_atomic_umax v4, v1, s[8:11], 0 offen offset:{12+4*k}")
    A.label("k_end")
    A("s_endpgm")
    if IDLE:
        import re
        A.label("idle_path")
        for l in A.lines[sec0:sec1]:
            t_=l.strip(); m_=re.match(r"(\S+) v\[?(\d+)",t_)
            if m_:
                op,r_=m_.group(1),int(m_.group(2))
                if op.startswith("v_mfma") and r_>=128: continue
                if op.startswith("ds_read") and r_>=96: continue
                if op in("v_max_f32","v_mul_f32","v_cvt_pk_bf16_f32","buffer_store_dwordx4") and 128<=r_<192: continue
                if t_.endswith("lds") and r_ in (vG,vU,vX,vX+1): continue
            t_=re.sub(r"vmcnt\(\d+\)","vmcnt(0)",t_).replace("m_c2","i_c2")
            if t_=="s_nop 5": t_="s_nop 12"
            A(t_)
        A("s_waitcnt vmcnt(0)\ns_branch idle_merge")
        spins.append(("i_c2",30,31,"s56"))
    for name,va,vd,so in spins:
        A.label(name+"_spin")
        A(f"s_mov_b32 s59, {SPIN}")
        A.label(name+"_l")
        A(f"s_sleep {SLEEP}\nbuffer_load_dword v{vd}, v{va}, s[32:35], {so} offen sc1\ns_waitcnt vmcnt(0)\nv_cmp_ne_u32 vcc, s58, v{vd}\ns_sub_u32 s59, s59, 1\ns_nop 3")
        A(f"s_cbranch_vccz {name}_ret\ns_cmp_lg_u32 s59, 0\ns_cbranch_scc1 {name}_l\ns_branch {name}_ret")
    A.label("m_fallback")
    A(f"s_sub_u32 s68, s49, s101\ns_mov_b32 s69, 0\nv_mov_b32 v28, 0xff800000")
    A.label("m_fb1")
    A(f"buffer_load_dwordx4 {vr(K,4)}, v2, s[32:35], s68 offen sc1\ns_add_u32 s68, s68, 2048\ns_waitcnt vmcnt(0)")
    A(mfma32(SA,K,Q,"0"))
    A("s_nop 15")
    max16(28,SA,False)
    A("s_add_u32 s69, s69, 1\ns_cmp_lt_u32 s69, 64\ns_cbranch_scc1 m_fb1")
    A("v_mov_b32 v29, v28\ns_nop 1\nv_permlane32_swap_b32 v28, v29\nv_max_f32 v28, v28, v29")
    for r in range(16): A(f"v_sub_f32 v{C+r}, 0, v28\nv_mov_b32 v{O+r}, 0")
    for r in range(4): A(f"v_mov_b32 v{LACC+r}, 0")
    A(f"s_sub_u32 s68, s49, s101\ns_mov_b32 s69, 0")
    A.label("m_fb2")
    A(f"buffer_load_dwordx4 {vr(K,4)}, v2, s[32:35], s68 offen sc1\nbuffer_load_dwordx4 {vr(VA,4)}, v2, s[32:35], s68 offen offset:1024 sc1")
    A("s_add_u32 s68, s68, 2048\ns_waitcnt vmcnt(0)")
    A(mfma32(SA,K,Q,C))
    A("s_nop 15")
    for r in range(16): A(f"v_exp_f32 v{SA+r}, v{SA+r}")
    for d in range(8): A(f"v_cvt_pk_bf16_f32 v{P+d}, v{SA+2*d}, v{SA+2*d+1}")
    A("s_nop 1")
    A(sm32); A(sm16)
    A("s_add_u32 s69, s69, 1\ns_cmp_lt_u32 s69, 64\ns_cbranch_scc1 m_fb2")
    A("s_nop 15")
    fold()
    A("k_last:\ns_branch m_fin")

def main(out):
    hdr=open("cdna_kernels/"+NAME+".s.ref").read().split("\n")
    head=[l for l in hdr if l.startswith(";") and "@launch" not in l]
    T="\n".join(head)+"\n"
    if E("LIST",0)==2: T+=f"; @launch kernel={KN} grid=(256,1,1) block=(512,1,1) lds={LDS}\n"
    if E("LIST",0): T+=f"; @launch kernel={KN} grid=(256,1,1) block=(512,1,1) lds={LDS}\n"
    else: T+=f"; @launch grid=(256,1,1) block=(512,1,1) lds={LDS}\n"
    T+='.amdgcn_target "amdgcn-amd-amdhsa--gfx950"\n.text\n'
    A=Asm(); kern(A)
    for e in hazard_check(A.text()): print(e)
    T+=f".globl {KN}\n.p2align 8\n.type {KN},@function\n"+A.text()
    T+='.section .rodata,"a"\n'+kdesc(KN,256,102)
    open(out,"w").write(T)
if __name__=="__main__":
    main(sys.argv[1] if len(sys.argv)>1 else "cdna_kernels/"+NAME+".s")
```

```python
import sys, struct, os, copy
from asmlib import *
NAME="recurrent_scan__mha_block__glu_gated_reglu__prompt"
KN=NAME+"_kernel"
WS_Q=0; WS_KV=2<<20; WS_H=6<<20; WS_O=13<<20; WS_XN=22<<20; WS_FL=21<<20; WS_T=WS_FL+98304; WS_SIZE=32<<20; WS_ST=24<<20
FL1=WS_FL; FL2=WS_FL+32768; FL3=WS_FL+524288; FL2=WS_FL+786432
def f2u(f): return struct.unpack("<I",struct.pack("<f",f))[0]
LOG2E=1.4426950408889634
E=lambda k,d: int(os.environ.get(k,str(d)))
STAMP=E("STAMP",0); TOUCH=E("TOUCH",0); G0=E("G0",0); PRIO=E("PRIO",0); NPRE=E("NPRE",3); DGAP=E("DGAP",5)
SPIN=400000
SLEEP=E('SLEEP',2)
CODEPF=E("CODEPF",1); WTOUCH=E("WTOUCH",0); NW0=E("NW0",1); NW1=E("NW1",2); F1D=E("F1D",2); F1P=E("F1P",22); F1C=E("F1C",25); PBURST=E("PBURST",1); U1H=E("U1H",2); UWD=E("UWD",6); TLB=E("TLB",0); OE=E("OE",2); HSN=E("HSN",5); LK=E("LK",1); PG=E("PG",7); EARLY=E("EARLY",1); F3U=E("F3U",1); F3G=E("F3G",36); W0L=E("W0L",0); EH=E("EH",0); IDLE=E("IDLE",0); WPRE=E("WPRE",1); W1G=E("W1G",1); RSW=E("RSW",1); XBAR=E("XBAR",0); F2G=E("F2G",2); HPRIO=E("HPRIO",0); PROG=E("PROG",1); ROT=E("ROT",1); WOT=E("WOT",1); UT=E("UT",0); UTK=E("UTK",27)
MOFF=float(E("MOFF",100))
class VM:
    def __init__(s): s.ops=[]
    def add(s,tag,n=1): s.ops+= [tag]*n
    def n_after(s,tag):
        idx=max(i for i,t in enumerate(s.ops) if t==tag)
        return len(s.ops)-1-idx
def weave(A,mf,fill):
    n=len(mf); k=len(fill); j=0
    for i,m in enumerate(mf):
        A(m)
        e=(k*(i+1))//n
        while j<e: A(fill[j]); j+=1
class St:
    def __init__(s): s.pend=None
    def mark(s,A,i):
        if STAMP:
            A(f"{'s_memrealtime' if STAMP==2 else 's_memtime'} s[96:97]\ns_waitcnt lgkmcnt(0)\nv_writelane_b32 v250, s96, {i}")
st=St()
WB=65536; GB=[65536,0]; KVB=131072; KVS=8192; VSC=49152 if E('EH',0) else 114688; LDS=163840
Q,K,VA,VB,P,C,SA,SB,O=4,8,12,16,20,32,48,64,80
IX1=207
def pvm(Vr,S): return f"v_smfmac_f32_32x32x32_bf16 {vr(O,16)}, {vr(Vr,4)}, {vr(S,8)}, v{IX1}"
FR=[96,112]; GACC=128; DACC=128
vG,vU,vD=192,193,194; aW,aH,aD=198,202,204; aK=206; XR=224; aX=232; vX=196
WS_XS=WS_FL+131072; WS_CS=WS_FL+262144
CSC=VSC+8192; SSC=VSC+12288
TB=E('TB',0); B3=114688; a3=240
def ub(n):
    if TB and n<2: return 1-n
    if TB and n==2: return 2
    return n%2
UB=[65536,0,B3]
DSL=[0,1,2,3,2,0,1]
SLOT=[0,32768,131072,65536,98304]
spins=[]
ONLY7="\ns_cmp_eq_u32 s40, 7\ns_cselect_b32 s56, s56, 0x7ff00000"
def poll_check(A,name,vaddr,vdst,soff,wait,only7=True):
    if only7: A(f"s_cmp_eq_u32 s40, 7\ns_cbranch_scc0 {name}_ret")
    A(f"s_waitcnt vmcnt({wait})\nv_cmp_ne_u32 vcc, s58, v{vdst}\ns_nop 4\ns_cbranch_vccnz {name}_spin\n{name}_ret:")
    spins.append((name,vaddr,vdst,soff))
def flag_store(A,name,wave,soff_code,va,vb,cond=None):
    A(soff_code)
    if wave is not None: A(f"s_cmp_eq_u32 s40, {wave}\ns_cselect_b32 s59, s59, 0x7ffffff0")
    if cond: A(f"{cond}\ns_cselect_b32 s59, s59, 0x7ffffff0")
    A(f"v_mov_b32 v{va}, s58\nv_mov_b32 v{vb}, 0\ns_mov_b64 exec, 1\nbuffer_store_dword v{va}, v{vb}, s[32:35], s59 offen sc1\ns_mov_b64 exec, -1")

def kern(A):
    vm=VM()
    A.label(KN)
    A("s_cmp_ge_u32 s2, 256\ns_cbranch_scc1 k_end")
    if STAMP or E("DBG",0) or E("PAD",0): A("s_memrealtime s[92:93]\ns_memtime s[94:95]")
    A("s_load_dwordx4 s[4:7], s[0:1], 0\ns_load_dwordx2 s[14:15], s[0:1], 72\ns_load_dwordx4 s[8:11], s[0:1], 32")
    A("s_load_dwordx4 s[72:75], s[0:1], 48\ns_load_dwordx2 s[12:13], s[0:1], 16")
    if CODEPF:
        A("s_getpc_b64 s[70:71]\nk_pc:\ns_and_b32 s68, s2, 0xf8\nv_add_u32 v26, s68, v0\nv_lshlrev_b32 v26, 7, v26\nv_min_u32 v26, k_last-k_pc, v26\nv_cmp_gt_u32 vcc, 8, v0\ns_and_saveexec_b64 s[68:69], vcc\ns_cbranch_execz k_nopf\nglobal_load_dword v26, v26, s[70:71]\nk_nopf:\ns_mov_b64 exec, -1")
    A("v_lshrrev_b32 v1, 6, v0\nv_and_b32 v0, 63, v0\nv_readfirstlane_b32 s40, v1")
    A("s_and_b32 s3, s2, 7\ns_lshr_b32 s59, s2, 3\ns_and_b32 s100, s59, 7")
    A("s_and_b32 s98, s3, 3\ns_lshl_b32 s98, s98, 3\ns_add_u32 s98, s98, s100")
    A("s_lshr_b32 s99, s3, 2\ns_lshl_b32 s99, s99, 2\ns_lshr_b32 s68, s59, 3\ns_add_u32 s99, s99, s68")
    A("s_add_u32 s100, s100, s99")
    A("v_lshrrev_b32 v20, 3, v0\nv_and_b32 v21, 7, v0\nv_lshrrev_b32 v1, 5, v0\ns_and_b32 s70, s40, 3\ns_lshl_b32 s101, s70, 10")
    A(f"v_lshrrev_b32 v22, 4, v0\nv_xor_b32 v22, v22, v21\nv_lshlrev_b32 v22, 4, v22\nv_lshl_add_u32 v{vX}, v20, 10, v22\ns_lshl_b32 s68, s70, 14\nv_add_u32 v{vX}, s68, v{vX}\nv_xor_b32 v{vX+1}, 64, v{vX}\nv_add_u32 v{vX+1}, 0x2000, v{vX+1}")
    A("v_bfe_u32 v31, v0, 4, 1\nv_lshlrev_b32 v31, 2, v31\nv_xor_b32 v31, v31, v21\nv_lshlrev_b32 v31, 4, v31")
    A("s_lshl_b32 s70, s70, 3\nv_add_u32 v29, s70, v20\nv_mul_u32_u24 v30, 3072, v29\nv_add_u32 v30, v30, v31\ns_lshl_b32 s68, s99, 7\nv_add_u32 v30, s68, v30")
    A("s_and_b32 s89, s99, 1\ns_lshl_b32 s89, s89, 2\ns_xor_b32 s89, s89, s40" if RSW else "s_mov_b32 s89, s40")
    if WTOUCH: A("v_lshlrev_b32 v24, 7, v0\ns_lshl_b32 s59, s2, 3\ns_add_u32 s59, s59, s40\ns_mul_i32 s59, s59, 768")
    A("v_and_b32 v22, 31, v0\ns_lshl_b32 s68, s89, 13\nv_lshlrev_b32 v11, 4, v21\nv_lshl_add_u32 v11, v20, 10, v11\nv_add_u32 v11, s68, v11\ns_lshl_b32 s57, s98, 16")
    A("s_waitcnt lgkmcnt(0)")
    srd(A,16,4,2048*1024); srd(A,20,6,512*3072)
    if WTOUCH: A("s_mov_b64 exec, 0x3f\nbuffer_load_dword v25, v24, s[20:23], s59 offen\ns_mov_b64 exec, -1")
    if TLB:
        A("s_cmp_lt_u32 s40, 6\ns_cbranch_scc1 k_notlb\ns_cmp_eq_u32 s40, 7\ns_cbranch_scc1 k_tlb7")
        A("v_lshlrev_b32 v24, 21, v0\ns_mov_b64 exec, 0xfff\nglobal_load_dword v26, v24, s[14:15] sc1\ns_branch k_tlbd")
        A.label("k_tlb7")
        A("v_lshlrev_b32 v24, 20, v0\ns_mov_b64 exec, 3\nglobal_load_dword v26, v24, s[8:9]\nglobal_load_dword v26, v24, s[10:11]\nglobal_load_dword v26, v24, s[72:73]\nglobal_load_dword v26, v24, s[74:75]\ns_mov_b64 exec, 1\nglobal_load_dword v26, v24, s[12:13]")
        A.label("k_tlbd")
        A("s_mov_b64 exec, -1")
        A.label("k_notlb")
    X=32
    vm=VM()
    for i in range(8):
        A(f"s_add_u32 s88, s100, {i}\ns_and_b32 s88, s88, 7\ns_lshl_b32 s88, s88, 7\ns_add_u32 s88, s88, s57\nbuffer_load_dwordx4 {vr(X+4*i,4)}, v11, s[16:19], s88 offen"); vm.add(("x",i))
    if XBAR==1: A("s_barrier")
    def dmaW(vm,d,his):
        L=[]; b=WB+(d%4)*24576
        for k,hi in enumerate(his):
            for c in range(3):
                vm.add(("W",d))
                if c==0: pre=f"s_add_u32 s88, s100, {d}\ns_and_b32 s88, s88, 7\ns_mul_i32 s59, s88, {64*3072}\n"+("s_add_u32 s59, s59, s91\n" if hi is None else (f"s_add_u32 s59, s59, {32*3072}\n" if hi else ""))
                else: pre="s_add_u32 s59, s59, 1024\n"
                m=f"s80, {b+c*8192}" if hi is None else f"s101, {b+c*8192+hi*4096}"
                L.append(f"s_add_u32 m0, {m}\n"+pre+"buffer_load_dwordx4 v30, s[20:23], s59 offen lds")
        return L
    srd(A,32,14,WS_SIZE)
    A(f"s_add_u32 s70, s14, {WS_T}\ns_addc_u32 s71, s15, 0\ns_load_dword s58, s[70:71], 0")
    A("s_and_b32 s41, s40, 1\ns_bfe_u32 s42, s40, 0x10001")
    A("v_lshrrev_b32 v4, 4, v0\ns_lshl_b32 s68, s41, 2\nv_xor_b32 v4, s68, v4\nv_xor_b32 v4, v4, v21\nv_lshlrev_b32 v4, 4, v4\nv_lshl_add_u32 v4, v20, 7, v4\ns_lshl_b32 s68, s89, 10\nv_add_u32 v4, s68, v4")
    A("v_mov_b32 v12, 0\nv_mov_b32 v13, 0\nv_mov_b32 v14, 0\nv_mov_b32 v15, 0")
    A("v_lshlrev_b32 v2, 4, v0\nv_mov_b32 v19, 0x3f803f80")
    A("s_lshr_b32 s48, s40, 2")
    A("s_lshl_b32 s80, s48, 12\ns_add_u32 s80, s80, s101")
    def setup_main():
        A=Asm()
        A("v_bfe_u32 v23, v0, 1, 3\nv_xor_b32 v23, v23, v1\nv_lshlrev_b32 v23, 4, v23\nv_lshl_add_u32 v23, v22, 7, v23")
        A("v_bfe_u32 v28, v0, 2, 2\nv_lshlrev_b32 v28, 7, v28\nv_and_b32 v24, 3, v0\nv_lshl_add_u32 v28, v24, 3, v28")
        A("v_bfe_u32 v24, v0, 3, 1\nv_xor_b32 v24, s42, v24\nv_lshl_add_u32 v28, v24, 6, v28\nv_bfe_u32 v27, v0, 4, 1\nv_lshl_add_u32 v28, v27, 5, v28")
        srd(A,24,8,512*3584); srd(A,28,10,512*3584); srd(A,36,14,WS_SIZE); srd(A,76,72,1792*1024); srd(A,60,12,512*1024); srd(A,64,74,2048*1024)
        A("s_bfe_u32 s59, s2, 0x20003\ns_lshl_b32 s43, s3, 2\ns_add_u32 s43, s43, s59")
        A("s_lshr_b32 s44, s2, 5")
        A("s_lshl_b32 s45, s44, 3\ns_add_u32 s45, s45, s40")
        A("s_lshr_b32 s46, s3, 1\ns_lshl_b32 s46, s46, 2\ns_add_u32 s46, s46, s59")
        A("s_and_b32 s47, s3, 1\ns_mul_i32 s47, s47, 7\ns_add_u32 s47, s47, s44")
        A(f"s_lshl_b32 s49, s43, 17\ns_add_u32 s49, s49, s101\ns_add_u32 s49, s49, {WS_KV}")
        A(f"s_lshl_b32 s50, s46, 17\ns_add_u32 s50, s50, {WS_XN}")
        A(f"v_mul_u32_u24 v{vG}, 3584, v29\nv_add_u32 v{vG}, v{vG}, v31\ns_lshl_b32 s68, s47, 8\nv_add_u32 v{vG}, s68, v{vG}\nv_xor_b32 v{vU}, 32, v{vG}")
        A(f"s_lshr_b32 s68, s101, 5\nv_add_u32 v29, s68, v20\nv_lshl_add_u32 v{vD}, v29, 10, v31\ns_lshl_b32 s68, s44, 7\nv_add_u32 v{vD}, s68, v{vD}")
        A(f"s_mul_i32 s51, s43, {224*1024}\ns_lshl_b32 s68, s101, 2\ns_add_u32 s51, s51, s68\ns_add_u32 s51, s51, {WS_H}")
        A(f"v_and_b32 v3, 15, v0\nv_lshlrev_b32 v3, 4, v3\nv_lshl_add_u32 v3, v1, 8, v3\nv_add_u32 v3, {KVB+1024}, v3\nv_add_u32 v{aK}, {KVB}, v2\nv_mov_b32 v{IX1}, 0xdddd\ns_mov_b32 s52, 0xffff\ns_mov_b32 s53, 0xffff")
        A(f"s_lshl_b32 s68, s41, 13\nv_add_u32 v{aX+4}, s68, v23")
        for kq in range(1,4): A(f"v_xor_b32 v{aX+4+kq}, {32*kq}, v{aX+4}")
        for kq in range(4): A(f"v_add_u32 v{aX+kq}, 0x10000, v{aX+4+kq}")
        A(f"v_lshl_add_u32 v{aW+2}, v27, 13, v28\nv_lshl_add_u32 v{aW+2}, v1, 10, v{aW+2}\ns_lshl_b32 s68, s48, 14\ns_add_u32 s68, s68, 16384\nv_add_u32 v{aW+2}, s68, v{aW+2}")
        A(f"v_xor_b32 v{aW+3}, 32, v{aW+2}\nv_add_u32 v{aW}, 0x10000, v{aW+2}\nv_add_u32 v{aW+1}, 0x10000, v{aW+3}")
        A(f"v_lshl_add_u32 v{aH+2}, v1, 9, v28\ns_lshl_b32 s68, s42, 6\nv_xor_b32 v{aH+2}, s68, v{aH+2}\ns_lshl_b32 s68, s101, 3\nv_add_u32 v{aH+2}, s68, v{aH+2}\nv_xor_b32 v{aH+3}, 64, v{aH+2}\nv_add_u32 v{aH}, 0x10000, v{aH+2}\nv_add_u32 v{aH+1}, 0x10000, v{aH+3}")
        A(f"s_lshl_b32 s54, s46, 2\ns_lshl_b32 s68, s41, 1\ns_add_u32 s54, s54, s68\ns_mul_i32 s54, s54, 112\ns_lshl_b32 s68, s47, 3\ns_add_u32 s54, s54, s68\ns_and_b32 s68, s40, 6\ns_add_u32 s54, s54, s68\ns_lshl_b32 s54, s54, 10\ns_add_u32 s54, s54, {WS_H}\ns_add_u32 s55, s54, {112*1024}")
        A(f"s_lshl_b32 s81, s48, 12\ns_add_u32 s81, s81, s49\ns_lshl_b32 s82, s48, 16\ns_add_u32 s82, s82, s50\ns_mul_i32 s83, s48, {32*3584}\ns_lshl_b32 s84, s48, 17\ns_mul_i32 s85, s48, {112*1024}\ns_add_u32 s85, s85, s51")
        A("s_lshr_b32 s86, s46, 1\ns_mul_i32 s68, s43, 37\ns_lshr_b32 s68, s68, 8\ns_mul_i32 s68, s68, 7\ns_sub_u32 s87, s43, s68")
        if not ROT: A("s_mov_b32 s86, 0\ns_mov_b32 s87, 0")
        return [x.strip() for x in A.lines]
    A(f"s_mul_i32 s91, s48, {32*3072}")
    if not W0L:
        for d in range(NW0):
            for l in dmaW(vm,d,[None]): A(l)
    SM=setup_main()
    for l in SM[:13]: A(l)
    SM=SM[13:]
    SM=SM[:24]+[l.replace("s59","s75").replace("s68","s74").replace("s70","s73") for l in SM[24:]]
    A(f"s_lshl_b32 s68, s41, 12\nv_add_u32 v5, s68, v23")
    for kq in range(1,4): A(f"v_xor_b32 v{5+kq}, {32*kq}, v5")
    A(f"v_lshl_add_u32 v9, v1, 10, v28\nv_add_u32 v9, {WB}, v9\nv_add_u32 v10, {2*24576}, v9")
    rotU=lambda n: f"s_add_u32 s88, s86, {n}\ns_and_b32 s88, s88, 7\n"
    rotD=lambda n: f"s_add_u32 s88, s87, {n}\ns_sub_u32 s89, s88, 7\ns_cmp_ge_u32 s88, 7\ns_cselect_b32 s88, s89, s88\n"
    def dmaKV(vm,it,hi=None):
        vm.add(("KV",it))
        if hi is None: return [f"s_add_u32 m0, s80, {KVB+(it%3)*KVS}\ns_add_u32 s59, s81, {it*8192}\nbuffer_load_dwordx4 v2, s[32:35], s59 offen sc1 lds"]
        return [f"s_add_u32 m0, s101, {KVB+(it%3)*KVS+hi*4096}\ns_add_u32 s59, s49, {it*8192+hi*4096}\nbuffer_load_dwordx4 v2, s[32:35], s59 offen sc1 lds"]
    def dmaUX(vm,n,hi=None):
        b=UB[ub(n)]; vm.add(("U",n),2)
        m,s,o1,o2=("s80","s82",0,0) if hi is None else ("s101","s50",hi*8192,hi*65536)
        return [f"s_lshl_b32 s59, {m}, 1\ns_add_u32 m0, s59, {b+o1}\n"+rotU(n)+f"s_lshl_b32 s59, s88, 7\ns_add_u32 s59, s59, {s}\n"+(f"s_add_u32 s59, s59, {o2}\n" if o2 else "")+f"buffer_load_dwordx4 v{vX}, s[36:39], s59 offen sc1 lds",
                f"s_add_u32 m0, m0, 1024\ns_nop 0\nbuffer_load_dwordx4 v{vX+1}, s[36:39], s59 offen sc1 lds"]
    def dmaUW(vm,n,hi=None):
        b=UB[ub(n)]; L=[]; vm.add(("U",n),4)
        for c in range(4):
            if c==0: so=rotU(n)+f"s_mul_i32 s59, s88, {64*3584}\n"+("s_add_u32 s59, s59, s83" if hi is None else f"s_add_u32 s59, s59, {hi*32*3584}")
            else: so="s_add_u32 s59, s59, 128" if c==2 else "s_nop 0"
            m=f"s80, {b+16384+c*8192}" if hi is None else f"s101, {b+16384+c*8192+hi*4096}"
            L.append(f"s_add_u32 m0, {m}\n{so}\nbuffer_load_dwordx4 v{vG+c%2}, s[{24+4*(c%2)}:{27+4*(c%2)}], s59 offen lds")
        return L
    def dmaU(vm,n,hi=None): return dmaUX(vm,n,hi)+dmaUW(vm,n,hi)
    def dmaRows(vm,tag,dst,pre,srdn):
        vm.add(tag,4)
        return [(f"s_lshl_b32 s90, s80, 2\n" if i==0 else "")+f"s_add_u32 m0, s90, {dst+i*1024}\n"+(pre if i==0 else "s_add_u32 s59, s59, 8192\n")+f"buffer_load_dwordx4 v{vD}, s[{srdn}:{srdn+3}], s59 offen lds" for i in range(4)]
    def dmaDW(vm,n): return dmaRows(vm,("D",n),GB[DSL[n]//2]+(DSL[n]%2)*32768,rotD(n)+"s_lshl_b32 s59, s88, 18\ns_add_u32 s59, s59, s84\n",76)
    def dmaWO(vm): return dmaRows(vm,"wo",GB[1],"s_mov_b32 s59, s84\n",60)+dmaRows(vm,"wo",GB[1]+32768,f"s_add_u32 s59, s84, {256*1024}\n",60)
    def dmaDH(vm,n):
        b=GB[n%2]; vm.add(("D",n),4)
        return [(f"s_lshl_b32 s59, s80, 2\ns_add_u32 m0, s59, {b}\n"+rotD(n)+"s_lshl_b32 s59, s88, 14\ns_add_u32 s59, s59, s85\n" if i==0 else "")+f"buffer_load_dwordx4 v2, s[32:35], s59 offen offset:{1024*i} sc1 lds" for i in range(4)]
    if W0L==1:
        for d in range(NW0):
            for l in dmaW(vm,d,[None]): A(l)
    st.mark(A,0)
    for i in range(8):
        if i%2==0: A(f"s_waitcnt vmcnt({vm.n_after(('x',i+1))})")
        for d in range(4): A(f"v_dot2c_f32_bf16 v{12+d%2}, v{X+4*i+d}, v19\nv_dot2c_f32_bf16 v{14+d%2}, v{X+4*i+d}, v{X+4*i+d}")
    if W0L==2:
        for d in range(NW0):
            for l in dmaW(vm,d,[None]): A(l)
    st.mark(A,1)
    later=[]
    if not W1G:
        for d in range(NW0,NW1): later+=dmaW(vm,d,[None])
    A("s_nop 2\nv_add_f32 v12, v12, v13\nv_add_f32 v13, v14, v15\ns_nop 1")
    for mod in ("quad_perm:[1,0,3,2]","quad_perm:[2,3,0,1]","row_half_mirror"):
        A(f"v_add_f32_dpp v12, v12, v12 {mod} row_mask:0xf bank_mask:0xf\nv_add_f32_dpp v13, v13, v13 {mod} row_mask:0xf bank_mask:0xf\ns_nop 0")
    A(f"v_mul_f32 v12, {f2u(1/512):#x}, v12\nv_mul_f32 v13, {f2u(1/512):#x}, v13")
    A("v_fma_f32 v13, -v12, v12, v13\nv_max_f32 v13, 0, v13")
    A("v_cvt_pk_bf16_f32 v13, v13, v13\nv_and_b32 v13, 0xffff0000, v13")
    A(f"v_add_f32 v13, {f2u(1e-5):#x}, v13")
    A("v_cvt_pk_bf16_f32 v13, v13, v13\nv_and_b32 v13, 0xffff0000, v13\nv_sqrt_f32 v13, v13")
    A("v_cvt_pk_bf16_f32 v12, v12, v12\nv_cvt_pk_bf16_f32 v13, v13, v13\nv_and_b32 v13, 0xffff0000, v13\nv_rcp_f32 v14, v13\nv_and_b32 v12, 0xffff0000, v12")
    A("v_mov_b32 v15, v14\nv_mul_f32 v16, -v12, v14\nv_mov_b32 v17, v16")
    for i in range(8):
        for d in range(0,4,2):
            r=X+4*i+d
            A(f"v_lshlrev_b32 v68, 16, v{r}\nv_and_b32 v69, 0xffff0000, v{r}\nv_lshlrev_b32 v70, 16, v{r+1}\nv_and_b32 v71, 0xffff0000, v{r+1}")
            A(f"v_pk_fma_f32 v[68:69], v[68:69], v[14:15], v[16:17]\nv_pk_fma_f32 v[70:71], v[70:71], v[14:15], v[16:17]\nv_cvt_pk_bf16_f32 v{r}, v68, v69\nv_cvt_pk_bf16_f32 v{r+1}, v70, v71")
        A(f"ds_write_b128 v4, {vr(X+4*i,4)} offset:{8192*i}")
    for l in later: A(l)
    A(f"s_waitcnt vmcnt({vm.n_after(('W',0))})\ns_cmp_ge_u32 s40, 4\ns_cbranch_scc1 p1_nop")
    vmh=copy.deepcopy(vm)
    if W1G:
        for d in range(NW0,NW1):
            for l in dmaW(vm,d,[0,1]): A(l)
    A(f"v_mov_b32 v64, -1\nv_mov_b32 v65, -1\nv_mov_b32 v66, -1\nv_mov_b32 v67, -1\ns_lshl_b32 s68, s98, 1\ns_add_u32 s68, s68, s41\ns_lshl_b32 s59, s99, 1\ns_add_u32 s59, s59, s42\ns_lshl_b32 s69, s68, 4\ns_add_u32 s69, s69, s59\ns_lshl_b32 s69, s69, 11\ns_add_u32 s69, s69, {WS_O}")
    A("buffer_store_dwordx4 v[64:67], v2, s[32:35], s69 offen sc1\nbuffer_store_dwordx4 v[64:67], v2, s[32:35], s69 offen offset:1024 sc1")
    A.label("p1_nop")
    A(f"s_waitcnt lgkmcnt(0)\ns_barrier\ns_add_u32 s58, s58, 1")
    st.mark(A,2)
    vmc=vm; vmc.add("xst",2)
    A("s_cmp_ge_u32 s40, 4\ns_cbranch_scc1 p1_help\ns_setprio 1")
    FS=[64,80,32]; ACC=96
    def reads(F,kp):
        d=kp//4; ks=kp%4; sl=d%4
        r=[f"ds_read_b128 {vr(F,4)}, v{5+ks} offset:{d*8192}"]
        for c in range(3):
            for i in range(2): r.append(f"ds_read_b64_tr_b16 {vr(F+4+4*c+2*i,2)}, v{9+sl//2} offset:{(sl%2)*24576+c*8192+(16*ks+4*i)*128}")
        return r
    A("s_lshl_b32 s68, s101, 1\nv_add_u32 v18, s68, v2\nds_read_b128 v[48:51], v18\nds_read_b128 v[52:55], v18 offset:1024")
    for l in reads(FS[0],0)+reads(FS[1],1): A(l)
    A(f"s_and_b32 s59, s100, 7\ns_lshl_b32 s59, s59, 7\ns_add_u32 s59, s59, s57\ns_add_u32 s59, s59, {WS_XN}")
    pre=[f"buffer_store_dwordx4 v[48:51], v{vX}, s[32:35], s59 offen sc1",
         f"buffer_store_dwordx4 v[52:55], v{vX+1}, s[32:35], s59 offen sc1",
         "s_lshl_b32 s68, s98, 1\ns_add_u32 s68, s68, s41\ns_lshl_b32 s59, s99, 1\ns_add_u32 s59, s59, s42\ns_lshl_b32 s59, s59, 7\ns_add_u32 s59, s59, s68",
         f"s_lshl_b32 s70, s59, 10\ns_add_u32 s71, s70, {64*1024}\ns_lshl_b32 s68, s59, 11\ns_add_u32 s68, s68, {WS_KV}\ns_add_u32 s69, s68, {64*2048}",
         f"v_and_b32 v20, 31, v0\nv_lshlrev_b32 v20, 6, v20\nv_lshl_add_u32 v20, v1, 3, v20\ns_lshl_b32 s72, s40, 11\ns_add_u32 s72, s72, {VSC}\nv_add_u32 v20, s72, v20",
         "v_lshlrev_b32 v22, 10, v1\nv_lshl_add_u32 v22, v27, 9, v22\nv_bfe_u32 v23, v0, 2, 2\nv_lshl_add_u32 v22, v23, 6, v22",
         f"v_and_b32 v23, 3, v0\nv_lshl_add_u32 v22, v23, 3, v22\nv_add_u32 v22, s72, v22\nv_mov_b32 v24, {f2u(0.25*LOG2E):#x}\nv_mov_b32 v25, v24"]
    pre=pre[:2]+["\n".join(SM[i:i+5]) for i in range(0,len(SM),5)]+pre[2:]
    assert len(pre)<=31, len(pre)
    for kp in range(32):
        F=FS[kp%3]; d=kp//4
        fill=[]
        if kp==4*F1D+2:
            A(f"s_waitcnt vmcnt(0) lgkmcnt({7 if (LK and NW1<=2 and d<5) else 0})\ns_barrier")
            fill.append("FLAG")
        elif kp%4==2 and (U1H==1 or kp<30):
            w=f"vmcnt({vmc.n_after(('W',d+1))}) " if ('W',d+1) in vmc.ops else ""
            A(f"s_waitcnt {w}lgkmcnt({7 if (LK and NW1<=2 and d<5) else 0})\ns_barrier")
        else: A(f"s_waitcnt lgkmcnt({7 if kp<31 else 0})")
        if EH and kp==31: A("s_barrier")
        if kp%4==2: st.mark(A,32+d)
        fl="FLAG" in fill; fill=[]
        if kp<30: fill+=reads(FS[(kp+2)%3],kp+2)
        if pre:
            fill.append(pre.pop(0))
            if kp<2: vmc.add("xst")
        weave(A,[mfma32(ACC+16*c,F+4+4*c,F,(ACC+16*c) if kp else "0") for c in (2,1,0)],fill)
        if fl: flag_store(A,"p1_f1",0,f"s_lshl_b32 s59, s98, 10\ns_lshl_b32 s88, s99, 7\ns_add_u32 s59, s59, s88\ns_add_u32 s59, s59, {FL1}",60,61)
    st.mark(A,3)
    V=ACC+32; Kk=ACC+16
    A("s_nop 9")
    for d in range(8): A(f"v_cvt_pk_bf16_f32 v{V+d}, v{V+2*d}, v{V+2*d+1}")
    for q in range(4): A(f"ds_write_b64 v20, {vr(V+2*q,2)} offset:{16*q}")
    for d in range(8): A(f"v_cvt_pk_bf16_f32 v{Kk+d}, v{Kk+2*d}, v{Kk+2*d+1}")
    A("s_waitcnt lgkmcnt(0)")
    for hh in range(2):
        for ii in range(2): A(f"ds_read_b64_tr_b16 {vr(V+4*hh+2*ii,2)}, v22 offset:{32*hh+256*ii}")
    A(f"buffer_store_dwordx4 {vr(Kk,4)}, v2, s[32:35], s68 offen sc1\nbuffer_store_dwordx4 {vr(Kk+4,4)}, v2, s[32:35], s69 offen sc1")
    A("s_waitcnt lgkmcnt(0)")
    A(f"buffer_store_dwordx4 {vr(V,4)}, v2, s[32:35], s68 offen offset:1024 sc1\nbuffer_store_dwordx4 {vr(V+4,4)}, v2, s[32:35], s69 offen offset:1024 sc1")
    for r in range(0,16,2): A(f"v_pk_mul_f32 {vr(ACC+r,2)}, {vr(ACC+r,2)}, v[24:25]")
    for d in range(8): A(f"v_cvt_pk_bf16_f32 v{ACC+d}, v{ACC+2*d}, v{ACC+2*d+1}")
    A(f"buffer_store_dwordx4 {vr(ACC,4)}, v2, s[32:35], s70 offen sc1\nbuffer_store_dwordx4 {vr(ACC+4,4)}, v2, s[32:35], s71 offen sc1")
    st.mark(A,49)
    A("s_setprio 0\ns_branch p1_join")
    A.label("p1_help")
    hs=list(SM); hper=(len(hs)+HSN-1)//HSN
    nxt=NW1
    if nxt<4:
        for l in dmaW(vmh,nxt,[0,1]): A(l)
        nxt+=1
    for d in range(8 if U1H==1 else 7):
        for l in hs[:hper]: A(l)
        hs=hs[hper:]
        if d==HSN-1:
            A(f"v_and_b32 v22, 15, v0\nv_lshlrev_b32 v22, 7, v22\ns_lshl_b32 s56, s46, 11\ns_add_u32 s56, s56, {FL1}")
            A("s_cmp_eq_u32 s44, 7\ns_cselect_b32 s26, 0, s26\ns_cselect_b32 s30, 0, s30\ns_cselect_b32 s38, 0, s38")
        st.mark(A,40+d)
        if d<7 and ('W',d+1) in vmh.ops: A(f"s_waitcnt vmcnt({vmh.n_after(('W',d+1))})")
        st.mark(A,32+d)
        A("s_barrier")
        if nxt<8:
            assert nxt<=d+4
            for l in dmaW(vmh,nxt,[0,1]): A(l)
            nxt+=1
        if EARLY:
            if d==4: A("buffer_load_dword v23, v22, s[32:35], s56 offen sc1"); vmh.add("f1")
            if d==5:
                for l in dmaUW(vmh,0,0)+dmaUW(vmh,0,1): A(l)
            if d==6:
                poll_check(A,"p1_c1",22,23,"s56",8,False)
                for hi in range(2):
                    for l in dmaUX(vmh,0,hi): A(l)
        else:
            if d==5:
                for l in dmaUW(vmh,0,0): A(l)
            if d==6:
                for l in dmaUW(vmh,0,1): A(l)
                A("buffer_load_dword v23, v22, s[32:35], s56 offen sc1"); vmh.add("f1")
    if not EARLY:
        poll_check(A,"p1_c1",22,23,"s56",0,False)
        st.mark(A,48)
        for hi in range(2):
            for l in dmaUX(vmh,0,hi): A(l)
    if U1H in (1,2):
        for hi in range(2):
            for l in dmaU(vmh,1,hi): A(l)
    st.mark(A,49)
    A(f"s_waitcnt vmcnt({12 if U1H in (1,2) else 0})")
    st.mark(A,55)
    if EH: A("s_barrier")
    A.label("p1_join")
    A("s_cmp_eq_u32 s44, 7\ns_cselect_b32 s26, 0, s26\ns_cselect_b32 s30, 0, s30\ns_cselect_b32 s38, 0, s38")
    for i in range(16): A(f"v_mov_b32 v{VA+i}, 0")
    A("s_mov_b32 exec_lo, 0x110000\ns_mov_b32 exec_hi, 0x110000")
    for i in range(16): A(f"v_mov_b32 v{VA+i}, 0x3f803f80")
    A("s_mov_b64 exec, -1")
    A(f"v_lshrrev_b32 v30, 1, v0\nv_lshlrev_b32 v30, 7, v30\nv_and_b32 v31, 1, v0\nv_lshl_add_u32 v30, v31, 2, v30\ns_lshr_b32 s56, s43, 1\ns_lshl_b32 s56, s56, 12\ns_add_u32 s56, s56, {FL2}"+ONLY7)
    if TB:
        for k_ in range(4): A(f"v_add_u32 v{a3+k_}, {B3}, v{aX+4+k_}")
        for k_ in range(2): A(f"v_add_u32 v{a3+4+k_}, {B3}, v{aW+2+k_}")
    st.mark(A,4)
    vm=VM(); vm.add(("U",1)); vm.add(("U",0))
    if F2G<0: vm=VM(); vm.add(("U",0)); vm.add(("U",1))
    def f2flag():
        if F2G<0: A("s_cmp_ge_u32 s40, 4\ns_cbranch_scc1 j_nw\ns_waitcnt vmcnt(0)\nj_nw:")
        else: A(f"s_waitcnt vmcnt({vm.n_after(('U',0))})")
        flag_store(A,"p1_f2",None,f"s_lshl_b32 s59, s99, 1\ns_add_u32 s59, s59, s42\ns_lshl_b32 s59, s59, 5\ns_add_u32 s59, s59, s98\ns_lshl_b32 s59, s59, 5\ns_add_u32 s59, s59, s41\ns_lshl_b32 s59, s59, 2\ns_add_u32 s59, s59, {FL2}",28,29,"s_cmp_lt_u32 s40, 4"); vm.add("fs")
        st.mark(A,57)
    if NPRE==1 or F2G<0: f2flag()
    kv=lambda t: ((t//4)%3)*KVS+(t%4)*2048
    def up_reads(g):
        n,ks=g//4,g%4; F=FR[g%2]; b=ub(n)
        L=[f"ds_read_b128 {vr(F+8+4*t,4)}, v{aX+4*b+ks} offset:{t*4096}" for t in range(2)]
        for jj in range(2):
            for i in range(2): L.append(f"ds_read_b64_tr_b16 {vr(F+4*jj+2*i,2)}, v{(aW+2*b+jj) if b<2 else (a3+4+jj)} offset:{(16*ks+4*i)*128}")
        return L
    def up_mf(g):
        F=FR[g%2]
        return [mfma32(GACC+16*(2*t+jj),F+4*jj,F+8+4*t,(GACC+16*(2*t+jj)) if g else "0") for t in range(2) for jj in range(2)]
    HB=[FR[0]+8,FR[0]+12,FR[1]+8,FR[1]+12]
    def dn_reads(g):
        n,u=g//4,g%4; F=FR[g%2]; sl=DSL[n]
        return [f"ds_read_b64_tr_b16 {vr(F+4*cb+2*i,2)}, v{aH+2*(sl//2)+cb} offset:{(sl%2)*32768+u*2048+i*1024}" for cb in range(2) for i in range(2)]
    def dn_mf(g):
        F=FR[g%2]
        return [mfma32(DACC+16*cb,F+4*cb,HB[g%4],(DACC+16*cb) if g else "0") for cb in range(2)]
    def hload(g):
        n,u=g//4,g%4
        return ((rotD(n)+"s_lshl_b32 s75, s88, 14\ns_add_u32 s75, s75, s85\n") if u==0 else "")+f"buffer_load_dwordx4 {vr(HB[u],4)}, v2, s[32:35], s75 offen offset:{1024*u} sc1"
    def up_epi(ti):
        acc=GACC+16*ti; t,jj=ti//2,ti%2
        L=[f"v_max_f32 v{acc+r}, 0, v{acc+r}" for r in range(8)]+([f"v_mul_f32 v{acc+r}, v{acc+r}, v{acc+8+r}" for r in range(8)] if not E("PKE",0) else ["\n".join(f"v_pk_mul_f32 {vr(acc+r,2)}, {vr(acc+r,2)}, {vr(acc+8+r,2)}" for r in range(0,8,2))])
        L+=[f"v_cvt_pk_bf16_f32 v{acc+d}, v{acc+2*d}, v{acc+2*d+1}" for d in range(4)]
        L.append(f"buffer_store_dwordx4 {vr(acc,4)}, v2, s[36:39], s{54+t} offen offset:{1024*jj} sc1")
        return L
    if IDLE: A("s_cmp_eq_u32 s44, 7\ns_cbranch_scc1 idle_path")
    sec0=len(A.lines)
    for n in range(NPRE):
        if n==NPRE-1:
            if n==0: A("buffer_load_dword v31, v30, s[32:35], s56 offen sc1"); vm.add("f2")
            st.mark(A,56)
            poll_check(A,"m_c2",30,31,"s56",vm.n_after("f2"))
        if not (EH and n==0): A((f"s_waitcnt vmcnt({vm.n_after(('U',n))}) lgkmcnt(0)" if n else "s_waitcnt lgkmcnt(0)")+"\ns_barrier")
        if n==2: st.mark(A,7)
        st.mark(A,50+n)
        if n==NPRE-1:
            A(f"s_lshl_b32 s59, s43, 6\ns_add_u32 s59, s59, s45\ns_lshl_b32 s59, s59, 10\nbuffer_load_dwordx4 {vr(Q,4)}, v2, s[32:35], s59 offen sc1"); vm.add("q")
            for l in dmaKV(vm,0)+dmaKV(vm,1): A(l)
        nn=n+1
        if TB: nn={0:2,1:3,2:4}.get(n,None)
        dml=dmaU(VM(),nn) if (nn is not None and (TB or n or not U1H)) else []
        if U1H==3 and n==0:
            for l in up_reads(0): A(l)
            A("s_cmp_lt_u32 s40, 4\ns_cbranch_scc1 j_u1")
            for hi in range(2):
                for l in dmaU(VM(),1,hi): A(l)
            A.label("j_u1")
        for u in range(4):
            g=4*n+u
            if u>0: A("s_waitcnt lgkmcnt(0)")
            fill=up_reads(g) if not (U1H==3 and g==0) else []
            if g==PG and NPRE>1: fill.append("buffer_load_dword v31, v30, s[32:35], s56 offen sc1"); vm.add("f2")
            kk=2 if TB else 3
            fill+=dml[:kk]; vm.add(("U",nn),len(dml[:kk])); dml=dml[kk:]
            if g>0: weave(A,up_mf(g-1),fill)
            else:
                for l in fill: A(l)
            if g==F2G and NPRE>1: f2flag()
    st.mark(A,5)
    A(f"s_waitcnt vmcnt({vm.n_after(('KV',0))})\ns_barrier")
    st.mark(A,6)
    A(f"ds_read_b128 {vr(K,4)}, v{aK}")
    A(f"s_mov_b64 exec, s[52:53]\nds_read_b128 {vr(VA,4)}, v3\nds_read_b128 {vr(VB,4)}, v3 offset:512\ns_mov_b64 exec, -1")
    A("s_waitcnt lgkmcnt(2)")
    A(mfma32(SA,K,Q,"0"))
    for r in range(16): A(f"v_mov_b32 v{O+r}, 0")
    def max16(dst,S,first):
        if first:
            A(f"v_max3_f32 v{dst}, v{S}, v{S+1}, v{S+2}\nv_max_f32 v{dst}, v{dst}, v{S+3}")
            s0=4
        else: s0=0
        for r in range(s0,16,2): A(f"v_max3_f32 v{dst}, v{dst}, v{S+r}, v{S+r+1}")
    max16(28,SA,True)
    A(f"v_add_f32 v28, {f2u(MOFF):#x}, v28")
    A(f"v_mov_b32 v29, v28\ns_nop 1\nv_permlane32_swap_b32 v28, v29\nv_max_f32 v28, v28, v29")
    for r in range(16): A(f"v_sub_f32 v{C+r}, 0, v28")
    A("s_nop 1")
    A(mfma32(SA,K,Q,C))
    A(f"ds_read_b128 {vr(K,4)}, v{aK} offset:2048\ns_nop 8")
    if PRIO: A("s_setprio 1")
    UP0=-NPRE; D0=UP0+8+DGAP
    DWS={0:UP0+7,1:UP0+10,2:UP0+11,3:D0,4:D0+1,5:D0+3,6:D0+5} if E('DWV',1) else {0:UP0+7,1:UP0+9,2:UP0+10,3:UP0+11,4:D0+1,5:D0+2,6:D0+5}; WOD=4; WOD2=6
    assert D0+7<=17 and D0>=UP0+12
    AFR=[160+4*i for i in range(8)]+[208+4*i for i in range(4)]+[232+4*i for i in range(4)]
    rdw=[f"ds_read_b64_tr_b16 {vr(AFR[2*n+cb]+2*i,2)}, v{230+cb} offset:{n*2048+i*1024}" for n in range(8) for cb in range(2) for i in range(2)]
    WOD=WOD2=UP0+10-D0; WIT=UP0+11; DWS={0:UP0+7,1:UP0+11,2:UP0+12,3:max(D0,UP0+13),5:D0+1+(D0==UP0+12),6:D0+2+2*(D0==UP0+12),4:D0+3}
    for it in range(16):
        if it-UP0==9:
            sec1=len(A.lines); A.label("idle_merge")
        needs=[]
        if it+1<16: needs.append(vm.n_after(("KV",it+1)))
        n=it-UP0; dn=it-D0
        if 0<=n<8: needs.append(vm.n_after(("U",n)))
        if 0<=dn<7: needs.append(vm.n_after(("D",dn)))
        if it==15: needs.append(vm.n_after(("D",6)))
        if WPRE and it==WIT: needs.append(vm.n_after("wo")); A(f"s_lshl_b32 s68, s101, 3\nv_add_u32 v230, s68, v{aH+2}\nv_add_u32 v231, s68, v{aH+3}")
        if dn==-1: poll_check(A,"m_c3",30,31,"s56",vm.n_after("f3"))
        A((f"s_waitcnt vmcnt({min(needs)}) lgkmcnt(0)" if needs else "s_waitcnt lgkmcnt(0)")+"\ns_barrier")
        st.mark(A,8+it)
        if PRIO: A(f"s_cmp_lt_u32 s40, 4\ns_cbranch_scc1 m_pa{it}\ns_setprio 2\nm_pa{it}:")
        if n==9:
            A(f"s_lshl_b32 s56, s43, 4\ns_add_u32 s56, s56, {(FL3-FL1)//128}\nv_lshrrev_b32 v30, 2, v0\nv_add_u32 v30, s56, v30\nv_lshlrev_b32 v30, 7, v30\nv_and_b32 v31, 3, v0\nv_lshl_add_u32 v30, v31, 2, v30\nv_and_b32 v31, 7, v0\ns_lshl_b32 s56, s43, 3\nv_add_u32 v31, s56, v31\nv_lshlrev_b32 v31, 7, v31\nv_cmp_lt_u32 vcc, 55, v0")
            A(f"s_mov_b32 s56, {FL1}"+ONLY7+"\nv_cndmask_b32 v30, v30, v31, vcc")
        vt=VM(); dml=[]
        if 2<=n+1<8: dml+=dmaU(vt,n+1)
        if it+2<16: dml+=dmaKV(vt,it+2)
        for dd_,when in DWS.items():
            if when==it: dml+=dmaDW(vt,dd_)
        if dn==WOD: dml+=dmaWO(vt)[:4]; vt.ops=vt.ops[:-4]
        if dn==WOD2: dml+=dmaWO(vt)[4:]; vt.ops=vt.ops[:-4]
        if n==7 and WOT: dml.append("s_lshl_b32 s59, s2, 3\ns_add_u32 s59, s59, s40\ns_lshl_b32 s59, s59, 8\nv_lshlrev_b32 v28, 7, v0\ns_mov_b64 exec, 3\nbuffer_load_dword v195, v28, s[60:63], s59 offen\ns_mov_b64 exec, -1"); vt.add("t")
        if it==14:
            dml.append(f"s_lshl_b32 s57, s43, 16\ns_lshl_b32 s68, s40, 13\ns_add_u32 s57, s57, s68\ns_lshl_b32 s68, s44, 7\ns_add_u32 s57, s57, s68\nv_lshrrev_b32 v{XR+4}, 3, v0\nv_lshlrev_b32 v{XR+4}, 10, v{XR+4}\nv_and_b32 v{XR+5}, 7, v0\nv_lshl_add_u32 v{XR+4}, v{XR+5}, 4, v{XR+4}\n"+
                       f"buffer_load_dwordx4 {vr(XR,4)}, v{XR+4}, s[16:19], s57 offen"); vt.add("x")
        assert len(vt.ops)==len(dml)
        tags=list(vt.ops)
        for u in range(4):
            t=4*it+u
            if PRIO and u==PRIO: A(f"s_cmp_lt_u32 s40, 4\ns_cbranch_scc1 m_pb{it}\ns_setprio 0\nm_pb{it}:")
            PP=eval(os.environ.get("PP","[3,3,3,2,2,1,1,0]"))
            if PROG and (u==0 or PP[2*u]!=PP[2*u-1]): A(f"s_setprio {PP[2*u]}")
            Sc,Sn=(SA,SB) if u%2==0 else (SB,SA)
            val=[f"v_exp_f32 v{Sc+r}, v{Sc+r}" for r in range(16)]
            g=4*n+u; gd=4*dn+u
            ex=[]; rds=[]
            if 0<=g-1<32: ex+=up_mf(g-1)
            if 0<=g<32: rds+=up_reads(g)
            if 0<=gd-1<28: ex+=dn_mf(gd-1)
            if 0<=gd<28: rds+=dn_reads(gd)
            hw=f"vmcnt({vm.n_after(('H',gd-1))}) " if 0<=gd-1<28 else ""
            SPR=E("SPR",3) if (n<8 or dn==3 or n==10) else 4
            k=len(dml) if (n in (8,9) or u>=SPR-1) else (len(dml)+SPR-u-1)//(SPR-u)
            mine=dml[:k]; dml=dml[k:]
            for tg_ in tags[:k]: vm.add(tg_)
            tags=tags[k:]
            extra=[]; post=''
            if WPRE and it>=WIT:
                per=8; rds+=rdw[:per]; rdw=rdw[per:]
            if n==8 and u in (1,2,3):
                for ti in eval(os.environ.get('EPS','([0,1],[2,3],[])'))[u-1]: extra+=up_epi(ti); vm.add("hst")
            if 4*n+u==F3G:
                B=Asm(); flag_store(B,"m_f3",None,f"s_lshl_b32 s59, s46, 1\ns_add_u32 s59, s59, s41\ns_lshl_b32 s59, s59, 4\ns_add_u32 s59, s59, s47\ns_lshl_b32 s59, s59, 5\ns_lshr_b32 s68, s40, 1\ns_add_u32 s59, s59, s68\ns_lshl_b32 s59, s59, 2\ns_add_u32 s59, s59, {FL3}",28,29,"s_cmp_lg_u32 s44, 7")
                post=f"s_waitcnt vmcnt({vm.n_after('hst')})\n"+B.text(); vm.add("fs")
            if dn==-2 and u==F3U: post+="\nbuffer_load_dword v31, v30, s[32:35], s56 offen sc1"; vm.add("f3")
            if 0<=gd+3<28: post+="\n"+hload(gd+3); vm.add(("H",gd+3))
            qk=[mfma32(Sn,K,Q,C)]+([f"ds_read_b128 {vr(K,4)}, v{aK} offset:{kv(t+2)}"] if t+2<64 else [])
            if t==63: qk=[]
            EXm="s_mov_b64 exec, s[52:53]"; EN="s_mov_b64 exec, -1"
            Vc,Vp=(12,20) if t%2==0 else (20,12)
            pv1=([pvm(Vp+4,Sn+8)] if t else [])+([EXm,f"ds_read_b128 {vr(Vp,4)}, v3 offset:{kv(t+1)}",f"ds_read_b128 {vr(Vp+4,4)}, v3 offset:{kv(t+1)+512}",EN] if t+1<64 else [])
            pv0=[pvm(Vc,Sc)]
            nx=len(ex); e=[[m] for m in ex]
            seq={0:[pv1,qk,pv0],2:[pv1,qk]+e[0:1]+[pv0]+e[1:2],4:[pv1]+e[0:1]+[qk]+e[1:3]+[pv0]+e[3:4]}[nx]
            iqk=[i for i,x in enumerate(seq) if x is qk][0]
            ng=len(seq)
            for i,x in enumerate(rds): seq[min(ng-2,(i*(ng-1))//max(1,len(rds)))].append(x)
            for i,x in enumerate(mine): seq[(i*ng)//len(mine)].append(x)
            if u>0 or hw: A(f"s_waitcnt {hw}lgkmcnt(0)")
            val=val+extra
            cost=[8 if "exp" in x else 4 for x in val]; tot=sum(cost); acc=0; gi=0
            for i,x in enumerate(val):
                if PROG and i==8 and PP[2*u+1]!=PP[2*u]: A(f"s_setprio {PP[2*u+1]}")
                while gi<ng and i>=1 and ((acc-8>=tot*gi/ng and not (seq[gi] is pv0 and i<10)) or (gi<=iqk and i>=6)):
                    for y in seq[gi]: A(y)
                    gi+=1
                A(x); acc+=cost[i]
            while gi<ng:
                for y in seq[gi]: A(y)
                gi+=1
            if post: A(post)
    A("s_waitcnt lgkmcnt(0)\ns_nop 0")
    A(pvm(24,SB+8))
    if D0+7>=16:
        gl=4*(16-D0)-1
        A(f"s_waitcnt vmcnt({vm.n_after(('H',gl))})")
        for m in dn_mf(gl): A(m)
        if gl<27:
            A(hload(27)); vm.add(("H",27))
            for l in dn_reads(24): A(l)
    st.mark(A,24)
    A(f"s_lshl_b32 s59, s45, 5\ns_add_u32 s59, s59, s43\ns_lshl_b32 s59, s59, 10\ns_add_u32 s70, s59, {WS_O}\ns_nop 7")
    A(f"v_max3_f32 v28, |v{O}|, |v{O+1}|, |v{O+2}|\nv_max3_f32 v28, v28, |v{O+3}|, |v{O+4}|\nv_max3_f32 v28, v28, |v{O+5}|, |v{O+6}|")
    A(f"v_max3_f32 v28, v28, |v{O+7}|, v{O+8}")
    A(f"v_add_f32 v29, v{O}, v{O+1}")
    for r in range(2,9): A(f"v_add_f32 v29, v29, v{O+r}")
    A("v_fma_f32 v28, 0, v29, v28")
    A(f"v_cmp_ngt_f32 vcc, {f2u(2.0**125):#x}, v28")
    A("s_nop 4\ns_cbranch_vccnz m_fallback")
    A.label("m_fin")
    A(f"v_rcp_f32 v28, v{O+8}\ns_nop 0")
    for r in range(8): A(f"v_mul_f32 v{O+r}, v28, v{O+r}")
    for d in range(4): A(f"v_cvt_pk_bf16_f32 v{P+d}, v{O+2*d}, v{O+2*d+1}")
    for d in range(4): A(f"v_min_u32 v{P+d}, -2, v{P+d}")
    A(f"buffer_store_dwordx4 {vr(P,4)}, v2, s[32:35], s70 offen sc1"); vm.add("ost")
    QS=1024; PS=8192; SB_=65536
    A(f"s_lshl_b32 s68, s40, 13\nv_add_u32 v40, s68, v2")
    xo=[f"v_xor_b32 v{40+q}, {32*q}, v40" for q in range(1,8)]
    xo+=[f"v_lshrrev_b32 v30, 3, v0\ns_lshr_b32 s68, s101, 7\nv_add_u32 v30, s68, v30\nv_lshlrev_b32 v37, 1, v{XR+5}\nv_xor_b32 v30, v30, v37\nv_lshlrev_b32 v30, 4, v30\nv_lshl_add_u32 v37, v{XR+5}, 10, v30\ns_lshl_b32 s68, s48, 15\nv_add_u32 v37, s68, v37"]
    if D0+7==17:
        for g in range(24,28):
            A(f"s_waitcnt vmcnt({vm.n_after(('H',g))}) lgkmcnt(0)")
            weave(A,dn_mf(g),(dn_reads(g+1) if g<27 else [])+xo[2*(g-24):2*(g-24)+2])
        A("s_nop 7")
    else:
        for l in xo: A(l)
    for q in range(8): A(f"ds_write_b128 v{40+q}, {vr(DACC+4*q,4)} offset:{q*QS}")
    for q in range(8): A(f"v_add_u32 v{20+q}, {SB_}, v{40+q}")
    A(f"s_lshl_b32 s70, s43, 1\ns_add_u32 s70, s70, s48\ns_lshl_b32 s70, s70, 15\ns_lshl_b32 s68, s101, 3\ns_add_u32 s70, s70, s68\ns_add_u32 s70, s70, {WS_O}\ns_add_u32 s71, s70, 4096\ns_mov_b32 s59, {SPIN//8}")
    OF=64; ACS=96; G=56
    ol=[f"buffer_load_dwordx4 {vr(OF+4*i,4)}, v2, s[32:35], {'s70' if i<4 else 's71'} offen offset:{1024*(i%4)} sc1" for i in range(8)]
    A(f"s_waitcnt vmcnt({vm.n_after('x')}) lgkmcnt(0)\ns_barrier")
    st.mark(A,25)
    for kq in range(4):
        for hh in range(2): A(f"ds_read_b128 {vr(96+8*kq+4*hh,4)}, v37 offset:{kq*PS+hh*512}")
    A(f"v_add_u32 v37, {SB_}, v37")
    for l in ol[:OE]: A(l)
    A("s_waitcnt lgkmcnt(0)")
    for r in range(8): A(f"v_add_f32 v{40+r}, v{96+r}, v{104+r}\nv_add_f32 v{48+r}, v{112+r}, v{120+r}")
    val=[f"v_add_f32 v{G+r}, v{40+r}, v{48+r}" for r in range(8)]+[f"v_mul_f32 v{40+r}, {f2u(-LOG2E):#x}, v{G+r}" for r in range(8)]+[f"v_exp_f32 v{40+r}, v{40+r}" for r in range(8)]+[f"v_add_f32 v{40+r}, 1.0, v{40+r}" for r in range(8)]+[f"v_rcp_f32 v{40+r}, v{40+r}" for r in range(8)]+[f"v_mul_f32 v{G+r}, v{G+r}, v{40+r}" for r in range(8)]
    for i,x in enumerate(val):
        A(x)
        if OE and i%6==5 and OE+i//6<8: A(ol[OE+i//6])
    for d in range(4): A(f"v_lshlrev_b32 v{40+2*d}, 16, v{XR+d}\nv_and_b32 v{41+2*d}, 0xffff0000, v{XR+d}")
    st.mark(A,26)
    if OE: A("s_branch m_ochk")
    A.label("m_oretry")
    for l in ol: A(l)
    A.label("m_ochk")
    A("v_mov_b32 v38, 0")
    for n in range(8):
        A(f"s_waitcnt vmcnt({7-n})")
        A(mfma32(ACS,AFR[2*n] if WPRE else AF+8*n,OF+4*n,ACS if n else "0"))
        A(f"v_max3_u32 v38, v38, v{OF+4*n}, v{OF+4*n+1}\nv_max3_u32 v38, v38, v{OF+4*n+2}, v{OF+4*n+3}")
        A(mfma32(ACS+16,AFR[2*n+1] if WPRE else AF+8*n+4,OF+4*n,(ACS+16) if n else "0"))
    A("v_cmp_eq_u32 vcc, -1, v38\ns_sub_u32 s59, s59, 1\ns_cselect_b64 s[68:69], 0, -1\ns_nop 2\ns_and_b64 vcc, vcc, s[68:69]\ns_cbranch_vccnz m_oretry")
    st.mark(A,27)
    A("s_nop 5")
    for q in range(8): A(f"ds_write_b128 v{20+q}, {vr(ACS+4*q,4)} offset:{q*QS}")
    A("s_waitcnt lgkmcnt(0)\ns_barrier")
    T=64
    for kq in range(4):
        for hh in range(2): A(f"ds_read_b128 {vr(T+8*kq+4*hh,4)}, v37 offset:{kq*PS+hh*512}")
    A("s_waitcnt lgkmcnt(4)")
    for r in range(8): A(f"v_add_f32 v{T+r}, v{T+r}, v{T+8+r}")
    A("s_waitcnt lgkmcnt(0)")
    for r in range(8): A(f"v_add_f32 v{T+16+r}, v{T+16+r}, v{T+24+r}")
    for r in range(8): A(f"v_add_f32 v{T+r}, v{T+r}, v{T+16+r}")
    for r in range(8): A(f"v_fma_f32 v{40+r}, v{T+r}, v{G+r}, v{40+r}")
    for d in range(4): A(f"v_cvt_pk_bf16_f32 v{48+d}, v{40+2*d}, v{41+2*d}")
    A(f"buffer_store_dwordx4 v[48:51], v{XR+4}, s[64:67], s57 offen"+os.environ.get("OF"," sc1"))
    flag_store(A,"m_bump",0,f"s_mov_b32 s59, {WS_T}",32,33,"s_cmp_eq_u32 s2, 0")
    if STAMP:
        st.mark(A,28)
        A("s_waitcnt vmcnt(0)")
        st.mark(A,29)
        A(f"v_subrev_u32 v250, {'s92' if STAMP==2 else 's94'}, v250\ns_memrealtime s[96:97]\ns_waitcnt lgkmcnt(0)\nv_writelane_b32 v250, s92, 30\nv_writelane_b32 v250, s96, 31")
        A(f"s_lshl_b32 s96, s2, 3\ns_add_u32 s96, s96, s40\ns_lshl_b32 s96, s96, 8\ns_add_u32 s96, s96, {WS_ST}\nv_lshlrev_b32 v251, 2, v0\nbuffer_store_dword v250, v251, s[32:35], s96 offen")
    if E("PAD",0):
        A.label("k_pad")
        A(f"s_memrealtime s[96:97]\ns_waitcnt lgkmcnt(0)\ns_sub_u32 s96, s96, s92\ns_cmp_lt_u32 s96, {E('PAD',0)}\ns_cbranch_scc1 k_pad")
    if E("DBG",0):
        A("s_cmp_eq_u32 s40, 0\ns_cbranch_scc0 k_end\ns_load_dwordx2 s[4:5], s[0:1], 64\ns_memrealtime s[96:97]\ns_memtime s[6:7]\ns_waitcnt vmcnt(0) lgkmcnt(0)")
        srd(A,8,4,256)
        A("s_not_b32 s92, s92\ns_sub_u32 s6, s6, s94\nv_mov_b32 v1, 0\nv_mov_b32 v2, s92\nv_mov_b32 v3, s96\nv_mov_b32 v4, s6\ns_mov_b64 exec, 1")
        A("buffer_atomic_umax v2, v1, s[8:11], 0 offen\nbuffer_atomic_umax v3, v1, s[8:11], 0 offen offset:4\nbuffer_atomic_umax v4, v1, s[8:11], 0 offen offset:8")
        if STAMP:
            for k,l in enumerate([0,1,2,3,49,50,6,8,16,24,25,26,29]):
                A(f"v_readlane_b32 s6, v250, {l}\ns_nop 3\nv_mov_b32 v4, s6\nbuffer_atomic_umax v4, v1, s[8:11], 0 offen offset:{12+4*k}")
    A.label("k_end")
    A("s_endpgm")
    if IDLE:
        import re
        A.label("idle_path")
        for l in A.lines[sec0:sec1]:
            t_=l.strip(); m_=re.match(r"(\S+) v\[?(\d+)",t_)
            if m_:
                op,r_=m_.group(1),int(m_.group(2))
                if op.startswith("v_mfma") and r_>=128: continue
                if op.startswith("ds_read") and r_>=96: continue
                if op in("v_max_f32","v_mul_f32","v_cvt_pk_bf16_f32","buffer_store_dwordx4") and 128<=r_<192: continue
                if t_.endswith("lds") and r_ in (vG,vU,vX,vX+1): continue
            t_=re.sub(r"vmcnt\(\d+\)","vmcnt(0)",t_).replace("m_c2","i_c2")
            if t_=="s_nop 5": t_="s_nop 12"
            A(t_)
        A("s_waitcnt vmcnt(0)\ns_branch idle_merge")
        spins.append(("i_c2",30,31,"s56"))
    for name,va,vd,so in spins:
        A.label(name+"_spin")
        A(f"s_mov_b32 s59, {SPIN}")
        A.label(name+"_l")
        A(f"s_sleep {SLEEP}\nbuffer_load_dword v{vd}, v{va}, s[32:35], {so} offen sc1\ns_waitcnt vmcnt(0)\nv_cmp_ne_u32 vcc, s58, v{vd}\ns_sub_u32 s59, s59, 1\ns_nop 3")
        A(f"s_cbranch_vccz {name}_ret\ns_cmp_lg_u32 s59, 0\ns_cbranch_scc1 {name}_l\ns_branch {name}_ret")
    A.label("m_fallback")
    A(f"s_sub_u32 s68, s49, s101\ns_mov_b32 s69, 0\nv_mov_b32 v28, 0xff800000\nv_subrev_u32 v30, {KVB}, v3")
    A.label("m_fb1")
    A(f"buffer_load_dwordx4 {vr(K,4)}, v2, s[32:35], s68 offen sc1\ns_add_u32 s68, s68, 2048\ns_waitcnt vmcnt(0)")
    A(mfma32(SA,K,Q,"0"))
    A("s_nop 15")
    max16(28,SA,False)
    A("s_add_u32 s69, s69, 1\ns_cmp_lt_u32 s69, 64\ns_cbranch_scc1 m_fb1")
    A("v_mov_b32 v29, v28\ns_nop 1\nv_permlane32_swap_b32 v28, v29\nv_max_f32 v28, v28, v29")
    for r in range(16): A(f"v_sub_f32 v{C+r}, 0, v28\nv_mov_b32 v{O+r}, 0")
    A(f"s_sub_u32 s68, s49, s101\ns_mov_b32 s69, 0")
    A.label("m_fb2")
    A(f"buffer_load_dwordx4 {vr(K,4)}, v2, s[32:35], s68 offen sc1\ns_mov_b64 exec, s[52:53]\nbuffer_load_dwordx4 {vr(VA,4)}, v30, s[32:35], s68 offen sc1\nbuffer_load_dwordx4 {vr(VB,4)}, v30, s[32:35], s68 offen offset:512 sc1\ns_mov_b64 exec, -1")
    A("s_add_u32 s68, s68, 2048\ns_waitcnt vmcnt(0)")
    A(mfma32(SA,K,Q,C))
    A("s_nop 15")
    for r in range(16): A(f"v_exp_f32 v{SA+r}, v{SA+r}")
    A("s_nop 1")
    A(pvm(VA,SA)); A(pvm(VB,SA+8))
    A("s_add_u32 s69, s69, 1\ns_cmp_lt_u32 s69, 64\ns_cbranch_scc1 m_fb2")
    A("s_nop 15")
    A("k_last:\ns_branch m_fin")

def main(out):
    hdr=open("cdna_kernels/"+NAME+".s.ref").read().split("\n")
    head=[l for l in hdr if l.startswith(";") and "@launch" not in l]
    T="\n".join(head)+"\n"
    if E("LIST",0)==2: T+=f"; @launch kernel={KN} grid=(256,1,1) block=(512,1,1) lds={LDS}\n"
    if E("LIST",0): T+=f"; @launch kernel={KN} grid=(256,1,1) block=(512,1,1) lds={LDS}\n"
    else: T+=f"; @launch grid=(256,1,1) block=(512,1,1) lds={LDS}\n"
    T+='.amdgcn_target "amdgcn-amd-amdhsa--gfx950"\n.text\n'
    A=Asm(); kern(A)
    for e in hazard_check(A.text()): print(e)
    T+=f".globl {KN}\n.p2align 8\n.type {KN},@function\n"+A.text()
    T+='.section .rodata,"a"\n'+kdesc(KN,256,102)
    open(out,"w").write(T)
if __name__=="__main__":
    main(sys.argv[1] if len(sys.argv)>1 else "cdna_kernels/"+NAME+".s")
```

```python
import sys, struct, os, copy
from asmlib import *
NAME="recurrent_scan__mha_block__glu_gated_reglu__prompt"
KN=NAME+"_kernel"
WS_Q=0; WS_KV=2<<20; WS_H=6<<20; WS_O=13<<20; WS_XN=22<<20; WS_FL=21<<20; WS_T=WS_FL+98304; WS_SIZE=32<<20; WS_ST=24<<20
FL1=WS_FL; FL2=WS_FL+32768; FL3=WS_FL+524288; FL2=WS_FL+786432
def f2u(f): return struct.unpack("<I",struct.pack("<f",f))[0]
LOG2E=1.4426950408889634
E=lambda k,d: int(os.environ.get(k,str(d)))
STAMP=E("STAMP",0); TOUCH=E("TOUCH",0); G0=E("G0",0); PRIO=E("PRIO",0); NPRE=E("NPRE",3); DGAP=E("DGAP",5)
SPIN=400000
SLEEP=E('SLEEP',2)
CODEPF=E("CODEPF",1); WTOUCH=E("WTOUCH",0); NW0=E("NW0",1); NW1=E("NW1",2); F1D=E("F1D",2); F1P=E("F1P",22); F1C=E("F1C",25); PBURST=E("PBURST",1); U1H=E("U1H",2); UWD=E("UWD",6); TLB=E("TLB",0); OE=E("OE",8); HSN=E("HSN",5); LK=E("LK",1); PG=E("PG",7); EARLY=E("EARLY",1); F3U=E("F3U",1); F3G=E("F3G",36); W0L=E("W0L",0); EH=E("EH",0); IDLE=E("IDLE",0); WPRE=E("WPRE",1); W1G=E("W1G",1); RSW=E("RSW",1); XBAR=E("XBAR",0); F2G=E("F2G",2); HPRIO=E("HPRIO",0); PROG=E("PROG",1); ROT=E("ROT",1); WOT=E("WOT",1); UT=E("UT",0); UTK=E("UTK",27)
MOFF=float(E("MOFF",100))
class VM:
    def __init__(s): s.ops=[]
    def add(s,tag,n=1): s.ops+= [tag]*n
    def n_after(s,tag):
        idx=max(i for i,t in enumerate(s.ops) if t==tag)
        return len(s.ops)-1-idx
def weave(A,mf,fill):
    n=len(mf); k=len(fill); j=0
    for i,m in enumerate(mf):
        A(m)
        e=(k*(i+1))//n
        while j<e: A(fill[j]); j+=1
class St:
    def __init__(s): s.pend=None
    def mark(s,A,i):
        if E("JIT",0):
            s.j=getattr(s,"j",0)+1
            A(f"s_memtime s[96:97]\ns_waitcnt lgkmcnt(0)\ns_lshr_b32 s96, s96, 4\ns_and_b32 s96, s96, 3\ns_cmp_eq_u32 s96, 0\ns_cbranch_scc0 jit{s.j}\ns_sleep {E('JIT',0)}\njit{s.j}:")
        if E("PROBE",-1)==i:
            s.n=getattr(s,"n",0)+1
            A(f"probe{s.n}:\ns_memrealtime s[96:97]\ns_waitcnt lgkmcnt(0)\ns_sub_u32 s96, s96, s92\ns_cmp_lt_u32 s96, {E('PX',2000)}\ns_cbranch_scc1 probe{s.n}")
        if STAMP:
            A(f"{'s_memrealtime' if STAMP==2 else 's_memtime'} s[96:97]\ns_waitcnt lgkmcnt(0)\nv_writelane_b32 v250, s96, {i}")
st=St()
WB=65536; GB=[65536,0]; KVB=131072; KVS=8192; VSC=49152 if E('EH',0) else 114688; LDS=163840
Q,K,VA,VB,P,C,SA,SB,O=4,8,12,16,20,32,48,64,80
IX1=207
def pvm(Vr,S): return f"v_smfmac_f32_32x32x32_bf16 {vr(O,16)}, {vr(Vr,4)}, {vr(S,8)}, v{IX1}"
FR=[96,112]; GACC=128; DACC=128
vG,vU,vD=192,193,194; aW,aH,aD=198,202,204; aK=206; XR=224; aX=232; vX=196
WS_XS=WS_FL+131072; WS_CS=WS_FL+262144
CSC=VSC+8192; SSC=VSC+12288
TB=E('TB',0); B3=114688; a3=240
def ub(n):
    if TB and n<2: return 1-n
    if TB and n==2: return 2
    return n%2
UB=[65536,0,B3]
DSL=[0,1,2,3,2,0,1]
SLOT=[0,32768,131072,65536,98304]
spins=[]
ONLY7="\ns_cmp_eq_u32 s40, 7\ns_cselect_b32 s56, s56, 0x7ff00000"
def poll_check(A,name,vaddr,vdst,soff,wait,only7=True):
    if only7: A(f"s_cmp_eq_u32 s40, 7\ns_cbranch_scc0 {name}_ret")
    A(f"s_waitcnt vmcnt({wait})\nv_cmp_ne_u32 vcc, s58, v{vdst}\ns_nop 4\ns_cbranch_vccnz {name}_spin\n{name}_ret:")
    spins.append((name,vaddr,vdst,soff))
def flag_store(A,name,wave,soff_code,va,vb,cond=None):
    A(soff_code)
    if wave is not None: A(f"s_cmp_eq_u32 s40, {wave}\ns_cselect_b32 s59, s59, 0x7ffffff0")
    if cond: A(f"{cond}\ns_cselect_b32 s59, s59, 0x7ffffff0")
    A(f"v_mov_b32 v{va}, s58\nv_mov_b32 v{vb}, 0\ns_mov_b64 exec, 1\nbuffer_store_dword v{va}, v{vb}, s[32:35], s59 offen sc1\ns_mov_b64 exec, -1")

def kern(A):
    vm=VM()
    A.label(KN)
    A("s_cmp_ge_u32 s2, 256\ns_cbranch_scc1 k_end")
    if STAMP or E("DBG",0) or E("PAD",0) or E("PROBE",-1)>=0: A("s_memrealtime s[92:93]\ns_memtime s[94:95]")
    A("s_load_dwordx4 s[4:7], s[0:1], 0\ns_load_dwordx2 s[14:15], s[0:1], 72\ns_load_dwordx4 s[8:11], s[0:1], 32")
    A("s_load_dwordx4 s[72:75], s[0:1], 48\ns_load_dwordx2 s[12:13], s[0:1], 16")
    if CODEPF:
        A("s_getpc_b64 s[70:71]\nk_pc:\ns_and_b32 s68, s2, 0xf8\nv_add_u32 v26, s68, v0\nv_lshlrev_b32 v26, 7, v26\nv_min_u32 v26, k_last-k_pc, v26\nv_cmp_gt_u32 vcc, 8, v0\ns_and_saveexec_b64 s[68:69], vcc\ns_cbranch_execz k_nopf\nglobal_load_dword v26, v26, s[70:71]\nk_nopf:\ns_mov_b64 exec, -1")
    A("v_lshrrev_b32 v1, 6, v0\nv_and_b32 v0, 63, v0\nv_readfirstlane_b32 s40, v1")
    A("s_and_b32 s3, s2, 7\ns_lshr_b32 s59, s2, 3\ns_and_b32 s100, s59, 7")
    A("s_and_b32 s98, s3, 3\ns_lshl_b32 s98, s98, 3\ns_add_u32 s98, s98, s100")
    A("s_lshr_b32 s99, s3, 2\ns_lshl_b32 s99, s99, 2\ns_lshr_b32 s68, s59, 3\ns_add_u32 s99, s99, s68")
    A("s_add_u32 s100, s100, s99")
    A("v_lshrrev_b32 v20, 3, v0\nv_and_b32 v21, 7, v0\nv_lshrrev_b32 v1, 5, v0\ns_and_b32 s70, s40, 3\ns_lshl_b32 s101, s70, 10")
    A(f"v_lshrrev_b32 v22, 4, v0\nv_xor_b32 v22, v22, v21\nv_lshlrev_b32 v22, 4, v22\nv_lshl_add_u32 v{vX}, v20, 10, v22\ns_lshl_b32 s68, s70, 14\nv_add_u32 v{vX}, s68, v{vX}\nv_xor_b32 v{vX+1}, 64, v{vX}\nv_add_u32 v{vX+1}, 0x2000, v{vX+1}")
    A("v_bfe_u32 v31, v0, 4, 1\nv_lshlrev_b32 v31, 2, v31\nv_xor_b32 v31, v31, v21\nv_lshlrev_b32 v31, 4, v31")
    A("s_lshl_b32 s70, s70, 3\nv_add_u32 v29, s70, v20\nv_mul_u32_u24 v30, 3072, v29\nv_add_u32 v30, v30, v31\ns_lshl_b32 s68, s99, 7\nv_add_u32 v30, s68, v30")
    A("s_and_b32 s89, s99, 1\ns_lshl_b32 s89, s89, 2\ns_xor_b32 s89, s89, s40" if RSW else "s_mov_b32 s89, s40")
    if WTOUCH: A("v_lshlrev_b32 v24, 7, v0\ns_lshl_b32 s59, s2, 3\ns_add_u32 s59, s59, s40\ns_mul_i32 s59, s59, 768")
    A("v_and_b32 v22, 31, v0\ns_lshl_b32 s68, s89, 13\nv_lshlrev_b32 v11, 4, v21\nv_lshl_add_u32 v11, v20, 10, v11\nv_add_u32 v11, s68, v11\ns_lshl_b32 s57, s98, 16")
    A("s_waitcnt lgkmcnt(0)")
    srd(A,16,4,2048*1024); srd(A,20,6,512*3072)
    if WTOUCH: A("s_mov_b64 exec, 0x3f\nbuffer_load_dword v25, v24, s[20:23], s59 offen\ns_mov_b64 exec, -1")
    if TLB:
        A("s_cmp_lt_u32 s40, 6\ns_cbranch_scc1 k_notlb\ns_cmp_eq_u32 s40, 7\ns_cbranch_scc1 k_tlb7")
        A("v_lshlrev_b32 v24, 21, v0\ns_mov_b64 exec, 0xfff\nglobal_load_dword v26, v24, s[14:15] sc1\ns_branch k_tlbd")
        A.label("k_tlb7")
        A("v_lshlrev_b32 v24, 20, v0\ns_mov_b64 exec, 3\nglobal_load_dword v26, v24, s[8:9]\nglobal_load_dword v26, v24, s[10:11]\nglobal_load_dword v26, v24, s[72:73]\nglobal_load_dword v26, v24, s[74:75]\ns_mov_b64 exec, 1\nglobal_load_dword v26, v24, s[12:13]")
        A.label("k_tlbd")
        A("s_mov_b64 exec, -1")
        A.label("k_notlb")
    X=32
    vm=VM()
    for i in range(8):
        A(f"s_add_u32 s88, s100, {i}\ns_and_b32 s88, s88, 7\ns_lshl_b32 s88, s88, 7\ns_add_u32 s88, s88, s57\nbuffer_load_dwordx4 {vr(X+4*i,4)}, v11, s[16:19], s88 offen"); vm.add(("x",i))
    if XBAR==1: A("s_barrier")
    def dmaW(vm,d,his):
        L=[]; b=WB+(d%4)*24576
        for k,hi in enumerate(his):
            for c in range(3):
                vm.add(("W",d))
                if c==0: pre=f"s_add_u32 s88, s100, {d}\ns_and_b32 s88, s88, 7\ns_mul_i32 s59, s88, {64*3072}\n"+("s_add_u32 s59, s59, s91\n" if hi is None else (f"s_add_u32 s59, s59, {32*3072}\n" if hi else ""))
                else: pre="s_add_u32 s59, s59, 1024\n"
                m=f"s80, {b+c*8192}" if hi is None else f"s101, {b+c*8192+hi*4096}"
                L.append(f"s_add_u32 m0, {m}\n"+pre+"buffer_load_dwordx4 v30, s[20:23], s59 offen lds")
        return L
    srd(A,32,14,WS_SIZE)
    A(f"s_add_u32 s70, s14, {WS_T}\ns_addc_u32 s71, s15, 0\ns_load_dword s58, s[70:71], 0")
    A("s_and_b32 s41, s40, 1\ns_bfe_u32 s42, s40, 0x10001")
    A("v_lshrrev_b32 v4, 4, v0\ns_lshl_b32 s68, s41, 2\nv_xor_b32 v4, s68, v4\nv_xor_b32 v4, v4, v21\nv_lshlrev_b32 v4, 4, v4\nv_lshl_add_u32 v4, v20, 7, v4\ns_lshl_b32 s68, s89, 10\nv_add_u32 v4, s68, v4")
    A("v_mov_b32 v12, 0\nv_mov_b32 v13, 0\nv_mov_b32 v14, 0\nv_mov_b32 v15, 0")
    A("v_lshlrev_b32 v2, 4, v0\nv_mov_b32 v19, 0x3f803f80")
    A("s_lshr_b32 s48, s40, 2")
    A("s_lshl_b32 s80, s48, 12\ns_add_u32 s80, s80, s101")
    def setup_main():
        A=Asm()
        A("v_bfe_u32 v23, v0, 1, 3\nv_xor_b32 v23, v23, v1\nv_lshlrev_b32 v23, 4, v23\nv_lshl_add_u32 v23, v22, 7, v23")
        A("v_bfe_u32 v28, v0, 2, 2\nv_lshlrev_b32 v28, 7, v28\nv_and_b32 v24, 3, v0\nv_lshl_add_u32 v28, v24, 3, v28")
        A("v_bfe_u32 v24, v0, 3, 1\nv_xor_b32 v24, s42, v24\nv_lshl_add_u32 v28, v24, 6, v28\nv_bfe_u32 v27, v0, 4, 1\nv_lshl_add_u32 v28, v27, 5, v28")
        srd(A,24,8,512*3584); srd(A,28,10,512*3584); srd(A,36,14,WS_SIZE); srd(A,76,72,1792*1024); srd(A,60,12,512*1024); srd(A,64,74,2048*1024)
        A("s_bfe_u32 s59, s2, 0x20003\ns_lshl_b32 s43, s3, 2\ns_add_u32 s43, s43, s59")
        A("s_lshr_b32 s44, s2, 5")
        A("s_lshl_b32 s45, s44, 3\ns_add_u32 s45, s45, s40")
        A("s_lshr_b32 s46, s3, 1\ns_lshl_b32 s46, s46, 2\ns_add_u32 s46, s46, s59")
        A("s_and_b32 s47, s3, 1\ns_mul_i32 s47, s47, 7\ns_add_u32 s47, s47, s44")
        A(f"s_lshl_b32 s49, s43, 17\ns_add_u32 s49, s49, s101\ns_add_u32 s49, s49, {WS_KV}")
        A(f"s_lshl_b32 s50, s46, 17\ns_add_u32 s50, s50, {WS_XN}")
        A(f"v_mul_u32_u24 v{vG}, 3584, v29\nv_add_u32 v{vG}, v{vG}, v31\ns_lshl_b32 s68, s47, 8\nv_add_u32 v{vG}, s68, v{vG}\nv_xor_b32 v{vU}, 32, v{vG}")
        A(f"s_lshr_b32 s68, s101, 5\nv_add_u32 v29, s68, v20\nv_lshl_add_u32 v{vD}, v29, 10, v31\ns_lshl_b32 s68, s44, 7\nv_add_u32 v{vD}, s68, v{vD}")
        A(f"s_mul_i32 s51, s43, {224*1024}\ns_lshl_b32 s68, s101, 2\ns_add_u32 s51, s51, s68\ns_add_u32 s51, s51, {WS_H}")
        A(f"v_and_b32 v3, 15, v0\nv_lshlrev_b32 v3, 4, v3\nv_lshl_add_u32 v3, v1, 8, v3\nv_add_u32 v3, {KVB+1024}, v3\nv_add_u32 v{aK}, {KVB}, v2\nv_mov_b32 v{IX1}, 0xdddd\ns_mov_b32 s52, 0xffff\ns_mov_b32 s53, 0xffff")
        A(f"s_lshl_b32 s68, s41, 13\nv_add_u32 v{aX+4}, s68, v23")
        for kq in range(1,4): A(f"v_xor_b32 v{aX+4+kq}, {32*kq}, v{aX+4}")
        for kq in range(4): A(f"v_add_u32 v{aX+kq}, 0x10000, v{aX+4+kq}")
        A(f"v_lshl_add_u32 v{aW+2}, v27, 13, v28\nv_lshl_add_u32 v{aW+2}, v1, 10, v{aW+2}\ns_lshl_b32 s68, s48, 14\ns_add_u32 s68, s68, 16384\nv_add_u32 v{aW+2}, s68, v{aW+2}")
        A(f"v_xor_b32 v{aW+3}, 32, v{aW+2}\nv_add_u32 v{aW}, 0x10000, v{aW+2}\nv_add_u32 v{aW+1}, 0x10000, v{aW+3}")
        A(f"v_lshl_add_u32 v{aH+2}, v1, 9, v28\ns_lshl_b32 s68, s42, 6\nv_xor_b32 v{aH+2}, s68, v{aH+2}\ns_lshl_b32 s68, s101, 3\nv_add_u32 v{aH+2}, s68, v{aH+2}\nv_xor_b32 v{aH+3}, 64, v{aH+2}\nv_add_u32 v{aH}, 0x10000, v{aH+2}\nv_add_u32 v{aH+1}, 0x10000, v{aH+3}")
        A(f"s_lshl_b32 s54, s46, 2\ns_lshl_b32 s68, s41, 1\ns_add_u32 s54, s54, s68\ns_mul_i32 s54, s54, 112\ns_lshl_b32 s68, s47, 3\ns_add_u32 s54, s54, s68\ns_and_b32 s68, s40, 6\ns_add_u32 s54, s54, s68\ns_lshl_b32 s54, s54, 10\ns_add_u32 s54, s54, {WS_H}\ns_add_u32 s55, s54, {112*1024}")
        A(f"s_lshl_b32 s81, s48, 12\ns_add_u32 s81, s81, s49\ns_lshl_b32 s82, s48, 16\ns_add_u32 s82, s82, s50\ns_mul_i32 s83, s48, {32*3584}\ns_lshl_b32 s84, s48, 17\ns_mul_i32 s85, s48, {112*1024}\ns_add_u32 s85, s85, s51")
        A("s_lshr_b32 s86, s46, 1\ns_mul_i32 s68, s43, 37\ns_lshr_b32 s68, s68, 8\ns_mul_i32 s68, s68, 7\ns_sub_u32 s87, s43, s68")
        if not ROT: A("s_mov_b32 s86, 0\ns_mov_b32 s87, 0")
        return [x.strip() for x in A.lines]
    A(f"s_mul_i32 s91, s48, {32*3072}")
    if not W0L:
        for d in range(NW0):
            for l in dmaW(vm,d,[None]): A(l)
    SM=setup_main()
    for l in SM[:13]: A(l)
    SM=SM[13:]
    SM=SM[:24]+[l.replace("s59","s75").replace("s68","s74").replace("s70","s73") for l in SM[24:]]
    A(f"s_lshl_b32 s68, s41, 12\nv_add_u32 v5, s68, v23")
    for kq in range(1,4): A(f"v_xor_b32 v{5+kq}, {32*kq}, v5")
    A(f"v_lshl_add_u32 v9, v1, 10, v28\nv_add_u32 v9, {WB}, v9\nv_add_u32 v10, {2*24576}, v9")
    rotU=lambda n: f"s_add_u32 s88, s86, {n}\ns_and_b32 s88, s88, 7\n"
    rotD=lambda n: f"s_add_u32 s88, s87, {n}\ns_sub_u32 s89, s88, 7\ns_cmp_ge_u32 s88, 7\ns_cselect_b32 s88, s89, s88\n"
    def dmaKV(vm,it,hi=None):
        vm.add(("KV",it))
        if hi is None: return [f"s_add_u32 m0, s80, {KVB+(it%3)*KVS}\ns_add_u32 s59, s81, {it*8192}\nbuffer_load_dwordx4 v2, s[32:35], s59 offen sc1 lds"]
        return [f"s_add_u32 m0, s101, {KVB+(it%3)*KVS+hi*4096}\ns_add_u32 s59, s49, {it*8192+hi*4096}\nbuffer_load_dwordx4 v2, s[32:35], s59 offen sc1 lds"]
    def dmaUX(vm,n,hi=None):
        b=UB[ub(n)]; vm.add(("U",n),2)
        m,s,o1,o2=("s80","s82",0,0) if hi is None else ("s101","s50",hi*8192,hi*65536)
        return [f"s_lshl_b32 s59, {m}, 1\ns_add_u32 m0, s59, {b+o1}\n"+rotU(n)+f"s_lshl_b32 s59, s88, 7\ns_add_u32 s59, s59, {s}\n"+(f"s_add_u32 s59, s59, {o2}\n" if o2 else "")+f"buffer_load_dwordx4 v{vX}, s[36:39], s59 offen sc1 lds",
                f"s_add_u32 m0, m0, 1024\ns_nop 0\nbuffer_load_dwordx4 v{vX+1}, s[36:39], s59 offen sc1 lds"]
    def dmaUW(vm,n,hi=None):
        b=UB[ub(n)]; L=[]; vm.add(("U",n),4)
        for c in range(4):
            if c==0: so=rotU(n)+f"s_mul_i32 s59, s88, {64*3584}\n"+("s_add_u32 s59, s59, s83" if hi is None else f"s_add_u32 s59, s59, {hi*32*3584}")
            else: so="s_add_u32 s59, s59, 128" if c==2 else "s_nop 0"
            m=f"s80, {b+16384+c*8192}" if hi is None else f"s101, {b+16384+c*8192+hi*4096}"
            L.append(f"s_add_u32 m0, {m}\n{so}\nbuffer_load_dwordx4 v{vG+c%2}, s[{24+4*(c%2)}:{27+4*(c%2)}], s59 offen lds")
        return L
    def dmaU(vm,n,hi=None): return dmaUX(vm,n,hi)+dmaUW(vm,n,hi)
    def dmaRows(vm,tag,dst,pre,srdn):
        vm.add(tag,4)
        return [(f"s_lshl_b32 s90, s80, 2\n" if i==0 else "")+f"s_add_u32 m0, s90, {dst+i*1024}\n"+(pre if i==0 else "s_add_u32 s59, s59, 8192\n")+f"buffer_load_dwordx4 v{vD}, s[{srdn}:{srdn+3}], s59 offen lds" for i in range(4)]
    def dmaDW(vm,n): return dmaRows(vm,("D",n),GB[DSL[n]//2]+(DSL[n]%2)*32768,rotD(n)+"s_lshl_b32 s59, s88, 18\ns_add_u32 s59, s59, s84\n",76)
    def dmaWO(vm): return dmaRows(vm,"wo",GB[1],"s_mov_b32 s59, s84\n",60)+dmaRows(vm,"wo",GB[1]+32768,f"s_add_u32 s59, s84, {256*1024}\n",60)
    def dmaDH(vm,n):
        b=GB[n%2]; vm.add(("D",n),4)
        return [(f"s_lshl_b32 s59, s80, 2\ns_add_u32 m0, s59, {b}\n"+rotD(n)+"s_lshl_b32 s59, s88, 14\ns_add_u32 s59, s59, s85\n" if i==0 else "")+f"buffer_load_dwordx4 v2, s[32:35], s59 offen offset:{1024*i} sc1 lds" for i in range(4)]
    if W0L==1:
        for d in range(NW0):
            for l in dmaW(vm,d,[None]): A(l)
    st.mark(A,0)
    for i in range(8):
        if i%2==0: A(f"s_waitcnt vmcnt({vm.n_after(('x',i+1))})")
        for d in range(4): A(f"v_dot2c_f32_bf16 v{12+d%2}, v{X+4*i+d}, v19\nv_dot2c_f32_bf16 v{14+d%2}, v{X+4*i+d}, v{X+4*i+d}")
    if W0L==2:
        for d in range(NW0):
            for l in dmaW(vm,d,[None]): A(l)
    st.mark(A,1)
    later=[]
    if not W1G:
        for d in range(NW0,NW1): later+=dmaW(vm,d,[None])
    A("s_nop 2\nv_add_f32 v12, v12, v13\nv_add_f32 v13, v14, v15\ns_nop 1")
    for mod in ("quad_perm:[1,0,3,2]","quad_perm:[2,3,0,1]","row_half_mirror"):
        A(f"v_add_f32_dpp v12, v12, v12 {mod} row_mask:0xf bank_mask:0xf\nv_add_f32_dpp v13, v13, v13 {mod} row_mask:0xf bank_mask:0xf\ns_nop 0")
    A(f"v_mul_f32 v12, {f2u(1/512):#x}, v12\nv_mul_f32 v13, {f2u(1/512):#x}, v13")
    A("v_fma_f32 v13, -v12, v12, v13\nv_max_f32 v13, 0, v13")
    A("v_cvt_pk_bf16_f32 v13, v13, v13\nv_and_b32 v13, 0xffff0000, v13")
    A(f"v_add_f32 v13, {f2u(1e-5):#x}, v13")
    A("v_cvt_pk_bf16_f32 v13, v13, v13\nv_and_b32 v13, 0xffff0000, v13\nv_sqrt_f32 v13, v13")
    A("v_cvt_pk_bf16_f32 v12, v12, v12\nv_cvt_pk_bf16_f32 v13, v13, v13\nv_and_b32 v13, 0xffff0000, v13\nv_rcp_f32 v14, v13\nv_and_b32 v12, 0xffff0000, v12")
    A("v_mov_b32 v15, v14\nv_mul_f32 v16, -v12, v14\nv_mov_b32 v17, v16")
    for i in range(8):
        for d in range(0,4,2):
            r=X+4*i+d
            A(f"v_lshlrev_b32 v68, 16, v{r}\nv_and_b32 v69, 0xffff0000, v{r}\nv_lshlrev_b32 v70, 16, v{r+1}\nv_and_b32 v71, 0xffff0000, v{r+1}")
            A(f"v_pk_fma_f32 v[68:69], v[68:69], v[14:15], v[16:17]\nv_pk_fma_f32 v[70:71], v[70:71], v[14:15], v[16:17]\nv_cvt_pk_bf16_f32 v{r}, v68, v69\nv_cvt_pk_bf16_f32 v{r+1}, v70, v71")
        A(f"ds_write_b128 v4, {vr(X+4*i,4)} offset:{8192*i}")
    for l in later: A(l)
    A(f"s_waitcnt vmcnt({vm.n_after(('W',0))})\ns_cmp_ge_u32 s40, 4\ns_cbranch_scc1 p1_nop")
    vmh=copy.deepcopy(vm)
    if W1G:
        for d in range(NW0,NW1):
            for l in dmaW(vm,d,[0,1]): A(l)
    A(f"v_mov_b32 v64, -1\nv_mov_b32 v65, -1\nv_mov_b32 v66, -1\nv_mov_b32 v67, -1\ns_lshl_b32 s68, s98, 1\ns_add_u32 s68, s68, s41\ns_lshl_b32 s59, s99, 1\ns_add_u32 s59, s59, s42\ns_lshl_b32 s69, s68, 4\ns_add_u32 s69, s69, s59\ns_lshl_b32 s69, s69, 11\ns_add_u32 s69, s69, {WS_O}")
    A("buffer_store_dwordx4 v[64:67], v2, s[32:35], s69 offen sc1\nbuffer_store_dwordx4 v[64:67], v2, s[32:35], s69 offen offset:1024 sc1")
    A.label("p1_nop")
    A(f"s_waitcnt lgkmcnt(0)\ns_barrier\ns_add_u32 s58, s58, 1")
    st.mark(A,2)
    vmc=vm; vmc.add("xst",2)
    A("s_cmp_ge_u32 s40, 4\ns_cbranch_scc1 p1_help\ns_setprio 1")
    FS=[64,80,32]; ACC=96
    def reads(F,kp):
        d=kp//4; ks=kp%4; sl=d%4
        r=[f"ds_read_b128 {vr(F,4)}, v{5+ks} offset:{d*8192}"]
        for c in range(3):
            for i in range(2): r.append(f"ds_read_b64_tr_b16 {vr(F+4+4*c+2*i,2)}, v{9+sl//2} offset:{(sl%2)*24576+c*8192+(16*ks+4*i)*128}")
        return r
    A("s_lshl_b32 s68, s101, 1\nv_add_u32 v18, s68, v2\nds_read_b128 v[48:51], v18\nds_read_b128 v[52:55], v18 offset:1024")
    for l in reads(FS[0],0)+reads(FS[1],1): A(l)
    A(f"s_and_b32 s59, s100, 7\ns_lshl_b32 s59, s59, 7\ns_add_u32 s59, s59, s57\ns_add_u32 s59, s59, {WS_XN}")
    pre=[f"buffer_store_dwordx4 v[48:51], v{vX}, s[32:35], s59 offen sc1",
         f"buffer_store_dwordx4 v[52:55], v{vX+1}, s[32:35], s59 offen sc1",
         "s_lshl_b32 s68, s98, 1\ns_add_u32 s68, s68, s41\ns_lshl_b32 s59, s99, 1\ns_add_u32 s59, s59, s42\ns_lshl_b32 s59, s59, 7\ns_add_u32 s59, s59, s68",
         f"s_lshl_b32 s70, s59, 10\ns_add_u32 s71, s70, {64*1024}\ns_lshl_b32 s68, s59, 11\ns_add_u32 s68, s68, {WS_KV}\ns_add_u32 s69, s68, {64*2048}",
         f"v_and_b32 v20, 31, v0\nv_lshlrev_b32 v20, 6, v20\nv_lshl_add_u32 v20, v1, 3, v20\ns_lshl_b32 s72, s40, 11\ns_add_u32 s72, s72, {VSC}\nv_add_u32 v20, s72, v20",
         "v_lshlrev_b32 v22, 10, v1\nv_lshl_add_u32 v22, v27, 9, v22\nv_bfe_u32 v23, v0, 2, 2\nv_lshl_add_u32 v22, v23, 6, v22",
         f"v_and_b32 v23, 3, v0\nv_lshl_add_u32 v22, v23, 3, v22\nv_add_u32 v22, s72, v22\nv_mov_b32 v24, {f2u(0.25*LOG2E):#x}\nv_mov_b32 v25, v24"]
    pre=pre[:2]+["\n".join(SM[i:i+5]) for i in range(0,len(SM),5)]+pre[2:]
    assert len(pre)<=31, len(pre)
    for kp in range(32):
        F=FS[kp%3]; d=kp//4
        fill=[]
        if kp==4*F1D+2:
            A(f"s_waitcnt vmcnt(0) lgkmcnt({7 if (LK and NW1<=2 and d<5) else 0})\ns_barrier")
            fill.append("FLAG")
        elif kp%4==2 and (U1H==1 or kp<30):
            w=f"vmcnt({vmc.n_after(('W',d+1))}) " if ('W',d+1) in vmc.ops else ""
            A(f"s_waitcnt {w}lgkmcnt({7 if (LK and NW1<=2 and d<5) else 0})\ns_barrier")
        else: A(f"s_waitcnt lgkmcnt({7 if kp<31 else 0})")
        if EH and kp==31: A("s_barrier")
        if kp%4==2: st.mark(A,32+d)
        fl="FLAG" in fill; fill=[]
        if kp<30: fill+=reads(FS[(kp+2)%3],kp+2)
        if pre:
            fill.append(pre.pop(0))
            if kp<2: vmc.add("xst")
        weave(A,[mfma32(ACC+16*c,F+4+4*c,F,(ACC+16*c) if kp else "0") for c in (2,1,0)],fill)
        if fl: flag_store(A,"p1_f1",0,f"s_lshl_b32 s59, s98, 10\ns_lshl_b32 s88, s99, 7\ns_add_u32 s59, s59, s88\ns_add_u32 s59, s59, {FL1}",60,61)
    st.mark(A,3)
    V=ACC+32; Kk=ACC+16
    A("s_nop 9")
    for d in range(8): A(f"v_cvt_pk_bf16_f32 v{V+d}, v{V+2*d}, v{V+2*d+1}")
    for q in range(4): A(f"ds_write_b64 v20, {vr(V+2*q,2)} offset:{16*q}")
    for d in range(8): A(f"v_cvt_pk_bf16_f32 v{Kk+d}, v{Kk+2*d}, v{Kk+2*d+1}")
    A("s_waitcnt lgkmcnt(0)")
    for hh in range(2):
        for ii in range(2): A(f"ds_read_b64_tr_b16 {vr(V+4*hh+2*ii,2)}, v22 offset:{32*hh+256*ii}")
    A(f"buffer_store_dwordx4 {vr(Kk,4)}, v2, s[32:35], s68 offen sc1\nbuffer_store_dwordx4 {vr(Kk+4,4)}, v2, s[32:35], s69 offen sc1")
    A("s_waitcnt lgkmcnt(0)")
    A(f"buffer_store_dwordx4 {vr(V,4)}, v2, s[32:35], s68 offen offset:1024 sc1\nbuffer_store_dwordx4 {vr(V+4,4)}, v2, s[32:35], s69 offen offset:1024 sc1")
    for r in range(0,16,2): A(f"v_pk_mul_f32 {vr(ACC+r,2)}, {vr(ACC+r,2)}, v[24:25]")
    for d in range(8): A(f"v_cvt_pk_bf16_f32 v{ACC+d}, v{ACC+2*d}, v{ACC+2*d+1}")
    A(f"buffer_store_dwordx4 {vr(ACC,4)}, v2, s[32:35], s70 offen sc1\nbuffer_store_dwordx4 {vr(ACC+4,4)}, v2, s[32:35], s71 offen sc1")
    st.mark(A,49)
    A("s_setprio 0\ns_branch p1_join")
    A.label("p1_help")
    hs=list(SM); hper=(len(hs)+HSN-1)//HSN
    nxt=NW1
    if nxt<4:
        for l in dmaW(vmh,nxt,[0,1]): A(l)
        nxt+=1
    for d in range(8 if U1H==1 else 7):
        for l in hs[:hper]: A(l)
        hs=hs[hper:]
        if d==HSN-1:
            A(f"v_and_b32 v22, 15, v0\nv_lshlrev_b32 v22, 7, v22\ns_lshl_b32 s56, s46, 11\ns_add_u32 s56, s56, {FL1}")
            A("s_cmp_eq_u32 s44, 7\ns_cselect_b32 s26, 0, s26\ns_cselect_b32 s30, 0, s30\ns_cselect_b32 s38, 0, s38")
        st.mark(A,40+d)
        if d<7 and ('W',d+1) in vmh.ops: A(f"s_waitcnt vmcnt({vmh.n_after(('W',d+1))})")
        st.mark(A,32+d)
        A("s_barrier")
        if nxt<8:
            assert nxt<=d+4
            for l in dmaW(vmh,nxt,[0,1]): A(l)
            nxt+=1
        if EARLY:
            if d==4: A("buffer_load_dword v23, v22, s[32:35], s56 offen sc1"); vmh.add("f1")
            if d==5:
                for l in dmaUW(vmh,0,0)+dmaUW(vmh,0,1): A(l)
            if d==6:
                poll_check(A,"p1_c1",22,23,"s56",8,False)
                for hi in range(2):
                    for l in dmaUX(vmh,0,hi): A(l)
        else:
            if d==5:
                for l in dmaUW(vmh,0,0): A(l)
            if d==6:
                for l in dmaUW(vmh,0,1): A(l)
                A("buffer_load_dword v23, v22, s[32:35], s56 offen sc1"); vmh.add("f1")
    if not EARLY:
        poll_check(A,"p1_c1",22,23,"s56",0,False)
        st.mark(A,48)
        for hi in range(2):
            for l in dmaUX(vmh,0,hi): A(l)
    if U1H in (1,2):
        for hi in range(2):
            for l in dmaU(vmh,1,hi): A(l)
    st.mark(A,49)
    A(f"s_waitcnt vmcnt({12 if U1H in (1,2) else 0})")
    st.mark(A,55)
    if EH: A("s_barrier")
    A.label("p1_join")
    A("s_cmp_eq_u32 s44, 7\ns_cselect_b32 s26, 0, s26\ns_cselect_b32 s30, 0, s30\ns_cselect_b32 s38, 0, s38")
    for i in range(16): A(f"v_mov_b32 v{VA+i}, 0")
    A("s_mov_b32 exec_lo, 0x110000\ns_mov_b32 exec_hi, 0x110000")
    for i in range(16): A(f"v_mov_b32 v{VA+i}, 0x3f803f80")
    A("s_mov_b64 exec, -1")
    A(f"v_lshrrev_b32 v30, 1, v0\nv_lshlrev_b32 v30, 7, v30\nv_and_b32 v31, 1, v0\nv_lshl_add_u32 v30, v31, 2, v30\ns_lshr_b32 s56, s43, 1\ns_lshl_b32 s56, s56, 12\ns_add_u32 s56, s56, {FL2}"+ONLY7)
    if TB:
        for k_ in range(4): A(f"v_add_u32 v{a3+k_}, {B3}, v{aX+4+k_}")
        for k_ in range(2): A(f"v_add_u32 v{a3+4+k_}, {B3}, v{aW+2+k_}")
    st.mark(A,4)
    vm=VM(); vm.add(("U",1)); vm.add(("U",0))
    if F2G<0: vm=VM(); vm.add(("U",0)); vm.add(("U",1))
    def f2flag():
        if F2G<0: A("s_cmp_ge_u32 s40, 4\ns_cbranch_scc1 j_nw\ns_waitcnt vmcnt(0)\nj_nw:")
        else: A(f"s_waitcnt vmcnt({vm.n_after(('U',0))})")
        flag_store(A,"p1_f2",None,f"s_lshl_b32 s59, s99, 1\ns_add_u32 s59, s59, s42\ns_lshl_b32 s59, s59, 5\ns_add_u32 s59, s59, s98\ns_lshl_b32 s59, s59, 5\ns_add_u32 s59, s59, s41\ns_lshl_b32 s59, s59, 2\ns_add_u32 s59, s59, {FL2}",28,29,"s_cmp_lt_u32 s40, 4"); vm.add("fs")
        st.mark(A,57)
    if NPRE==1 or F2G<0: f2flag()
    kv=lambda t: ((t//4)%3)*KVS+(t%4)*2048
    def up_reads(g):
        n,ks=g//4,g%4; F=FR[g%2]; b=ub(n)
        L=[f"ds_read_b128 {vr(F+8+4*t,4)}, v{aX+4*b+ks} offset:{t*4096}" for t in range(2)]
        for jj in range(2):
            for i in range(2): L.append(f"ds_read_b64_tr_b16 {vr(F+4*jj+2*i,2)}, v{(aW+2*b+jj) if b<2 else (a3+4+jj)} offset:{(16*ks+4*i)*128}")
        return L
    def up_mf(g):
        F=FR[g%2]
        return [mfma32(GACC+16*(2*t+jj),F+4*jj,F+8+4*t,(GACC+16*(2*t+jj)) if g else "0") for t in range(2) for jj in range(2)]
    HB=[FR[0]+8,FR[0]+12,FR[1]+8,FR[1]+12]
    def dn_reads(g):
        n,u=g//4,g%4; F=FR[g%2]; sl=DSL[n]
        return [f"ds_read_b64_tr_b16 {vr(F+4*cb+2*i,2)}, v{aH+2*(sl//2)+cb} offset:{(sl%2)*32768+u*2048+i*1024}" for cb in range(2) for i in range(2)]
    def dn_mf(g):
        F=FR[g%2]
        return [mfma32(DACC+16*cb,F+4*cb,HB[g%4],(DACC+16*cb) if g else "0") for cb in range(2)]
    def hload(g):
        n,u=g//4,g%4
        return ((rotD(n)+"s_lshl_b32 s75, s88, 14\ns_add_u32 s75, s75, s85\n") if u==0 else "")+f"buffer_load_dwordx4 {vr(HB[u],4)}, v2, s[32:35], s75 offen offset:{1024*u} sc1"
    def up_epi(ti):
        acc=GACC+16*ti; t,jj=ti//2,ti%2
        L=[f"v_max_f32 v{acc+r}, 0, v{acc+r}" for r in range(8)]+([f"v_mul_f32 v{acc+r}, v{acc+r}, v{acc+8+r}" for r in range(8)] if not E("PKE",0) else ["\n".join(f"v_pk_mul_f32 {vr(acc+r,2)}, {vr(acc+r,2)}, {vr(acc+8+r,2)}" for r in range(0,8,2))])
        L+=[f"v_cvt_pk_bf16_f32 v{acc+d}, v{acc+2*d}, v{acc+2*d+1}" for d in range(4)]
        L.append(f"buffer_store_dwordx4 {vr(acc,4)}, v2, s[36:39], s{54+t} offen offset:{1024*jj} sc1")
        return L
    if IDLE: A("s_cmp_eq_u32 s44, 7\ns_cbranch_scc1 idle_path")
    sec0=len(A.lines)
    KVN=E('KVN',NPRE-1)
    for n in range(NPRE):
        if n==KVN:
            if n==0: A("buffer_load_dword v31, v30, s[32:35], s56 offen sc1"); vm.add("f2")
            st.mark(A,56)
            poll_check(A,"m_c2",30,31,"s56",vm.n_after("f2"))
        if not (EH and n==0): A((f"s_waitcnt vmcnt({vm.n_after(('U',n))}) lgkmcnt(0)" if n else "s_waitcnt lgkmcnt(0)")+"\ns_barrier")
        if n==2: st.mark(A,7)
        st.mark(A,50+n)
        if n==KVN:
            A(f"s_lshl_b32 s59, s43, 6\ns_add_u32 s59, s59, s45\ns_lshl_b32 s59, s59, 10\nbuffer_load_dwordx4 {vr(Q,4)}, v2, s[32:35], s59 offen sc1"); vm.add("q")
            for l in dmaKV(vm,0)+dmaKV(vm,1): A(l)
        nn=n+1
        if TB: nn={0:2,1:3,2:4}.get(n,None)
        dml=dmaU(VM(),nn) if (nn is not None and (TB or n or not U1H)) else []
        if U1H==3 and n==0:
            for l in up_reads(0): A(l)
            A("s_cmp_lt_u32 s40, 4\ns_cbranch_scc1 j_u1")
            for hi in range(2):
                for l in dmaU(VM(),1,hi): A(l)
            A.label("j_u1")
        for u in range(4):
            g=4*n+u
            if u>0: A("s_waitcnt lgkmcnt(0)")
            if E("PPRE",0): A(f"s_setprio {3-u}")
            fill=up_reads(g) if not (U1H==3 and g==0) else []
            if g==PG and NPRE>1: fill.append("buffer_load_dword v31, v30, s[32:35], s56 offen sc1"); vm.add("f2")
            kk=2 if TB else 3
            fill+=dml[:kk]; vm.add(("U",nn),len(dml[:kk])); dml=dml[kk:]
            if g>0: weave(A,up_mf(g-1),fill)
            else:
                for l in fill: A(l)
            if g==F2G and NPRE>1: f2flag()
    st.mark(A,5)
    if KVN==NPRE-1: A(f"s_waitcnt vmcnt({vm.n_after(('KV',0))})\ns_barrier")
    st.mark(A,6)
    A(f"ds_read_b128 {vr(K,4)}, v{aK}")
    A(f"s_mov_b64 exec, s[52:53]\nds_read_b128 {vr(VA,4)}, v3\nds_read_b128 {vr(VB,4)}, v3 offset:512\ns_mov_b64 exec, -1")
    A("s_waitcnt lgkmcnt(2)")
    A(mfma32(SA,K,Q,"0"))
    for r in range(16): A(f"v_mov_b32 v{O+r}, 0")
    def max16(dst,S,first):
        if first:
            A(f"v_max3_f32 v{dst}, v{S}, v{S+1}, v{S+2}\nv_max_f32 v{dst}, v{dst}, v{S+3}")
            s0=4
        else: s0=0
        for r in range(s0,16,2): A(f"v_max3_f32 v{dst}, v{dst}, v{S+r}, v{S+r+1}")
    max16(28,SA,True)
    A(f"v_add_f32 v28, {f2u(MOFF):#x}, v28")
    A(f"v_mov_b32 v29, v28\ns_nop 1\nv_permlane32_swap_b32 v28, v29\nv_max_f32 v28, v28, v29")
    for r in range(16): A(f"v_sub_f32 v{C+r}, 0, v28")
    A("s_nop 1")
    A(mfma32(SA,K,Q,C))
    A(f"ds_read_b128 {vr(K,4)}, v{aK} offset:2048\ns_nop 8")
    if PRIO: A("s_setprio 1")
    UP0=-NPRE; D0=UP0+8+DGAP
    DWS={0:UP0+7,1:UP0+10,2:UP0+11,3:D0,4:D0+1,5:D0+3,6:D0+5} if E('DWV',1) else {0:UP0+7,1:UP0+9,2:UP0+10,3:UP0+11,4:D0+1,5:D0+2,6:D0+5}; WOD=4; WOD2=6
    assert D0+7<=17 and D0>=UP0+12
    AFR=[160+4*i for i in range(8)]+[208+4*i for i in range(4)]+[232+4*i for i in range(4)]
    rdw=[f"ds_read_b64_tr_b16 {vr(AFR[2*n+cb]+2*i,2)}, v{230+cb} offset:{n*2048+i*1024}" for n in range(8) for cb in range(2) for i in range(2)]
    WOD=WOD2=UP0+10-D0; WIT=UP0+11; DWS={0:UP0+7,1:UP0+11,2:UP0+12,3:max(D0,UP0+13),5:D0+1+(D0==UP0+12),6:D0+2+2*(D0==UP0+12),4:D0+3}
    for it in range(16):
        if it-UP0==9:
            sec1=len(A.lines); A.label("idle_merge")
        needs=[]
        if it+1<16: needs.append(vm.n_after(("KV",it+1)))
        n=it-UP0; dn=it-D0
        if 0<=n<8: needs.append(vm.n_after(("U",n)))
        if 0<=dn<7: needs.append(vm.n_after(("D",dn)))
        if it==15: needs.append(vm.n_after(("D",6)))
        if WPRE and it==WIT: needs.append(vm.n_after("wo")); A(f"s_lshl_b32 s68, s101, 3\nv_add_u32 v230, s68, v{aH+2}\nv_add_u32 v231, s68, v{aH+3}")
        if dn==-1: poll_check(A,"m_c3",30,31,"s56",vm.n_after("f3"))
        skipb=E("XB",0) and it>=7 and it%2==1
        A((f"s_waitcnt vmcnt({min(needs)}) lgkmcnt(0)" if (needs and not skipb) else "s_waitcnt lgkmcnt(0)")+("" if skipb else "\ns_barrier"))
        st.mark(A,8+it)
        if PRIO: A(f"s_cmp_lt_u32 s40, 4\ns_cbranch_scc1 m_pa{it}\ns_setprio 2\nm_pa{it}:")
        if n==9:
            A(f"s_lshl_b32 s56, s43, 4\ns_add_u32 s56, s56, {(FL3-FL1)//128}\nv_lshrrev_b32 v30, 2, v0\nv_add_u32 v30, s56, v30\nv_lshlrev_b32 v30, 7, v30\nv_and_b32 v31, 3, v0\nv_lshl_add_u32 v30, v31, 2, v30\nv_and_b32 v31, 7, v0\ns_lshl_b32 s56, s43, 3\nv_add_u32 v31, s56, v31\nv_lshlrev_b32 v31, 7, v31\nv_cmp_lt_u32 vcc, 55, v0")
            A(f"s_mov_b32 s56, {FL1}"+ONLY7+"\nv_cndmask_b32 v30, v30, v31, vcc")
        vt=VM(); dml=[]
        if 2<=n+1<8: dml+=dmaU(vt,n+1)
        if it+2<16: dml+=dmaKV(vt,it+2)
        for dd_,when in DWS.items():
            if when==it: dml+=dmaDW(vt,dd_)
        if dn==WOD: dml+=dmaWO(vt)[:4]; vt.ops=vt.ops[:-4]
        if dn==WOD2: dml+=dmaWO(vt)[4:]; vt.ops=vt.ops[:-4]
        if n==7 and WOT: dml.append("s_lshl_b32 s59, s2, 3\ns_add_u32 s59, s59, s40\ns_lshl_b32 s59, s59, 8\nv_lshlrev_b32 v28, 7, v0\ns_mov_b64 exec, 3\nbuffer_load_dword v195, v28, s[60:63], s59 offen\ns_mov_b64 exec, -1"); vt.add("t")
        if it==14:
            dml.append(f"s_lshl_b32 s57, s43, 16\ns_lshl_b32 s68, s40, 13\ns_add_u32 s57, s57, s68\ns_lshl_b32 s68, s44, 7\ns_add_u32 s57, s57, s68\nv_lshrrev_b32 v{XR+4}, 3, v0\nv_lshlrev_b32 v{XR+4}, 10, v{XR+4}\nv_and_b32 v{XR+5}, 7, v0\nv_lshl_add_u32 v{XR+4}, v{XR+5}, 4, v{XR+4}\n"+
                       f"buffer_load_dwordx4 {vr(XR,4)}, v{XR+4}, s[16:19], s57 offen"); vt.add("x")
        assert len(vt.ops)==len(dml)
        tags=list(vt.ops)
        for u in range(4):
            t=4*it+u
            if PRIO and u==PRIO: A(f"s_cmp_lt_u32 s40, 4\ns_cbranch_scc1 m_pb{it}\ns_setprio 0\nm_pb{it}:")
            PP=eval(os.environ.get("PP","[3,3,3,2,2,1,1,0]"))
            if E("XB",0) and it>=6: PP=eval(os.environ.get("PP2","[3,3,3,3,3,3,3,3,3,2,2,2,1,1,0,0]"))[8*(it%2):8*(it%2)+8]
            if PROG and (u==0 or PP[2*u]!=PP[2*u-1]): A(f"s_setprio {PP[2*u]}")
            Sc,Sn=(SA,SB) if u%2==0 else (SB,SA)
            val=[f"v_exp_f32 v{Sc+r}, v{Sc+r}" for r in range(16)]
            g=4*n+u; gd=4*dn+u
            ex=[]; rds=[]
            if 0<=g-1<32: ex+=up_mf(g-1)
            if 0<=g<32: rds+=up_reads(g)
            if 0<=gd-1<28: ex+=dn_mf(gd-1)
            if 0<=gd<28: rds+=dn_reads(gd)
            hw=f"vmcnt({vm.n_after(('H',gd-1))}) " if 0<=gd-1<28 else ""
            SPR=E("SPR",3) if (n<8 or dn==3 or n==10) else 4
            k=len(dml) if (n in (8,9) or u>=SPR-1) else (len(dml)+SPR-u-1)//(SPR-u)
            mine=dml[:k]; dml=dml[k:]
            for tg_ in tags[:k]: vm.add(tg_)
            tags=tags[k:]
            extra=[]; post=''
            if WPRE and it>=WIT:
                per=8; rds+=rdw[:per]; rdw=rdw[per:]
            if n==8 and u in (1,2,3):
                for ti in eval(os.environ.get('EPS','([0,1],[2,3],[])'))[u-1]: extra+=up_epi(ti); vm.add("hst")
            if 4*n+u==F3G:
                B=Asm(); flag_store(B,"m_f3",None,f"s_lshl_b32 s59, s46, 1\ns_add_u32 s59, s59, s41\ns_lshl_b32 s59, s59, 4\ns_add_u32 s59, s59, s47\ns_lshl_b32 s59, s59, 5\ns_lshr_b32 s68, s40, 1\ns_add_u32 s59, s59, s68\ns_lshl_b32 s59, s59, 2\ns_add_u32 s59, s59, {FL3}",28,29,"s_cmp_lg_u32 s44, 7")
                post=f"s_waitcnt vmcnt({vm.n_after('hst')})\n"+B.text(); vm.add("fs")
            if dn==-2 and u==F3U: post+="\nbuffer_load_dword v31, v30, s[32:35], s56 offen sc1"; vm.add("f3")
            if 0<=gd+3<28: post+="\n"+hload(gd+3); vm.add(("H",gd+3))
            qk=[mfma32(Sn,K,Q,C)]+([f"ds_read_b128 {vr(K,4)}, v{aK} offset:{kv(t+2)}"] if t+2<64 else [])
            if t==63: qk=[]
            EXm="s_mov_b64 exec, s[52:53]"; EN="s_mov_b64 exec, -1"
            Vc,Vp=(12,20) if t%2==0 else (20,12)
            pv1=([pvm(Vp+4,Sn+8)] if t else [])+([EXm,f"ds_read_b128 {vr(Vp,4)}, v3 offset:{kv(t+1)}",f"ds_read_b128 {vr(Vp+4,4)}, v3 offset:{kv(t+1)+512}",EN] if t+1<64 else [])
            pv0=[pvm(Vc,Sc)]
            nx=len(ex); e=[[m] for m in ex]
            seq={0:[pv1,qk,pv0],2:[pv1,qk]+e[0:1]+[pv0]+e[1:2],4:[pv1]+e[0:1]+[qk]+e[1:3]+[pv0]+e[3:4]}[nx]
            iqk=[i for i,x in enumerate(seq) if x is qk][0]
            ng=len(seq)
            for i,x in enumerate(rds): seq[min(ng-2,(i*(ng-1))//max(1,len(rds)))].append(x)
            for i,x in enumerate(mine): seq[(i*ng)//len(mine)].append(x)
            if u>0 or hw: A(f"s_waitcnt {hw}lgkmcnt(0)")
            val=val+extra
            cost=[8 if "exp" in x else 4 for x in val]; tot=sum(cost); acc=0; gi=0
            for i,x in enumerate(val):
                if PROG and i==8 and PP[2*u+1]!=PP[2*u]: A(f"s_setprio {PP[2*u+1]}")
                while gi<ng and i>=1 and ((acc-8>=tot*gi/ng and not (seq[gi] is pv0 and i<10)) or (gi<=iqk and i>=6)):
                    for y in seq[gi]: A(y)
                    gi+=1
                A(x); acc+=cost[i]
            while gi<ng:
                for y in seq[gi]: A(y)
                gi+=1
            if post: A(post)
            if E("JIT",0) and u in (0,2): st.mark(A,99)
    A("s_waitcnt lgkmcnt(0)\ns_nop 0")
    A(pvm(24,SB+8))
    if D0+7>=16:
        gl=4*(16-D0)-1
        A(f"s_waitcnt vmcnt({vm.n_after(('H',gl))})")
        for m in dn_mf(gl): A(m)
        if gl<27:
            A(hload(27)); vm.add(("H",27))
            for l in dn_reads(24): A(l)
    st.mark(A,24)
    A(f"s_lshl_b32 s59, s45, 5\ns_add_u32 s59, s59, s43\ns_lshl_b32 s59, s59, 10\ns_add_u32 s70, s59, {WS_O}\ns_nop 7")
    A(f"v_add_f32 v29, v{O}, v{O+1}\nv_add_f32 v28, v{O+2}, v{O+3}\nv_add_f32 v30, v{O+4}, v{O+5}\nv_add_f32 v31, v{O+6}, v{O+7}\nv_add_f32 v28, v28, v29\nv_add_f32 v30, v30, v31\nv_add_f32 v28, v28, v30\nv_fma_f32 v28, 0, v28, v{O+8}")
    A(f"v_cmp_ngt_f32 vcc, {f2u(2.0**125):#x}, v28")
    A("s_nop 4\ns_cbranch_vccnz m_fallback")
    A.label("m_fin")
    A(f"v_rcp_f32 v28, v{O+8}\ns_nop 0")
    for r in range(8): A(f"v_mul_f32 v{O+r}, v28, v{O+r}")
    for d in range(4): A(f"v_cvt_pk_bf16_f32 v{P+d}, v{O+2*d}, v{O+2*d+1}")
    for d in range(4): A(f"v_min_u32 v{P+d}, -2, v{P+d}")
    A(f"buffer_store_dwordx4 {vr(P,4)}, v2, s[32:35], s70 offen sc1"); vm.add("ost")
    QS=1024; PS=8192; SB_=65536
    A(f"s_lshl_b32 s68, s40, 13\nv_add_u32 v40, s68, v2")
    xo=[f"v_xor_b32 v{40+q}, {32*q}, v40" for q in range(1,8)]
    xo+=[f"v_lshrrev_b32 v30, 3, v0\ns_lshr_b32 s68, s101, 7\nv_add_u32 v30, s68, v30\nv_lshlrev_b32 v37, 1, v{XR+5}\nv_xor_b32 v30, v30, v37\nv_lshlrev_b32 v30, 4, v30\nv_lshl_add_u32 v37, v{XR+5}, 10, v30\ns_lshl_b32 s68, s48, 15\nv_add_u32 v37, s68, v37"]
    if D0+7==17:
        for g in range(24,28):
            A(f"s_waitcnt vmcnt({vm.n_after(('H',g))}) lgkmcnt(0)")
            weave(A,dn_mf(g),(dn_reads(g+1) if g<27 else [])+xo[2*(g-24):2*(g-24)+2])
        A("s_nop 7")
    else:
        for l in xo: A(l)
    for q in range(8): A(f"ds_write_b128 v{40+q}, {vr(DACC+4*q,4)} offset:{q*QS}")
    for q in range(8): A(f"v_add_u32 v{20+q}, {SB_}, v{40+q}")
    A(f"s_lshl_b32 s70, s43, 1\ns_add_u32 s70, s70, s48\ns_lshl_b32 s70, s70, 15\ns_lshl_b32 s68, s101, 3\ns_add_u32 s70, s70, s68\ns_add_u32 s70, s70, {WS_O}\ns_add_u32 s71, s70, 4096\ns_mov_b32 s59, {SPIN//8}")
    OF=64; ACS=96; G=56
    ol=[f"buffer_load_dwordx4 {vr(OF+4*i,4)}, v2, s[32:35], {'s70' if i<4 else 's71'} offen offset:{1024*(i%4)} sc1" for i in range(8)]
    A(f"s_waitcnt vmcnt({vm.n_after('x')}) lgkmcnt(0)\ns_barrier")
    st.mark(A,25)
    for kq in range(4):
        for hh in range(2): A(f"ds_read_b128 {vr(96+8*kq+4*hh,4)}, v37 offset:{kq*PS+hh*512}")
    A(f"v_add_u32 v37, {SB_}, v37")
    for l in ol[:OE]: A(l)
    A("s_waitcnt lgkmcnt(0)")
    for r in range(8): A(f"v_add_f32 v{40+r}, v{96+r}, v{104+r}\nv_add_f32 v{48+r}, v{112+r}, v{120+r}")
    val=[f"v_add_f32 v{G+r}, v{40+r}, v{48+r}" for r in range(8)]+[f"v_mul_f32 v{40+r}, {f2u(-LOG2E):#x}, v{G+r}" for r in range(8)]+[f"v_exp_f32 v{40+r}, v{40+r}" for r in range(8)]+[f"v_add_f32 v{40+r}, 1.0, v{40+r}" for r in range(8)]+[f"v_rcp_f32 v{40+r}, v{40+r}" for r in range(8)]+[f"v_mul_f32 v{G+r}, v{G+r}, v{40+r}" for r in range(8)]
    for i,x in enumerate(val):
        A(x)
        if OE and i%6==5 and OE+i//6<8: A(ol[OE+i//6])
    for d in range(4): A(f"v_lshlrev_b32 v{40+2*d}, 16, v{XR+d}\nv_and_b32 v{41+2*d}, 0xffff0000, v{XR+d}")
    st.mark(A,26)
    A("s_mov_b32 s75, -2")
    for n in range(8):
        A.label(f"m_oc{n}")
        A(f"s_waitcnt vmcnt({7-n})")
        A(f"v_max3_u32 v38, v{OF+4*n}, v{OF+4*n+1}, v{OF+4*n+2}\nv_max_u32 v38, v38, v{OF+4*n+3}\nv_cmp_lt_u32 vcc, s75, v38\ns_nop 1\ns_cbranch_vccnz m_or{n}")
        A(mfma32(ACS,AFR[2*n],OF+4*n,ACS if n else "0"))
        A(mfma32(ACS+16,AFR[2*n+1],OF+4*n,(ACS+16) if n else "0"))
    A("s_nop 5")
    st.mark(A,27)
    A("s_nop 5")
    for q in range(8): A(f"ds_write_b128 v{20+q}, {vr(ACS+4*q,4)} offset:{q*QS}")
    A("s_waitcnt lgkmcnt(0)\ns_barrier")
    T=64
    for kq in range(4):
        for hh in range(2): A(f"ds_read_b128 {vr(T+8*kq+4*hh,4)}, v37 offset:{kq*PS+hh*512}")
    A("s_waitcnt lgkmcnt(4)")
    for r in range(8): A(f"v_add_f32 v{T+r}, v{T+r}, v{T+8+r}")
    A("s_waitcnt lgkmcnt(0)")
    for r in range(8): A(f"v_add_f32 v{T+16+r}, v{T+16+r}, v{T+24+r}")
    for r in range(8): A(f"v_add_f32 v{T+r}, v{T+r}, v{T+16+r}")
    for r in range(8): A(f"v_fma_f32 v{40+r}, v{T+r}, v{G+r}, v{40+r}")
    for d in range(4): A(f"v_cvt_pk_bf16_f32 v{48+d}, v{40+2*d}, v{41+2*d}")
    A(f"buffer_store_dwordx4 v[48:51], v{XR+4}, s[64:67], s57 offen"+os.environ.get("OF"," sc1"))
    flag_store(A,"m_bump",0,f"s_mov_b32 s59, {WS_T}",32,33,"s_cmp_eq_u32 s2, 0")
    if STAMP:
        st.mark(A,28)
        A("s_waitcnt vmcnt(0)")
        st.mark(A,29)
        A(f"v_subrev_u32 v250, {'s92' if STAMP==2 else 's94'}, v250\ns_memrealtime s[96:97]\ns_waitcnt lgkmcnt(0)\nv_writelane_b32 v250, s92, 30\nv_writelane_b32 v250, s96, 31")
        A(f"s_lshl_b32 s96, s2, 3\ns_add_u32 s96, s96, s40\ns_lshl_b32 s96, s96, 8\ns_add_u32 s96, s96, {WS_ST}\nv_lshlrev_b32 v251, 2, v0\nbuffer_store_dword v250, v251, s[32:35], s96 offen")
    if E("PAD",0):
        A.label("k_pad")
        A(f"s_memrealtime s[96:97]\ns_waitcnt lgkmcnt(0)\ns_sub_u32 s96, s96, s92\ns_cmp_lt_u32 s96, {E('PAD',0)}\ns_cbranch_scc1 k_pad")
    if E("DBG",0):
        A("s_cmp_eq_u32 s40, 0\ns_cbranch_scc0 k_end\ns_load_dwordx2 s[4:5], s[0:1], 64\ns_memrealtime s[96:97]\ns_memtime s[6:7]\ns_waitcnt vmcnt(0) lgkmcnt(0)")
        srd(A,8,4,256)
        A("s_not_b32 s92, s92\ns_sub_u32 s6, s6, s94\nv_mov_b32 v1, 0\nv_mov_b32 v2, s92\nv_mov_b32 v3, s96\nv_mov_b32 v4, s6\ns_mov_b64 exec, 1")
        A("buffer_atomic_umax v2, v1, s[8:11], 0 offen\nbuffer_atomic_umax v3, v1, s[8:11], 0 offen offset:4\nbuffer_atomic_umax v4, v1, s[8:11], 0 offen offset:8")
        if STAMP:
            for k,l in enumerate([0,1,2,3,49,50,6,8,16,24,25,26,29]):
                A(f"v_readlane_b32 s6, v250, {l}\ns_nop 3\nv_mov_b32 v4, s6\nbuffer_atomic_umax v4, v1, s[8:11], 0 offen offset:{12+4*k}")
    A.label("k_end")
    A("s_endpgm")
    if IDLE:
        import re
        A.label("idle_path")
        for l in A.lines[sec0:sec1]:
            t_=l.strip(); m_=re.match(r"(\S+) v\[?(\d+)",t_)
            if m_:
                op,r_=m_.group(1),int(m_.group(2))
                if op.startswith("v_mfma") and r_>=128: continue
                if op.startswith("ds_read") and r_>=96: continue
                if op in("v_max_f32","v_mul_f32","v_cvt_pk_bf16_f32","buffer_store_dwordx4") and 128<=r_<192: continue
                if t_.endswith("lds") and r_ in (vG,vU,vX,vX+1): continue
            t_=re.sub(r"vmcnt\(\d+\)","vmcnt(0)",t_).replace("m_c2","i_c2")
            if t_=="s_nop 5": t_="s_nop 12"
            A(t_)
        A("s_waitcnt vmcnt(0)\ns_branch idle_merge")
        spins.append(("i_c2",30,31,"s56"))
    for n in range(8):
        A.label(f"m_or{n}")
        A("s_sub_u32 s59, s59, 1\ns_cselect_b32 s75, -1, s75")
        for l in ol[n:]: A(l)
        A(f"s_branch m_oc{n}")
    for name,va,vd,so in spins:
        A.label(name+"_spin")
        A(f"s_mov_b32 s59, {SPIN}")
        A.label(name+"_l")
        A(f"s_sleep {SLEEP}\nbuffer_load_dword v{vd}, v{va}, s[32:35], {so} offen sc1\ns_waitcnt vmcnt(0)\nv_cmp_ne_u32 vcc, s58, v{vd}\ns_sub_u32 s59, s59, 1\ns_nop 3")
        A(f"s_cbranch_vccz {name}_ret\ns_cmp_lg_u32 s59, 0\ns_cbranch_scc1 {name}_l\ns_branch {name}_ret")
    A.label("m_fallback")
    A(f"s_sub_u32 s68, s49, s101\ns_mov_b32 s69, 0\nv_mov_b32 v28, 0xff800000\nv_subrev_u32 v30, {KVB}, v3")
    A.label("m_fb1")
    A(f"buffer_load_dwordx4 {vr(K,4)}, v2, s[32:35], s68 offen sc1\ns_add_u32 s68, s68, 2048\ns_waitcnt vmcnt(0)")
    A(mfma32(SA,K,Q,"0"))
    A("s_nop 15")
    max16(28,SA,False)
    A("s_add_u32 s69, s69, 1\ns_cmp_lt_u32 s69, 64\ns_cbranch_scc1 m_fb1")
    A("v_mov_b32 v29, v28\ns_nop 1\nv_permlane32_swap_b32 v28, v29\nv_max_f32 v28, v28, v29")
    for r in range(16): A(f"v_sub_f32 v{C+r}, 0, v28\nv_mov_b32 v{O+r}, 0")
    A(f"s_sub_u32 s68, s49, s101\ns_mov_b32 s69, 0")
    A.label("m_fb2")
    A(f"buffer_load_dwordx4 {vr(K,4)}, v2, s[32:35], s68 offen sc1\ns_mov_b64 exec, s[52:53]\nbuffer_load_dwordx4 {vr(VA,4)}, v30, s[32:35], s68 offen sc1\nbuffer_load_dwordx4 {vr(VB,4)}, v30, s[32:35], s68 offen offset:512 sc1\ns_mov_b64 exec, -1")
    A("s_add_u32 s68, s68, 2048\ns_waitcnt vmcnt(0)")
    A(mfma32(SA,K,Q,C))
    A("s_nop 15")
    for r in range(16): A(f"v_exp_f32 v{SA+r}, v{SA+r}")
    A("s_nop 1")
    A(pvm(VA,SA)); A(pvm(VB,SA+8))
    A("s_add_u32 s69, s69, 1\ns_cmp_lt_u32 s69, 64\ns_cbranch_scc1 m_fb2")
    A("s_nop 15")
    A("k_last:\ns_branch m_fin")

def main(out):
    hdr=open("cdna_kernels/"+NAME+".s.ref").read().split("\n")
    head=[l for l in hdr if l.startswith(";") and "@launch" not in l]
    T="\n".join(head)+"\n"
    if E("LIST",0)==2: T+=f"; @launch kernel={KN} grid=(256,1,1) block=(512,1,1) lds={LDS}\n"
    if E("LIST",0): T+=f"; @launch kernel={KN} grid=(256,1,1) block=(512,1,1) lds={LDS}\n"
    else: T+=f"; @launch grid=(256,1,1) block=(512,1,1) lds={LDS}\n"
    T+='.amdgcn_target "amdgcn-amd-amdhsa--gfx950"\n.text\n'
    A=Asm(); kern(A)
    for e in hazard_check(A.text()): print(e)
    T+=f".globl {KN}\n.p2align 8\n.type {KN},@function\n"+A.text()
    T+='.section .rodata,"a"\n'+kdesc(KN,256,102)
    open(out,"w").write(T)
if __name__=="__main__":
    main(sys.argv[1] if len(sys.argv)>1 else "cdna_kernels/"+NAME+".s")
```
